```python
import torch

def _softmax(x, axis=-1):
    return torch.softmax(x, dim=axis)
def _gelu(x):
    return torch.nn.functional.gelu(x, approximate="tanh")
def _silu(x):
    return torch.nn.functional.silu(x)
def _sigmoid(x):
    return torch.sigmoid(x)
def _layernorm(x, axis=-1, eps=1e-5):
    m = x.mean(dim=axis, keepdim=True)
    v = x.var(dim=axis, keepdim=True, unbiased=False)
    return (x - m) / torch.sqrt(v + eps)
def _scatter_add(tgt, idx, src, axis=0):
    return tgt.clone().index_add_(axis, idx, src)
def _segment_sum(src, seg, n):
    out = torch.zeros((n,) + src.shape[1:], dtype=src.dtype)
    return out.index_add_(0, seg, src)
def _pad(x, pw):
    flat = tuple(v for pair in reversed(pw) for v in pair)
    return torch.nn.functional.pad(x, flat)

kernel_name = 'recurrent_scan__sliding_local_dilated__swiglu_ffn__prompt'

def setup_inputs():

    _w = (lambda a: (lambda t: t.to(torch.bfloat16) if t.is_floating_point() else t)(torch.as_tensor(a)))
    def _A_setup():
        B, S, D = 1, 2048, 512
        return {
            "x": _w((lambda *s: torch.randn(*s, dtype=torch.bfloat16) * 0.05)(B, S, D)),
            "wqkv": _w((lambda *s: torch.randn(*s, dtype=torch.bfloat16) * 0.05)(D, 3 * D)),
            "wo": _w((lambda *s: torch.randn(*s, dtype=torch.bfloat16) * 0.05)(D, D)),
        }
    _A_in = _A_setup()

    def _B_setup():
        B, S, D, F = 1, 2048, 512, 1376
        return {
            "x": _w((lambda *s: torch.randn(*s, dtype=torch.bfloat16) * 0.05)(B, S, D)),
            "w_gate": _w((lambda *s: torch.randn(*s, dtype=torch.bfloat16) * 0.05)(D, F)),
            "w_up": _w((lambda *s: torch.randn(*s, dtype=torch.bfloat16) * 0.05)(D, F)),
            "w_down": _w((lambda *s: torch.randn(*s, dtype=torch.bfloat16) * 0.05)(F, D)),
        }
    _B_in = _B_setup()

    return {
        "A_x": _A_in["x"],
        "A_wqkv": _A_in["wqkv"],
        "A_wo": _A_in["wo"],
        "B_x": _B_in["x"],
        "B_w_gate": _B_in["w_gate"],
        "B_w_up": _B_in["w_up"],
        "B_w_down": _B_in["w_down"],
    }

def reference(A_x, A_wqkv, A_wo, B_x, B_w_gate, B_w_up, B_w_down):
    def _A_ref(x, wqkv, wo):
        B, S, D = x.shape
        H = 32; Dh = D // H
        W, dil = 8, 2
        qkv = (lambda x, *d: x.permute(*d))((x @ wqkv).reshape(B, S, 3, H, Dh), 2, 0, 3, 1, 4)
        q, k, v = qkv[0], qkv[1], qkv[2]
        scale = Dh ** -0.5
        pos = torch.arange(S)
        off = torch.arange(W) * dil
        idx = pos[:, None] - off[None, :]
        mask = idx >= 0
        idx_c = torch.where(mask, idx, 0).reshape(-1)
        kg = k[:, :, idx_c, :].reshape(B, H, S, W, Dh)
        vg = v[:, :, idx_c, :].reshape(B, H, S, W, Dh)
        logits = torch.einsum("bhsd,bhswd->bhsw", q, kg) * scale
        logits = torch.where(mask[None, None, :, :], logits, -1e9)
        attn = _softmax(logits, axis=-1)
        o = torch.einsum("bhsw,bhswd->bhsd", attn, vg)
        return (lambda x, *d: x.permute(*d))(o, 0, 2, 1, 3).reshape(B, S, D) @ wo

    def _B_ref(x, w_gate, w_up, w_down):
        g = _silu(x @ w_gate)
        u = x @ w_up
        return (g * u) @ w_down

    x = A_x
    xn = _layernorm(x, axis=-1)
    s = _A_ref(xn, A_wqkv, A_wo)
    g = _silu(_B_ref(xn, B_w_gate, B_w_up, B_w_down))
    return x + s * g
```

```python
import re
REG = re.compile(r'(?<![\w.])([vsa])(?:\[(\d+):(\d+)\]|(\d+))(?![\w])')
TRANS = ('v_exp_f32', 'v_log_f32', 'v_rcp_f32', 'v_rsq_f32', 'v_sqrt_f32', 'v_sin_f32', 'v_cos_f32')

def regs_of(op):
    out = set()
    for m in REG.finditer(op):
        k = m.group(1)
        if m.group(4) is not None: out.add((k, int(m.group(4))))
        else:
            for i in range(int(m.group(2)), int(m.group(3)) + 1): out.add((k, i))
    o = op.strip()
    if re.search(r'\bvcc\b', o): out |= {('s', 'vcc')}
    if re.search(r'\bvcc_lo\b|\bvcc_hi\b', o): out |= {('s', 'vcc')}
    if re.search(r'\bm0\b', o): out |= {('s', 'm0')}
    if re.search(r'\bexec(_lo|_hi)?\b', o): out |= {('s', 'exec')}
    return out

class Ins:
    def __init__(self, text):
        self.text = text
        t = text.split(';')[0].strip()
        parts = t.split(None, 1)
        self.mn = mn = parts[0]
        rest = parts[1] if len(parts) > 1 else ''
        ops = [o.strip() for o in re.split(r',(?![^\[]*\])', rest)] if rest else []
        self.ops = ops
        self.dst, self.src = set(), set()
        self.ws = 1
        self.cls = 'other'
        self.srcC = set(); self.srcAB = set(); self.data = set()
        if mn == 's_nop':
            self.ws = int(ops[0], 0) + 1; self.cls = 'nop'; return
        if mn.startswith('v_mfma'):
            self.cls = 'mfma'
            self.passes = 8 if '32x32' in mn else 4
            self.dst = regs_of(ops[0]); self.srcAB = regs_of(ops[1]) | regs_of(ops[2]); self.srcC = regs_of(ops[3].split()[0])
            self.src = self.srcAB | self.srcC
        elif mn.startswith('v_'):
            self.cls = 'valu'
            self.trans = mn.replace('_e32', '').replace('_e64', '') in TRANS
            self.dpp = any(x in t for x in ('row_', 'quad_perm', 'wave_'))
            self.perml = mn.startswith('v_permlane')
            self.rdlane = mn.startswith(('v_readfirstlane', 'v_readlane'))
            self.dst = regs_of(ops[0])
            for o in ops[1:]: self.src |= regs_of(o)
            if self.perml: self.dst |= regs_of(ops[1]); self.src |= regs_of(ops[0])
            if mn.startswith(('v_fmac', 'v_dot2c')) or self.dpp: self.src |= regs_of(ops[0])
            if mn.startswith('v_cndmask') and len(ops) == 3: self.src |= {('s', 'vcc')}
            if mn.startswith(('v_add_co', 'v_sub_co', 'v_addc_co')): self.dst |= regs_of(ops[1])
        elif mn.startswith(('buffer_', 'global_')):
            self.cls = 'vmem'
            self.lds = bool(re.search(r'\blds\b', t)) or 'load_lds' in mn
            isload = '_load' in mn
            self.wide_store = False
            if isload and not self.lds:
                self.dst = regs_of(ops[0])
                for o in ops[1:]: self.src |= regs_of(o)
            else:
                for o in ops: self.src |= regs_of(o)
                if '_store' in mn:
                    self.data = regs_of(ops[0] if mn.startswith('buffer_') else ops[1])
                    self.wide_store = mn.endswith(('x3', 'x4'))
            if self.lds: self.src |= {('s', 'm0')}
        elif mn.startswith('ds_'):
            self.cls = 'ds'
            if mn.startswith('ds_read'):
                self.dst = regs_of(ops[0])
                for o in ops[1:]: self.src |= regs_of(o)
            else:
                for o in ops: self.src |= regs_of(o)
        elif mn.startswith('s_'):
            self.cls = 'salu'
            nodst = ('s_cmp', 's_waitcnt', 's_barrier', 's_branch', 's_cbranch', 's_sleep', 's_setprio', 's_endpgm', 's_bitcmp')
            if not mn.startswith(nodst) and ops:
                self.dst = regs_of(ops[0])
                for o in ops[1:]: self.src |= regs_of(o)
            else:
                for o in ops: self.src |= regs_of(o)

def need(p, c):
    n = 0
    vd = {r for r in p.dst if r[0] in 'va'}
    sd = {r for r in p.dst if r[0] == 's'}
    if p.cls == 'valu':
        if c.cls == 'mfma' and vd & c.src: n = max(n, 2)
        if c.cls == 'valu':
            if p.trans and not c.trans and vd & c.src: n = max(n, 1)
            if (c.perml or c.dpp) and vd & c.src: n = max(n, 2)
            if c.rdlane and vd & c.src: n = max(n, 1)
            if sd & c.src: n = max(n, 4 if c.rdlane else 2)
        if c.cls == 'vmem' and sd & c.src: n = max(n, 5)
        if c.cls == 'salu' and sd & c.src: n = max(n, 1)
    if p.cls == 'mfma':
        big = 12 if p.passes == 8 else 8
        if c.cls == 'valu':
            if vd & (c.src | c.dst): n = max(n, big)
            if p.srcC & c.dst: n = max(n, 7 if p.passes == 8 else 3)
        if c.cls in ('vmem', 'ds') and vd & (c.src | c.dst): n = max(n, big)
        if c.cls == 'mfma':
            if vd & c.srcAB: n = max(n, big)
            if vd & c.srcC and not (vd == c.srcC and p.passes == c.passes): n = max(n, 10 if p.passes == 8 else 6)
            if vd & c.dst and not (vd & c.srcC): n = max(n, big)
    if p.cls == 'salu' and ('s', 'm0') in p.dst and c.cls == 'vmem' and c.lds: n = max(n, 1)
    if p.cls == 'vmem' and p.wide_store and p.data & c.dst: n = max(n, 2)
    return n

class K:
    def __init__(self):
        self.out = []
        self.ins = []
        self.vm = []
        self.nops = 0
    def raw(self, t): self.out.append(t)
    def c(self, t): self.out.append('  ; ' + t)
    def label(self, name): self.out.append(name + ':'); self.ins.append(None)
    def _pad(self, ins, hist):
        dist = 0; req = 0
        for p in reversed(hist):
            if p is None: continue
            req = max(req, need(p, ins) - dist)
            dist += p.ws
            if dist > 20: break
        return req
    def I(self, text, tag=None):
        for line in text.strip().split('\n'):
            line = line.strip()
            if not line or line.startswith(';'):
                if line: self.out.append('  ' + line)
                continue
            ins = Ins(line)
            req = self._pad(ins, self.ins)
            while req > 0:
                k = min(req, 16); n = Ins(f's_nop {k-1}'); self.ins.append(n); self.out.append(f'  s_nop {k-1}'); self.nops += k; req -= k
            self.ins.append(ins); self.out.append('  ' + line)
            if ins.cls == 'vmem': self.vm.append(tag)
    def mark(self): return len(self.ins)
    def check_backedge(self, start):
        body = [i for i in self.ins[start:] if i is not None]
        hist = list(body)
        for k, ins in enumerate(body[:24]):
            r = self._pad(ins, hist)
            assert r <= 0, f'back-edge hazard before "{ins.text}" needs {r}'
            hist.append(ins)
    def barrier_hist(self):
        pass
    def vm_reset(self): self.vm = []
    def wait_vm(self, tag, lgkm=None):
        idx = max((i for i, t in enumerate(self.vm) if t == tag), default=None)
        if idx is None:
            if lgkm is not None: self.I(f's_waitcnt lgkmcnt({lgkm})')
            return
        n = len(self.vm) - 1 - idx
        assert n <= 63, n
        self.vm = self.vm[idx + 1:]
        self.I(f's_waitcnt vmcnt({n})' + (f' lgkmcnt({lgkm})' if lgkm is not None else ''))
    def text(self): return '\n'.join(self.out) + '\n'
```

```python
import sys, os
from asmlib import K

NAME = "recurrent_scan__sliding_local_dilated__swiglu_ffn__prompt"
OPT = dict(diag=0, nt_x=0, nt_w=0, nt_b2=0, touch_b2=1, rot=4)
for a in sys.argv[2:]:
    k_, v_ = a.split('='); OPT[k_] = int(v_)

SLOT = 51200
MISC = 155648
L_AOS, L_SM, L_SR, L_CS, L_SCR = MISC, MISC + 4096, MISC + 5120, MISC + 6144, MISC + 7168
L_NONCE = L_AOS + 4080
AF_BYTES = 64 * 118 * 1024
W_RS, W_CSP, W_FL, W_DIAG = 0x800000, 0x810000, 0x880000, 0x900000
WS_REC = 0x1000000
OOB = 0x7f000000
LOG2E = 1.4426950408889634
import struct
def f32(x): return '0x%08x' % struct.unpack('<I', struct.pack('<f', x))[0]

SX, SWA, SWB, SWS, SAF, SW2, SSL, SOUT = 24, 28, 32, 36, 40, 44, 48, 52
sWAVE, sRB, sCOL, sISQ, sH, sRB2, sCB2, sSLOTID = 56, 57, 58, 59, 60, 61, 62, 63
sN = 64
sT = 66
sLW = 80
sKWS, sC, sKW, sX7M, sX7S, sPOS = 86, 87, 88, 89, 90, 91
sNV, sBROW, sABASE, sLB2 = 92, 93, 94, 95
sST = 96
sM = 80
VLANE, VDIAG = 254, 255
def srd(i): return f's[{i}:{i+3}]'

k = K()
I = k.I
def stamp(i):
    if not OPT['diag']: return
    I(f's_memrealtime s[{sST}:{sST+1}]\ns_waitcnt lgkmcnt(0)\nv_writelane_b32 v{VDIAG}, s{sST}, {i}')

def mk_srd(d, p, rec):
    I(f's_mov_b32 s{d}, s{p}\ns_mov_b32 s{d+1}, s{p+1}\ns_mov_b32 s{d+2}, {rec}\ns_mov_b32 s{d+3}, 0x20000')

lblc = [0]
def newlbl(p):
    lblc[0] += 1; return f'L_{p}_{lblc[0]}'

def nonce_poll():
    L = newlbl('np'); D = newlbl('npd')
    I(f's_mov_b32 s{sT}, 0')
    k.label(L)
    I(f"""s_load_dwordx2 s[{sN}:{sN+1}], s[20:21], 0 glc
s_add_u32 s{sT}, s{sT}, 1
s_waitcnt lgkmcnt(0)
s_cmp_lg_u64 s[{sN}:{sN+1}], 0
s_cbranch_scc1 {D}
s_sleep 2
s_cmp_lt_u32 s{sT}, 0x40000
s_cbranch_scc1 {L}""")
    k.label(D)

k.label('KSTART')
I(f"""s_cmp_ge_u32 s2, 256
s_cbranch_scc1 L_END
s_load_dwordx16 s[4:19], s[0:1], 0
s_load_dwordx4 s[20:23], s[0:1], 64
v_lshrrev_b32 v1, 6, v0
v_and_b32 v{VLANE}, 63, v0
v_readfirstlane_b32 s{sWAVE}, v1""")
if OPT['diag']: I(f'v_mov_b32 v{VDIAG}, 0')
T0 = [18,19,20,4,5,10,31,0]; T1 = [21,22,11,16,17,31,31,0]
def pk(b): return '0x%08x' % (b[0] | b[1] << 8 | b[2] << 16 | b[3] << 24)
t = sT
I(f"""s_and_b32 s{t}, s2, 7
s_lshr_b32 s{sSLOTID}, s2, 3
s_and_b32 s{t+1}, s{t}, 1
s_lshr_b32 s{t+2}, s{t}, 1
s_lshl_b32 s{sRB2}, s{t}, 2
s_lshr_b32 s{t+3}, s{sSLOTID}, 3
s_add_u32 s{sRB2}, s{sRB2}, s{t+3}
s_and_b32 s{sCB2}, s{sSLOTID}, 7
s_mul_i32 s{t+3}, s{sSLOTID}, 52
s_lshr_b32 s{t+3}, s{t+3}, 8
s_mul_i32 s{t+4}, s{t+3}, 5
s_sub_u32 s{t+4}, s{sSLOTID}, s{t+4}
s_mul_i32 s{t+5}, s{t+1}, 6
s_add_u32 s{sRB}, s{t+4}, s{t+5}
s_mul_i32 s{t+5}, s{t+2}, 6
s_add_u32 s{sCOL}, s{t+5}, s{t+3}
s_lshl_b32 s{t+6}, s{t+1}, 1
s_add_u32 s{t+5}, s{t+5}, s{t+6}
s_add_u32 s{t+5}, s{t+5}, s{sSLOTID}
s_sub_u32 s{t+5}, s{t+5}, 30
s_cmp_eq_u32 s{t+1}, 0
s_mov_b32 s{t+6}, {pk(T1[:4])}
s_mov_b32 s{t+7}, {pk(T1[4:])}
s_cmov_b32 s{t+6}, {pk(T0[:4])}
s_cmov_b32 s{t+7}, {pk(T0[4:])}""")
I(f"""s_sub_u32 s{t+8}, s{sSLOTID}, 25
s_lshl_b32 s{t+8}, s{t+8}, 3
s_lshr_b64 s[{t+6}:{t+7}], s[{t+6}:{t+7}], s{t+8}
s_and_b32 s{t+6}, s{t+6}, 0xff
s_cmp_eq_u32 s{t+2}, 3
s_cselect_b32 s{t+5}, s{t+6}, s{t+5}
s_cselect_b32 s{t+7}, 25, 30
s_cmp_ge_u32 s{sSLOTID}, s{t+7}
s_cselect_b32 s{sCOL}, s{t+5}, s{sCOL}
s_cselect_b32 s{sRB}, 5, s{sRB}
s_cmp_eq_u32 s{sCOL}, 31
s_cselect_b32 s{sCOL}, 0, s{sCOL}
s_cselect_b32 s{sRB}, 11, s{sRB}
s_add_u32 s{t+5}, s{sCOL}, 1
s_cmp_ge_u32 s{sCOL}, 14
s_cselect_b32 s{sCOL}, s{t+5}, s{sCOL}
s_cmp_eq_u32 s{sCOL}, 23
s_cselect_b32 s{sCOL}, 14, s{sCOL}
s_cmp_ge_u32 s{sCOL}, 15
s_cselect_b32 s{sISQ}, 1, 0
s_and_b32 s{sH}, s{sWAVE}, 3
s_cmp_lt_u32 s{sWAVE}, 4
s_cbranch_scc1 L_C""")

vXo0, vXo1, vW, vL16, vB2 = 2, 3, 4, 7, 247
vT = 8
NTX = ' nt' if OPT['nt_x'] else ''
NTW = ' nt' if OPT['nt_w'] else ''
NTB = ' nt' if OPT['nt_b2'] else ''
k.c('---- H prologue')
I(f"""v_lshrrev_b32 v{vT}, 3, v{VLANE}
v_and_b32 v{vT+1}, 7, v{VLANE}
v_lshrrev_b32 v{vT+2}, 1, v{vT}
s_and_b32 s{t}, s{sH}, 1
s_lshl_b32 s{t+1}, s{t}, 2
v_or_b32 v{vT+3}, s{t+1}, v{vT+2}
v_xor_b32 v{vT+3}, v{vT+3}, v{vT+1}
v_lshlrev_b32 v{vT+3}, 4, v{vT+3}
s_mul_i32 s{t+2}, s{sRB}, 192
s_lshl_b32 s{t+3}, s{sISQ}, 4
s_sub_i32 s{t+2}, s{t+2}, s{t+3}
s_lshl_b32 s{t+3}, s{sH}, 3
s_add_i32 s{t+2}, s{t+2}, s{t+3}
s_add_i32 s{t+4}, s{t+2}, 32
v_add_u32 v{vXo1}, s{t+4}, v{vT}
v_lshlrev_b32 v{vXo1}, 10, v{vXo1}
v_add_u32 v{vXo1}, v{vXo1}, v{vT+3}
s_cmp_lt_i32 s{t+2}, 0
s_mov_b32 s{t+4}, -32768
s_cmov_b32 s{t+4}, 0x40000000
v_add_u32 v{vXo0}, s{t+4}, v{vXo1}
v_lshlrev_b32 v{vL16}, 4, v{VLANE}
s_cmp_eq_u32 s{sISQ}, 1
s_cbranch_scc1 L_HQ""")
I(f"""s_mul_i32 s{t+2}, s{sH}, {16*2752}
s_mul_i32 s{t+3}, s{sCOL}, 192
s_add_u32 s{t+2}, s{t+2}, s{t+3}
s_movk_i32 s{t+4}, 171
s_movk_i32 s{t+5}, 2752
s_sub_u32 s{t+6}, 2752, s{t+3}""")
for b in range(3):
    I(f"""v_add_u32 v{vT+4}, {64*b}, v{VLANE}
v_mul_u32_u24 v{vT+5}, s{t+4}, v{vT+4}
v_lshrrev_b32 v{vT+5}, 11, v{vT+5}
v_mul_u32_u24 v{vT+6}, 12, v{vT+5}
v_sub_u32 v{vT+6}, v{vT+4}, v{vT+6}
v_lshlrev_b32 v{vT+6}, 4, v{vT+6}
v_mad_u32_u24 v{vW+b}, v{vT+5}, s{t+5}, v{vT+6}
v_add_u32 v{vW+b}, s{t+2}, v{vW+b}
v_cmp_gt_u32 vcc, s{t+6}, v{vT+6}
v_mov_b32 v{vT+7}, {OOB}
v_cndmask_b32 v{vW+b}, v{vT+7}, v{vW+b}, vcc""")
I(f"""s_mul_i32 s{sLW}, s{sH}, 3072
s_add_u32 s{sLW}, s{sLW}, 24576
s_add_u32 s{sLW+1}, s{sLW}, 1024
s_add_u32 s{sLW+2}, s{sLW}, 2048
s_add_u32 s{sLW+3}, s{sLW}, 12320
s_add_u32 s{sLW+4}, s{sLW}, {12320+1024}
s_add_u32 s{sLW+5}, s{sLW}, {12320+2048}
s_mov_b32 s{sKWS}, {64*2752}
s_mov_b32 s{sC}, 0
s_mov_b32 s{sX7M}, {L_SCR}
s_mov_b32 s{sX7S}, {OOB}
s_waitcnt lgkmcnt(0)""")
mk_srd(SWA, 12, 512*2752); mk_srd(SWB, 14, 512*2752)
I('s_branch L_HJ')
k.label('L_HQ')
I(f"""v_and_b32 v{vT+4}, 1, v{vT+2}
s_lshl_b32 s{t+1}, s{t}, 1
v_or_b32 v{vT+4}, s{t+1}, v{vT+4}
v_lshlrev_b32 v{vT+4}, 1, v{vT+4}
v_xor_b32 v{vT+4}, v{vT+4}, v{vT+1}
v_lshlrev_b32 v{vT+4}, 4, v{vT+4}
s_movk_i32 s{t+5}, 3072
v_mad_u32_u24 v{vW}, v{vT}, s{t+5}, v{vT+4}
s_mul_i32 s{t+2}, s{sH}, {8*3072}
s_sub_u32 s{t+3}, s{sCOL}, 15
s_lshl_b32 s{t+3}, s{t+3}, 7
s_add_u32 s{t+2}, s{t+2}, s{t+3}
v_add_u32 v{vW}, s{t+2}, v{vW}
v_add_u32 v{vW+1}, 1024, v{vW}
v_add_u32 v{vW+2}, 2048, v{vW}
s_lshl_b32 s{sLW}, s{sH}, 10
s_add_u32 s{sLW}, s{sLW}, 26624
s_add_u32 s{sLW+1}, s{sLW}, 8192
s_add_u32 s{sLW+2}, s{sLW}, 16384
s_add_u32 s{sLW+3}, s{sLW}, 4096
s_add_u32 s{sLW+4}, s{sLW}, {4096+8192}
s_add_u32 s{sLW+5}, s{sLW}, {4096+16384}
s_mov_b32 s{sKWS}, {64*3072}
s_mov_b32 s{sC}, {32*3072}
s_lshl_b32 s{t+2}, s{sH}, 10
s_add_u32 s{t+2}, s{t+2}, {24*1024}
s_cmp_lt_u32 s{sH}, 2
s_cselect_b32 s{sX7M}, s{t+2}, {L_SCR}
s_mov_b32 s{sX7S}, {OOB}
s_cmov_b32 s{sX7S}, {5*32768}
s_waitcnt lgkmcnt(0)""")
mk_srd(SWA, 6, 512*3072); mk_srd(SWB, 6, 512*3072)
k.label('L_HJ')
mk_srd(SX, 4, 2048*1024)
I(f's_lshl_b32 s{t+10}, s{sH}, 10\ns_mov_b32 s{sKW}, 0\ns_cmp_eq_u32 s{sX7M}, {L_SCR}\ns_cselect_b32 s{t+11}, 0, 1')
sH1K, sX7R = t + 10, t + 11

def stage_dma(st):
    base = (st % 3) * SLOT
    tag = f'D{st}'
    for tt in range(6):
        I(f's_add_u32 m0, s{sH1K}, {base + tt*4096}')
        if tt == 0: I(f's_movk_i32 s{t}, {st*128}\nbuffer_load_dwordx4 v{vXo0}, {srd(SX)}, s{t} offen lds{NTX}', tag)
        else: I(f's_mov_b32 s{t}, {(tt-1)*32768 + st*128}\nbuffer_load_dwordx4 v{vXo1}, {srd(SX)}, s{t} offen lds{NTX}', tag)
    I(f"""s_mul_i32 s{t}, s{sX7R}, {base}
s_add_u32 m0, s{t}, s{sX7M}
s_add_u32 s{t}, s{sX7S}, {st*128}
buffer_load_dwordx4 v{vXo1}, {srd(SX)}, s{t} offen lds{NTX}""", tag)
    I(f's_add_u32 s{t+1}, s{sKW}, s{sC}')
    for i in range(6):
        I(f's_add_u32 m0, s{sLW+i}, {base}')
        if i == 0: I('s_nop 0')
        I(f'buffer_load_dwordx4 v{vW + i%3}, {srd(SWA if i < 3 else SWB)}, s{sKW if i < 3 else t+1} offen lds{NTW}', tag)
    I(f's_add_u32 s{sKW}, s{sKW}, s{sKWS}')

stamp(0)
stage_dma(0)
I(f"""s_getpc_b64 s[{t+2}:{t+3}]""")
k.label('L_PC')
I(f"""s_lshl_b32 s{t+4}, s{sSLOTID}, 10
v_and_b32 v{vT+4}, 7, v{VLANE}
v_lshlrev_b32 v{vT+4}, 7, v{vT+4}
v_add_u32 v{vT+4}, s{t+4}, v{vT+4}
v_min_u32 v{vT+4}, L_CODE_END-L_PC-4, v{vT+4}
global_load_dword v{vT+5}, v{vT+4}, s[{t+2}:{t+3}]""", 'CODE')
stage_dma(1)
stage_dma(2)
mk_srd(SWS, 22, WS_REC); mk_srd(SAF, 22, AF_BYTES)
vRD, vSD = 20, 32
vSO = 64
I(f"""s_mul_i32 s{t}, s{sRB}, 192
s_mul_i32 s{t+1}, s{sCOL}, 12
s_add_u32 s{t}, s{t}, s{t+1}
s_mul_i32 s{t+1}, s{sH}, 3
s_add_u32 s{t}, s{t}, s{t+1}
s_cmp_lt_u32 s{sCOL}, 16
s_cselect_b32 s{t+12}, s{t}, 0x100000
s_lshl_b32 s{t}, s{t+12}, 10""")
sROW = t + 12
for a in range(3):
    I(f'buffer_load_dwordx4 v[{vRD+4*a}:{vRD+4*a+3}], v{vL16}, {srd(SX)}, s{t} offen offset:{a*1024}{NTX}', 'SR')
I(f"""s_cmp_ge_u32 s{sH}, 2
s_cselect_b32 s{SSL}, s{SWB}, s{SWA}
s_cselect_b32 s{SSL+1}, s{SWB+1}, s{SWA+1}
s_mov_b32 s{SSL+2}, s{SWA+2}
s_mov_b32 s{SSL+3}, 0x20000
s_cmp_eq_u32 s{sISQ}, 1
s_movk_i32 s{t+1}, 2752
s_cmov_b32 s{t+1}, 3072
s_and_b32 s{t+2}, s{sH}, 1
s_lshl_b32 s{t+2}, s{t+2}, 7
s_mul_i32 s{t+3}, s{sCOL}, 192
s_add_u32 s{t+4}, s{t+3}, s{t+2}
s_add_u32 s{t+3}, s{t+3}, 192
s_min_u32 s{t+3}, s{t+3}, 2752
s_sub_u32 s{t+5}, s{sCOL}, 15
s_lshl_b32 s{t+5}, s{t+5}, 7
s_lshl_b32 s{t+6}, s{sH}, 10
s_add_u32 s{t+5}, s{t+5}, s{t+6}
s_cmp_eq_u32 s{sISQ}, 1
s_cselect_b32 s{t+4}, s{t+5}, s{t+4}
s_cselect_b32 s{t+3}, 3072, s{t+3}
v_lshlrev_b32 v{vT+4}, 4, v{vT+1}
v_add_u32 v{vT+4}, s{t+4}, v{vT+4}
v_cmp_gt_u32 vcc, s{t+3}, v{vT+4}
v_mad_u32_u24 v{vSO}, v{vT}, s{t+1}, v{vT+4}
v_mov_b32 v{vT+7}, {OOB}
v_cndmask_b32 v{vSO}, v{vT+7}, v{vSO}, vcc
s_mul_i32 s{t+2}, s{sRB}, s{sKWS}
s_cmp_lt_u32 s{sRB}, 8
s_cselect_b32 s{t+2}, s{t+2}, {OOB}
s_lshl_b32 s{t+1}, s{t+1}, 3""")
for a in range(8):
    I(f'buffer_load_dwordx4 v[{vSD+4*a}:{vSD+4*a+3}], v{vSO}, {srd(SSL)}, s{t+2} offen{NTW}', 'SC')
    if a < 7: I(f's_add_u32 s{t+2}, s{t+2}, s{t+1}')
I(f'v_mov_b32 v136, 0\nglobal_load_dwordx2 v[138:139], v136, s[20:21] sc1', 'NC')
def nonce_get():
    k.wait_vm('NC')
    L = newlbl('np'); D = newlbl('npd')
    I(f's_mov_b32 s{t+4}, 0')
    k.label(L)
    I(f"""v_readfirstlane_b32 s{sN}, v138
v_readfirstlane_b32 s{sN+1}, v139
s_add_u32 s{t+4}, s{t+4}, 1
s_cmp_lg_u64 s[{sN}:{sN+1}], 0
s_cbranch_scc1 {D}
s_sleep 8""")
    sv = list(k.vm)
    I(f"""global_load_dwordx2 v[138:139], v136, s[20:21] sc1
s_waitcnt vmcnt(0)
s_cmp_lt_u32 s{t+4}, 0x20000
s_cbranch_scc1 {L}""")
    k.vm = sv
    k.label(D)
def p2_params(kqreg):
    I(f"""s_cmp_eq_u32 s{kqreg}, 0
s_cselect_b32 s{SW2}, s8, s16
s_cselect_b32 s{SW2+1}, s9, s17
s_mov_b32 s{SW2+2}, {1376*1024}
s_cmov_b32 s{SW2+2}, {512*1024}
s_mov_b32 s{SW2+3}, 0x20000
s_cselect_b32 s{sNV}, 32, 29
s_cselect_b32 s{t}, 29, 0
s_mul_i32 s{sBROW}, s{kqreg}, 29
s_add_u32 s{sBROW}, s{sBROW}, s{t}
s_sub_u32 s{sBROW}, s{sBROW}, 29
s_cmp_eq_u32 s{kqreg}, 3
s_cselect_b32 s{sNV}, 28, s{sNV}
s_lshl_b32 s{sLB2}, s{kqreg}, 11""")
p2_params(sH)
I(f"""v_and_b32 v{vT+4}, 4, v{vT}
v_and_b32 v{vT+5}, 1, v{vT}
v_add_u32 v{vT+4}, v{vT+4}, v{vT+5}
v_bfe_u32 v{vT+5}, v{VLANE}, 2, 1
v_lshl_add_u32 v{vT+4}, v{vT+5}, 1, v{vT+4}
v_lshlrev_b32 v{vT+4}, 10, v{vT+4}
v_bfe_u32 v{vT+5}, v{vT}, 1, 1
v_lshl_add_u32 v{vT+4}, v{vT+5}, 6, v{vT+4}
v_and_b32 v{vT+5}, 3, v{VLANE}
v_lshl_add_u32 v{vT+4}, v{vT+5}, 4, v{vT+4}
s_lshl_b32 s{t}, s{sCB2}, 7
v_add_u32 v{vB2}, s{t}, v{vT+4}
s_mul_i32 s{sPOS}, s{sCB2}, {OPT['rot']}
s_and_b32 s{sPOS}, s{sPOS}, 31""")

SIGMA = [13,14,15,16,17,18, 0,1,2,3,4,5, 6, 7,8,9,10,11,12]
SIGMA += SIGMA[:13]
def b2_dma(i, tag):
    I(f"""s_add_u32 s{t}, s{sBROW}, s{sPOS}
s_lshl_b32 s{t}, s{t}, 14
s_cmp_lt_u32 s{sPOS}, s{sNV}
s_cselect_b32 s{t}, s{t}, {OOB}
s_add_u32 m0, s{sLB2}, {SIGMA[i]*8192}
s_add_u32 s{t+1}, s{t}, 8192
buffer_load_dwordx4 v{vB2}, {srd(SW2)}, s{t} offen lds{NTB}
s_add_u32 m0, s{sLB2}, {SIGMA[i]*8192 + 1024}
s_add_u32 s{sPOS}, s{sPOS}, 1
buffer_load_dwordx4 v{vB2}, {srd(SW2)}, s{t+1} offen lds{NTB}
s_and_b32 s{sPOS}, s{sPOS}, 31""", tag)

def row_stats():
    k.wait_vm('SR')
    vA = 66
    for a in range(3):
        for d in range(4):
            D = vRD + 4*a + d
            I(f'v_lshlrev_b32 v72, 16, v{D}\nv_and_b32 v73, 0xffff0000, v{D}')
            if d == 0:
                I(f'v_add_f32 v{vA+2*a}, v72, v73\nv_mul_f32 v{vA+2*a+1}, v72, v72\nv_fmac_f32 v{vA+2*a+1}, v73, v73')
            else:
                I(f'v_add_f32 v{vA+2*a}, v{vA+2*a}, v72\nv_fmac_f32 v{vA+2*a+1}, v72, v72\nv_add_f32 v{vA+2*a}, v{vA+2*a}, v73\nv_fmac_f32 v{vA+2*a+1}, v73, v73')
    for step in ('row_shr:1 row_mask:0xf bank_mask:0xf bound_ctrl:0', 'row_shr:2 row_mask:0xf bank_mask:0xf bound_ctrl:0',
                 'row_shr:4 row_mask:0xf bank_mask:0xf bound_ctrl:0', 'row_shr:8 row_mask:0xf bank_mask:0xf bound_ctrl:0',
                 'row_bcast:15 row_mask:0xa bank_mask:0xf', 'row_bcast:31 row_mask:0xc bank_mask:0xf'):
        for i in range(6): I(f'v_add_f32_dpp v{vA+i}, v{vA+i}, v{vA+i} {step}')
    I(f"""s_lshl_b32 s{t}, s{sROW}, 4
s_add_u32 s{t}, s{t}, {W_RS}
s_cmp_lt_u32 s{sROW}, 2048
s_cselect_b32 s{t}, s{t}, {OOB}
v_mov_b32 v74, {OOB}
v_cmp_eq_u32 vcc, 63, v{VLANE}
v_cndmask_b32 v74, v74, 0, vcc
s_mov_b32 s{t+1}, {f32(1/512)}
s_mov_b32 s{t+2}, {f32(1e-5)}""")
    for a in range(3):
        G = 76 + 4*a
        I(f"""v_mul_f32 v{G}, s{t+1}, v{vA+2*a}
v_mul_f32 v{G+1}, s{t+1}, v{vA+2*a+1}
v_fma_f32 v{G+1}, -v{G}, v{G}, v{G+1}
v_max_f32 v{G+1}, 0, v{G+1}
v_add_f32 v{G+1}, s{t+2}, v{G+1}
v_mov_b32 v{G+2}, s{sN}
v_mov_b32 v{G+3}, s{sN+1}
buffer_store_dwordx4 v[{G}:{G+3}], v74, {srd(SWS)}, s{t} offen offset:{16*a} sc1""", 'PUB')

def col_stats():
    k.wait_vm('SC')
    vA = 90
    for a in range(8):
        for d in range(4):
            D = vSD + 4*a + d
            if a == 0:
                I(f'v_lshlrev_b32 v{vA+2*d}, 16, v{D}\nv_and_b32 v{vA+2*d+1}, 0xffff0000, v{D}')
            else:
                I(f'v_lshlrev_b32 v72, 16, v{D}\nv_and_b32 v73, 0xffff0000, v{D}\nv_add_f32 v{vA+2*d}, v{vA+2*d}, v72\nv_add_f32 v{vA+2*d+1}, v{vA+2*d+1}, v73')
    for e in range(4): I(f'v_permlane32_swap_b32 v{vA+e}, v{vA+e+4}')
    for e in range(4): I(f'v_add_f32 v{vA+e}, v{vA+e}, v{vA+e+4}')
    for e in range(2): I(f'v_permlane16_swap_b32 v{vA+e}, v{vA+e+2}')
    for e in range(2): I(f'v_add_f32 v{vA+e}, v{vA+e}, v{vA+e+2}')
    for e in range(2): I(f'v_add_f32_dpp v{vA+8+e}, v{vA+e}, v{vA+e} row_ror:8 row_mask:0xf bank_mask:0xf')
    I(f"""v_mov_b32 v{vA+10}, s{sN}
v_mov_b32 v{vA+11}, s{sN+1}
v_lshrrev_b32 v72, 4, v{VLANE}
v_lshl_add_u32 v72, v{vT+1}, 2, v72
v_lshlrev_b32 v72, 4, v72
v_and_b32 v73, 8, v{VLANE}
v_cmp_eq_u32 vcc, 0, v73
v_mov_b32 v73, {OOB}
v_cndmask_b32 v72, v73, v72, vcc
s_lshl_b32 s{t}, s{sCOL}, 14
s_lshl_b32 s{t+1}, s{sRB}, 11
s_add_u32 s{t}, s{t}, s{t+1}
s_lshl_b32 s{t+1}, s{sH}, 9
s_add_u32 s{t}, s{t}, s{t+1}
s_add_u32 s{t}, s{t}, {W_CSP}
s_cmp_lt_u32 s{sRB}, 8
s_cselect_b32 s{t}, s{t}, {OOB}
buffer_store_dwordx4 v[{vA+8}:{vA+11}], v72, {srd(SWS)}, s{t} offen sc1""", 'PUB')

vCL = 104
def collect_setup():
    I(f"""s_and_b32 s{t}, s{sH}, 1
s_lshl_b32 s{t}, s{t}, 10
s_lshr_b32 s{t+1}, s{sH}, 1
s_lshl_b32 s{t+1}, s{t+1}, 13
s_add_u32 s{t}, s{t}, s{t+1}
s_lshl_b32 s{t+1}, s{sCOL}, 14
s_add_u32 s{t}, s{t}, s{t+1}
s_add_u32 s{t}, s{t}, {W_CSP}
v_add_u32 v124, s{t}, v{vL16}
s_lshl_b32 s{t}, s{sH}, 6
v_add_u32 v126, s{t}, v{VLANE}
s_mul_i32 s{t}, s{sRB}, 192
s_lshl_b32 s{t+1}, s{sISQ}, 4
s_sub_i32 s{t}, s{t}, s{t+1}
v_add_u32 v125, s{t}, v126
s_add_u32 s{t+1}, s{t+1}, 192
v_cmp_gt_u32 vcc, s{t+1}, v126
s_mov_b64 s[{t+2}:{t+3}], vcc
v_cmp_gt_u32 vcc, 2048, v125
s_and_b64 s[{t+8}:{t+9}], vcc, s[{t+2}:{t+3}]
v_lshlrev_b32 v125, 4, v125
v_add_u32 v125, {W_RS}, v125
v_mov_b32 v127, {OOB}
v_cndmask_b32 v125, v127, v125, s[{t+8}:{t+9}]""".replace('v_cmp_gt_u32 vcc, 2048, v125', 'v_mov_b32 v127, 2048\nv_cmp_gt_u32 vcc, v127, v125'))
sVAL = t + 8
def collect_loads(tag):
    for p in range(4):
        if p < 2: I(f'buffer_load_dwordx4 v[{vCL+4*p}:{vCL+4*p+3}], v124, {srd(SWS)}, 0 offen offset:{p*2048} sc1', tag)
        else: I(f's_movk_i32 s{t}, {p*2048}\nbuffer_load_dwordx4 v[{vCL+4*p}:{vCL+4*p+3}], v124, {srd(SWS)}, s{t} offen sc1', tag)
    I(f'buffer_load_dwordx4 v[{vCL+16}:{vCL+19}], v125, {srd(SWS)}, 0 offen sc1', tag)
def collect_check(ok):
    I(f"""v_cmp_eq_u64 vcc, s[{sN}:{sN+1}], v[{vCL+18}:{vCL+19}]
s_orn2_b64 s[{t+2}:{t+3}], vcc, s[{sVAL}:{sVAL+1}]""")
    for p in range(4):
        I(f"""v_cmp_eq_u64 vcc, s[{sN}:{sN+1}], v[{vCL+4*p+2}:{vCL+4*p+3}]
s_and_b64 s[{t+2}:{t+3}], s[{t+2}:{t+3}], vcc""")
    I(f's_cmp_eq_u64 s[{t+2}:{t+3}], -1\ns_cbranch_scc1 {ok}')
def collect_finish():
    k.wait_vm('CL')
    ok = newlbl('clok'); L = newlbl('clre')
    collect_check(ok)
    I(f's_mov_b32 s{t+4}, 0')
    k.label(L)
    sv = list(k.vm)
    I('s_sleep 4')
    collect_loads(None)
    I(f's_waitcnt vmcnt(0)\ns_add_u32 s{t+4}, s{t+4}, 1')
    collect_check(ok)
    I(f's_cmp_lt_u32 s{t+4}, 0x20000\ns_cbranch_scc1 {L}')
    k.vm = sv
    k.label(ok)
    I(f"""v_add_f32 v{vCL}, v{vCL}, v{vCL+4}
v_add_f32 v{vCL+1}, v{vCL+1}, v{vCL+5}
v_add_f32 v{vCL+8}, v{vCL+8}, v{vCL+12}
v_add_f32 v{vCL+9}, v{vCL+9}, v{vCL+13}
v_add_f32 v{vCL}, v{vCL}, v{vCL+8}
v_add_f32 v{vCL+1}, v{vCL+1}, v{vCL+9}
s_and_b32 s{t}, s{sH}, 1
s_lshl_b32 s{t}, s{t}, 9
s_add_u32 s{t}, s{t}, {L_CS}
v_lshlrev_b32 v127, 3, v{VLANE}
v_add_u32 v127, s{t}, v127""")
    R = vCL + 16
    I(f"""v_cndmask_b32 v{R}, 0, v{R}, s[{sVAL}:{sVAL+1}]
v_cndmask_b32 v{R+2}, 1.0, v{R+1}, s[{sVAL}:{sVAL+1}]
v_rsq_f32 v{R+1}, v{R+2}
s_cmp_eq_u32 s{sISQ}, 1
s_mov_b32 s{t}, {f32(-LOG2E)}
s_cmov_b32 s{t}, {f32(0.25*LOG2E)}
v_mul_f32 v{R+3}, s{t}, v{R+1}
v_lshlrev_b32 v128, 4, v126
v_add_u32 v128, {L_AOS}, v128
v_lshlrev_b32 v129, 2, v126
v_add_u32 v129, {L_SM}, v129
ds_write_b128 v128, v[{R}:{R+3}]
ds_write_b32 v129, v{R}
ds_write_b32 v129, v{R+1} offset:1024""")
    S = newlbl('csw')
    I(f's_cmp_ge_u32 s{sH}, 2\ns_cbranch_scc1 {S}\nds_write_b64 v127, v[{vCL}:{vCL+1}]')
    k.label(S)
def collect_add():
    I(f'v_mov_b32 v136, {L_NONCE}\nds_write_b64 v136, v[138:139]')
    S = newlbl('csa')
    I(f's_cmp_lt_u32 s{sH}, 2\ns_cbranch_scc1 {S}\nds_add_f32 v127, v{vCL}\nds_add_f32 v127, v{vCL+1} offset:4')
    k.label(S)

def b2_touch():
    I(f"""s_lshl_b32 s{t}, s{sSLOTID}, 2
s_add_u32 s{t}, s{t}, s{sH}
s_mul_i32 s{t}, s{t}, 43*256
v_lshlrev_b32 v130, 7, v{VLANE}
v_add_u32 v130, s{t}, v130""")
    mk_srd(SSL, 16, 1376*1024)
    I(f"""v_cmp_gt_u32 vcc, 22, v{VLANE}
v_add_u32 v131, 8192, v130
v_mov_b32 v132, {OOB}
v_cndmask_b32 v131, v132, v131, vcc
buffer_load_dword v133, v130, {srd(SSL)}, 0 offen{NTB}
buffer_load_dword v134, v131, {srd(SSL)}, 0 offen{NTB}""", 'TB')
    I(f"""s_lshl_b32 s{t}, s{sSLOTID}, 2
s_add_u32 s{t}, s{t}, s{sH}
s_lshl_b32 s{t}, s{t}, 12
v_and_b32 v130, 31, v{VLANE}
v_lshlrev_b32 v130, 7, v130
v_add_u32 v130, s{t}, v130""")
    mk_srd(SSL, 8, 512*1024)
    I(f'buffer_load_dword v135, v130, {srd(SSL)}, 0 offen{NTB}', 'TB')

def hbar(st, lg=None):
    k.wait_vm(f'D{st}', lg)
    I('s_barrier')

stamp(1)
hbar(0); stamp(2)
hbar(1); stage_dma(3); nonce_get(); row_stats()
hbar(2); stage_dma(4); col_stats()
hbar(3); stage_dma(5)
if OPT['touch_b2']: b2_touch()
collect_setup()
hbar(4); stage_dma(6)
hbar(5); stage_dma(7); collect_loads('CL')
hbar(6)
for i in range(0, 6): b2_dma(i, 'B2')
collect_finish()
hbar(7, 0)
for i in range(6, 12): b2_dma(i, 'B2')
collect_add()
I('s_waitcnt lgkmcnt(0)\ns_barrier')
stamp(3)
for i in range(12, 19): b2_dma(i, 'B2')
I('s_waitcnt vmcnt(0)')
k.vm_reset()
stamp(4)

k.label('L_P2')
ACC, BR, BD, AW, VA1, VA2, VL16, VXR = 0, 32, 136, 152, 240, 243, 246, 250
NAW = 22
k.c('---- phase 2 setup')
I(f"""s_lshr_b32 s{t+4}, s{sWAVE}, 2
s_lshl_b32 s{t+5}, s{sRB2}, 1
s_add_u32 s{t+5}, s{t+5}, s{t+4}
s_mul_i32 s{t+5}, s{t+5}, 118
s_add_u32 s{t+5}, s{t+5}, s{sBROW}
s_cmp_eq_u32 s{sH}, 0
s_cselect_b32 s{t+6}, 0, 32
s_add_u32 s{sABASE}, s{t+5}, s{t+6}
s_cmp_eq_u32 s{sH}, 0
s_cselect_b32 s{t+6}, 10, 9
s_movk_i32 s{t+7}, 1024
s_cmov_b32 s{t+7}, 512
v_lshrrev_b32 v1, 5, v{VLANE}
v_lshlrev_b32 v1, s{t+6}, v1
v_bfe_u32 v2, v{VLANE}, 2, 1
v_lshl_add_u32 v1, v2, 7, v1
v_bfe_u32 v2, v{VLANE}, 3, 1
v_lshl_add_u32 v1, v2, 6, v1
v_bfe_u32 v2, v{VLANE}, 4, 1
v_lshl_add_u32 v1, v2, 5, v1
v_and_b32 v2, 3, v{VLANE}
v_lshl_add_u32 v1, v2, 3, v1
v_add_u32 v{VA1}, s{sLB2}, v1
v_add_u32 v{VA1+1}, 0x10000, v{VA1}
v_add_u32 v{VA1+2}, 0x20000, v{VA1}
v_add_u32 v{VA2}, s{t+7}, v{VA1}
v_add_u32 v{VA2+1}, s{t+7}, v{VA1+1}
v_add_u32 v{VA2+2}, s{t+7}, v{VA1+2}
v_lshlrev_b32 v{VL16}, 4, v{VLANE}""")
VOO = 248
I(f"""s_lshl_b32 s{t}, s{sRB2}, 6
s_lshl_b32 s{t+1}, s{sWAVE}, 3
s_add_u32 s{t}, s{t}, s{t+1}
v_lshrrev_b32 v1, 3, v{VLANE}
v_add_u32 v1, s{t}, v1
v_lshlrev_b32 v1, 10, v1
v_and_b32 v2, 7, v{VLANE}
v_lshl_add_u32 v1, v2, 4, v1
s_lshl_b32 s{t}, s{sCB2}, 7
v_add_u32 v{VOO}, s{t}, v1
buffer_load_dwordx4 v[{VXR}:{VXR+3}], v{VOO}, {srd(SX)}, 0 offen""")
VP = AW
I(f"""s_mul_i32 s{t}, s{sRB2}, 86
s_lshr_b32 s{t}, s{t}, 8
s_mul_i32 s{t}, s{t}, 23
s_mov_b32 s{t+1}, 0x0904000f
s_mov_b32 s{t+2}, 0x05050407
s_lshl_b32 s{t+3}, s{sH}, 3
s_lshr_b32 s{t+1}, s{t+1}, s{t+3}
s_lshr_b32 s{t+2}, s{t+2}, s{t+3}
s_and_b32 s{t+1}, s{t+1}, 0xff
s_and_b32 s{t+2}, s{t+2}, 0xff
s_add_u32 s{t}, s{t}, s{t+1}
v_lshrrev_b32 v1, 2, v{VLANE}
v_min_u32 v1, s{t+2}, v1
v_add_u32 v1, s{t}, v1
v_lshlrev_b32 v1, 7, v1
v_and_b32 v2, 3, v{VLANE}
v_lshl_add_u32 v1, v2, 4, v1
v_add_u32 v{VP}, {W_FL}, v1
s_barrier""")
def tr_reads(i, dst):
    off = SIGMA[i] * 8192; r = off >> 16; off &= 0xffff
    for ct in range(2):
        I(f'ds_read_b64_tr_b16 v[{dst+4*ct}:{dst+4*ct+1}], v{VA1+r} offset:{off+ct*256}')
        I(f'ds_read_b64_tr_b16 v[{dst+4*ct+2}:{dst+4*ct+3}], v{VA2+r} offset:{off+ct*256}')
for i in range(13): tr_reads(i, BR + 8*i)
I('s_waitcnt lgkmcnt(0)\ns_barrier')
stamp(5)
I(f's_cmp_lt_u32 s{sWAVE}, 4\ns_cbranch_scc1 L_NOREFILL')
for i in range(19, 32): b2_dma(i, None)
k.label('L_NOREFILL')
I(f's_mov_b32 s{t+4}, 0')
k.label('L_POLL')
I(f"""buffer_load_dwordx2 v[{VP+2}:{VP+3}], v{VP}, {srd(SWS)}, 0 offen sc1
s_add_u32 s{t+4}, s{t+4}, 1
s_waitcnt vmcnt(0)
v_cmp_eq_u64 vcc, s[{sN}:{sN+1}], v[{VP+2}:{VP+3}]
s_cmp_eq_u64 vcc, -1
s_cbranch_scc1 L_POLLED
s_sleep 2
s_cmp_lt_u32 s{t+4}, 0x20000
s_cbranch_scc1 L_POLL""")
k.label('L_POLLED')
k.vm_reset()
stamp(6)
I(f's_mul_i32 s{sPOS}, s{sCB2}, {OPT["rot"]}\ns_and_b32 s{sPOS}, s{sPOS}, 31')
def a_load(i):
    d = AW + 4 * (i % NAW)
    I(f"""s_add_u32 s{t}, s{sABASE}, s{sPOS}
s_lshl_b32 s{t}, s{t}, 10
s_cmp_lt_u32 s{sPOS}, s{sNV}
s_cselect_b32 s{t}, s{t}, {OOB}
s_add_u32 s{sPOS}, s{sPOS}, 1
buffer_load_dwordx4 v[{d}:{d+3}], v{VL16}, {srd(SAF)}, s{t} offen sc1
s_and_b32 s{sPOS}, s{sPOS}, 31""", f'A{i}')
for i in range(NAW): a_load(i)
for i in range(32):
    if i + 1 == 19: I('s_barrier')
    if 13 <= i + 1 < 32: tr_reads(i + 1, BD + 8 * ((i + 1) & 1))
    b = BR + 8*i if i < 13 else BD + 8 * (i & 1)
    a = AW + 4 * (i % NAW)
    k.wait_vm(f'A{i}', (4 if i + 1 < 32 else 0) if i >= 13 else None)
    for ct in range(2):
        c_ = '0' if i == 0 else f'v[{ACC+16*ct}:{ACC+16*ct+15}]'
        I(f'v_mfma_f32_32x32x16_bf16 v[{ACC+16*ct}:{ACC+16*ct+15}], v[{b+4*ct}:{b+4*ct+3}], v[{a}:{a+3}], {c_}')
    if i + NAW < 32: a_load(i + NAW)
stamp(7)
k.c('---- reduction + final epilogue')
mk_srd(SOUT, 18, 2048*1024)
I(f"""s_mul_i32 s{t}, s{sH}, 17408
s_lshr_b32 s{t+1}, s{sWAVE}, 2
s_mul_i32 s{t+1}, s{t+1}, {32*272}
s_add_u32 s{t}, s{t}, s{t+1}
s_movk_i32 s{t+2}, 272
v_and_b32 v40, 31, v{VLANE}
v_mul_u32_u24 v40, s{t+2}, v40
v_lshrrev_b32 v41, 5, v{VLANE}
v_lshl_add_u32 v40, v41, 4, v40
v_add_u32 v40, s{t}, v40
s_mul_i32 s{t}, s{sWAVE}, {8*272}
v_lshrrev_b32 v41, 3, v{VLANE}
v_mul_u32_u24 v41, s{t+2}, v41
v_and_b32 v42, 7, v{VLANE}
v_lshl_add_u32 v41, v42, 5, v41
v_add_u32 v41, s{t}, v41
s_barrier""")
for ct in range(2):
    for i2 in range(4):
        r = ACC + 16*ct + 4*i2
        I(f'ds_write_b128 v40, v[{r}:{r+3}] offset:{ct*128 + i2*32}')
I('s_waitcnt lgkmcnt(0)\ns_barrier')
R = 48
for q in (1, 2, 3, 0):
    for hlf in range(2):
        I(f'ds_read_b128 v[{R+8*q+4*hlf}:{R+8*q+4*hlf+3}], v41 offset:{q*17408 + hlf*16}')
I(f's_mov_b32 s{t}, {f32(-LOG2E)}\ns_mov_b32 s{t+1}, {f32(-LOG2E)}\ns_mov_b32 s{t+2}, 1.0\ns_mov_b32 s{t+3}, 1.0')
X = 88
for d in range(4): I(f'v_lshlrev_b32 v{X+2*d}, 16, v{VXR+d}\nv_and_b32 v{X+2*d+1}, 0xffff0000, v{VXR+d}')
F, E = R + 8, 96
I('s_waitcnt lgkmcnt(4)')
for p in range(4): I(f'v_pk_add_f32 v[{F+2*p}:{F+2*p+1}], v[{F+2*p}:{F+2*p+1}], v[{F+8+2*p}:{F+8+2*p+1}]')
I('s_waitcnt lgkmcnt(2)')
for p in range(4): I(f'v_pk_add_f32 v[{F+2*p}:{F+2*p+1}], v[{F+2*p}:{F+2*p+1}], v[{F+16+2*p}:{F+16+2*p+1}]')
for p in range(4): I(f'v_pk_mul_f32 v[{E+2*p}:{E+2*p+1}], v[{F+2*p}:{F+2*p+1}], s[{t}:{t+1}]')
for e in range(8): I(f'v_exp_f32 v{E+e}, v{E+e}')
for p in range(4): I(f'v_pk_add_f32 v[{E+2*p}:{E+2*p+1}], v[{E+2*p}:{E+2*p+1}], s[{t+2}:{t+3}]')
for e in range(8): I(f'v_rcp_f32 v{E+e}, v{E+e}')
I('s_waitcnt lgkmcnt(0)')
for p in range(4): I(f'v_pk_mul_f32 v[{F+2*p}:{F+2*p+1}], v[{F+2*p}:{F+2*p+1}], v[{R+2*p}:{R+2*p+1}]')
for p in range(4): I(f'v_pk_fma_f32 v[{F+2*p}:{F+2*p+1}], v[{F+2*p}:{F+2*p+1}], v[{E+2*p}:{E+2*p+1}], v[{X+2*p}:{X+2*p+1}]')
for p in range(4): I(f'v_cvt_pk_bf16_f32 v{E+8+p}, v{F+2*p}, v{F+2*p+1}')
I(f'buffer_store_dwordx4 v[{E+8}:{E+11}], v{VOO}, {srd(SOUT)}, 0 offen')
if OPT['diag']:
    I('s_waitcnt vmcnt(0)')
    stamp(8)
    I(f"""s_lshl_b32 s{t}, s2, 3
s_add_u32 s{t}, s{t}, s{sWAVE}
s_lshl_b32 s{t}, s{t}, 8
s_add_u32 s{t}, s{t}, {W_DIAG}
v_lshlrev_b32 v1, 2, v{VLANE}
buffer_store_dword v{VDIAG}, v1, {srd(SWS)}, s{t} offen""")
k.label('L_END')
I('s_endpgm')

k.label('L_C')
k.ins.clear(); k.vm_reset()
I('s_waitcnt lgkmcnt(0)')
stamp(0)
NW = newlbl('nw')
I(f"""s_or_b32 s{t}, s2, s{sWAVE}
s_cmp_lg_u32 s{t}, 0
s_cbranch_scc1 {NW}
s_memrealtime s[{t+2}:{t+3}]
s_waitcnt lgkmcnt(0)
s_or_b32 s{t+2}, s{t+2}, 1
v_mov_b32 v2, s{t+2}
v_mov_b32 v3, s{t+3}
v_mov_b32 v4, 0
global_store_dwordx2 v4, v[2:3], s[20:21] sc1""")
k.label(NW)
mk_srd(SX, 4, 2048*1024); mk_srd(SWS, 22, WS_REC); mk_srd(SAF, 22, AF_BYTES)
p2_params(sH)
I(f's_cmp_eq_u32 s{sISQ}, 1\ns_cbranch_scc1 L_CQ')

def publish_flag():
    I(f"""s_mul_i32 s{t}, s{sRB}, 23
s_add_u32 s{t}, s{t}, s{sCOL}
s_lshl_b32 s{t}, s{t}, 7
s_lshl_b32 s{t+1}, s{sWAVE}, 4
s_add_u32 s{t}, s{t}, s{t+1}
s_add_u32 s{t}, s{t}, {W_FL}
v_mov_b32 v1, {OOB}
v_cmp_eq_u32 vcc, 0, v{VLANE}
v_cndmask_b32 v1, v1, 0, vcc
v_mov_b32 v4, {L_NONCE}
ds_read_b64 v[2:3], v4
s_waitcnt vmcnt(0) lgkmcnt(0)
v_readfirstlane_b32 s{sN}, v2
v_readfirstlane_b32 s{sN+1}, v3
buffer_store_dwordx2 v[2:3], v1, {srd(SWS)}, s{t} offen sc1""")
    stamp(4)
    I('s_branch L_P2')

sSL, sIT = t + 12, t + 13
def next_slot():
    I(f"""s_add_u32 s{sSL}, s{sSL}, {SLOT}
s_cmp_eq_u32 s{sSL}, {3*SLOT}
s_cselect_b32 s{sSL}, 0, s{sSL}""")

k.c('---- C FFN')
XF, WF, XAb, XA, WAb, WA = 144, 168, 192, 196, 200, 201
I(f"""s_lshr_b32 s{t}, s{sWAVE}, 1
s_and_b32 s{t+1}, s{sWAVE}, 1
s_mul_i32 s{t+2}, s{t}, {96*128}
v_and_b32 v150, 31, v{VLANE}
v_bfe_u32 v151, v{VLANE}, 1, 3
v_lshrrev_b32 v152, 5, v{VLANE}
v_xor_b32 v151, v151, v152
v_lshlrev_b32 v150, 7, v150
v_add_u32 v150, s{t+2}, v150""")
for j in range(4):
    I(f'v_xor_b32 v153, {2*j}, v151\nv_lshl_add_u32 v{XAb+j}, v153, 4, v150\nv_mov_b32 v{XA+j}, v{XAb+j}')
I(f"""v_bfe_u32 v150, v{VLANE}, 2, 2
v_lshl_add_u32 v150, v152, 3, v150
v_mul_u32_u24 v150, 192, v150
v_bfe_u32 v151, v{VLANE}, 4, 1
v_mul_u32_u24 v151, 12320, v151
v_add_u32 v150, v150, v151
v_and_b32 v151, 3, v{VLANE}
v_lshl_add_u32 v150, v151, 3, v150
s_mul_i32 s{t+2}, s{t+1}, 96
s_add_u32 s{t+2}, s{t+2}, 24576
v_add_u32 v{WAb}, s{t+2}, v150
v_mov_b32 v{WA}, v{WAb}""")
I(f'v_mov_b32 v{vB2}, 0')
for r in range(144): I(f'v_mov_b32 v{r}, 0')
I(f's_mov_b32 s{sSL}, 0\ns_mov_b32 s{sIT}, 0')
def ffn_reads(u):
    buf = u & 1; out = []
    for a in range(3):
        d = XF + 12*buf + 4*a
        out.append(f'ds_read_b128 v[{d}:{d+3}], v{XA+u} offset:{a*4096}')
    for b in range(3):
        d = WF + 12*buf + 4*b
        for s_ in range(2):
            out.append(f'ds_read_b64_tr_b16 v[{d+2*s_}:{d+2*s_+1}], v{WA} offset:{(16*u+4*s_)*192 + b*32}')
    return out
stamp(1)
I('s_barrier')
stamp(2)
for r in ffn_reads(0): I(r)
k.label('L_FLOOP')
m0_ = k.mark()
for u in range(4):
    I('s_waitcnt lgkmcnt(0)')
    rd = ffn_reads((u + 1) & 3)
    first = 0
    if u == 3: first = 2
    n = 0
    for a in range(3):
        for b in range(3):
            ac = (a*3 + b) * 16; x = XF + 12*(u & 1) + 4*a; w = WF + 12*(u & 1) + 4*b
            I(f'v_mfma_f32_32x32x16_bf16 v[{ac}:{ac+15}], v[{w}:{w+3}], v[{x}:{x+3}], v[{ac}:{ac+15}]')
            if u == 3 and n == 0:
                next_slot()
                for j in range(4): I(f'v_add_u32 v{XA+j}, s{sSL}, v{XAb+j}')
            if u == 3 and n == 1:
                I(f'v_add_u32 v{WA}, s{sSL}, v{WAb}\ns_add_u32 s{sIT}, s{sIT}, 1\ns_barrier')
            if n >= first - (1 if u == 3 else 0):
                for _ in range(2):
                    if rd: I(rd.pop(0))
            n += 1
    assert not rd
I(f's_cmp_lt_u32 s{sIT}, 8\ns_cbranch_scc1 L_FLOOP')
k.check_backedge(m0_)
stamp(3)
k.c('---- FFN epilogue')
ST, CSB, EE, OUTR = 144, 156, 188, 196
VA_ = 204
I(f"""s_lshr_b32 s{t}, s{sWAVE}, 1
s_and_b32 s{t+1}, s{sWAVE}, 1
s_mul_i32 s{t+2}, s{t}, {96*16}
s_add_u32 s{t+2}, s{t+2}, {L_AOS}
v_and_b32 v{VA_}, 31, v{VLANE}
v_lshlrev_b32 v{VA_}, 4, v{VA_}
v_add_u32 v{VA_}, s{t+2}, v{VA_}
s_mul_i32 s{t+2}, s{t+1}, {48*4}
s_add_u32 s{t+2}, s{t+2}, {L_CS}
v_lshrrev_b32 v{VA_+1}, 5, v{VLANE}
v_lshlrev_b32 v{VA_+1}, 4, v{VA_+1}
v_add_u32 v{VA_+1}, s{t+2}, v{VA_+1}
v_lshlrev_b32 v{VA_+2}, 4, v{VLANE}
s_waitcnt lgkmcnt(0)""")
for a in range(3): I(f'ds_read_b128 v[{ST+4*a}:{ST+4*a+3}], v{VA_} offset:{a*512}')
def cs_reads(b):
    d = CSB + 16*(b & 1)
    for m in range(2):
        for i2 in range(2):
            I(f'ds_read_b128 v[{d+8*m+4*i2}:{d+8*m+4*i2+3}], v{VA_+1} offset:{m*512 + b*64 + i2*32}')
cs_reads(0)
I(f"""s_mul_i32 s{t+4}, s{sRB}, 6
s_mul_i32 s{t+2}, s{t}, 3
s_add_u32 s{t+4}, s{t+4}, s{t+2}
s_mul_i32 s{t+4}, s{t+4}, 118
s_mul_i32 s{t+5}, s{sCOL}, 6
s_mul_i32 s{t+2}, s{t+1}, 3
s_add_u32 s{t+5}, s{t+5}, s{t+2}
s_add_u32 s{t+4}, s{t+4}, s{t+5}
s_add_u32 s{t+4}, s{t+4}, 32
s_lshl_b32 s{t+4}, s{t+4}, 10""")
tile = 0
for b in range(3):
    if b < 2: cs_reads(b + 1)
    I(f's_waitcnt lgkmcnt({4 if b < 2 else 0})')
    cg_ = CSB + 16*(b & 1); cu_ = cg_ + 8
    I(f's_add_u32 s{t+6}, s{t+5}, {b}\ns_add_u32 s{t+7}, s{t+4}, {b*1024}\ns_cmp_lt_u32 s{t+6}, 86\ns_cselect_b32 s{t+7}, s{t+7}, {OOB}')
    for a in range(3):
        G = (a*3 + b) * 16; U = G + 8; s0 = ST + 4*a; o = OUTR + 4*(tile & 1)
        P = lambda r, p: f'v[{r+2*p}:{r+2*p+1}]'
        for p in range(4): I(f'v_pk_fma_f32 {P(G,p)}, {P(cg_,p)}, v[{s0}:{s0+1}], {P(G,p)} op_sel_hi:[1,0,1] neg_lo:[0,1,0] neg_hi:[0,1,0]')
        for p in range(4): I(f'v_pk_mul_f32 {P(EE,p)}, {P(G,p)}, v[{s0+2}:{s0+3}] op_sel:[0,1] op_sel_hi:[1,1]')
        for p in range(4): I(f'v_pk_fma_f32 {P(U,p)}, {P(cu_,p)}, v[{s0}:{s0+1}], {P(U,p)} op_sel_hi:[1,0,1] neg_lo:[0,1,0] neg_hi:[0,1,0]')
        for e in range(8): I(f'v_exp_f32 v{EE+e}, v{EE+e}')
        for p in range(4): I(f'v_pk_mul_f32 {P(U,p)}, {P(U,p)}, {P(G,p)}')
        for p in range(4): I(f'v_pk_fma_f32 {P(EE,p)}, {P(EE,p)}, v[{s0+2}:{s0+3}], v[{s0+2}:{s0+3}] op_sel_hi:[1,0,0]')
        for e in range(8): I(f'v_rcp_f32 v{EE+e}, v{EE+e}')
        for p in range(4): I(f'v_pk_mul_f32 {P(U,p)}, {P(U,p)}, {P(EE,p)}')
        for p in range(4): I(f'v_cvt_pk_bf16_f32 v{o+p}, v{U+2*p}, v{U+2*p+1}')
        I(f'buffer_store_dwordx4 v[{o}:{o+3}], v{VA_+2}, {srd(SAF)}, s{t+7} offen sc1')
        if a < 2: I(f's_add_u32 s{t+7}, s{t+7}, {118*1024}')
        tile += 1
publish_flag()

k.label('L_CQ')
k.ins.clear(); k.vm_reset()
k.c('---- C QKV')
QA, KA, VA = 0, 48, 100
XS, XD, WQ = 152, 196, 212
XAb, XA, WAb, WA = 236, 238, 240, 241
I(f"""v_and_b32 v160, 15, v{VLANE}
v_bfe_u32 v161, v{VLANE}, 1, 3
v_lshrrev_b32 v162, 4, v{VLANE}
v_xor_b32 v161, v161, v162
v_lshlrev_b32 v163, 7, v160
v_lshl_add_u32 v{XAb}, v161, 4, v163
v_xor_b32 v{XAb+1}, 64, v{XAb}
v_mov_b32 v{XA}, v{XAb}
v_mov_b32 v{XA+1}, v{XAb+1}
v_bfe_u32 v163, v{VLANE}, 2, 2
v_lshl_add_u32 v163, v162, 3, v163
v_lshlrev_b32 v163, 7, v163
v_bfe_u32 v164, v{VLANE}, 3, 1
v_and_b32 v165, 1, v162
v_lshl_or_b32 v164, v165, 1, v164
v_xor_b32 v164, s{sWAVE}, v164
v_lshl_add_u32 v163, v164, 5, v163
v_and_b32 v164, 3, v{VLANE}
v_lshl_add_u32 v163, v164, 3, v163
v_add_u32 v{WAb}, 26624, v163
v_mov_b32 v{WA}, v{WAb}""")
for r in range(152): I(f'v_mov_b32 v{r}, 0')
I(f's_mov_b32 s{sSL}, 0\ns_mov_b32 s{sIT}, 0')
lg = []
def xreg(tau, j): return XS + 4*tau if tau < 11 else XD + 8*(j & 1) + 4*(tau - 11)
def rd_x(tau, j):
    d = xreg(tau, j); I(f'ds_read_b128 v[{d}:{d+3}], v{XA+j} offset:{tau*2048}'); lg.append(('x', tau, j))
def rd_w(m, s_, j):
    d = WQ + 12*j + 4*m + 2*s_; I(f'ds_read_b64_tr_b16 v[{d}:{d+1}], v{WA} offset:{m*8192 + (32*j+4*s_)*128}'); lg.append(('w', m, s_, j))
def lg_wait(tags):
    idx = max((i for i, x in enumerate(lg) if x in tags), default=None)
    if idx is None: return
    n = min(15, len(lg) - 1 - idx)
    I(f's_waitcnt lgkmcnt({n})')
    del lg[:len(lg) - n]
def sched(tau):
    r = []
    if tau < 11: r.append(('x', tau))
    extra = {1: [('w',1,0),('w',1,1)], 2: [('w',2,0),('w',2,1)], 3: [('w',0,0),('w',0,1)], 4: [('x',11)], 5: [('x',12)]}
    return r + extra.get(tau, [])
def do_reads(lst, j):
    for x in lst:
        if x[0] == 'x': rd_x(x[1], j)
        else: rd_w(x[1], x[2], j)
stamp(1)
I('s_barrier')
stamp(2)
for tau in range(13): do_reads(sched(tau), 0)
entry = list(lg)
k.label('L_QLOOP')
m0_ = k.mark()
for j in range(2):
    for tau in range(13):
        if j == 1 and tau == 0:
            I('s_waitcnt lgkmcnt(0)'); lg.clear()
        else:
            lg_wait([('x', tau, j)] + ([('w',1,0,j),('w',1,1,j),('w',2,0,j),('w',2,1,j)] if tau == 0 else []) + ([('w',0,0,j),('w',0,1,j)] if tau == 1 else []))
        x = xreg(tau, j); w = WQ + 12*j
        X_ = f'v[{x}:{x+3}]'
        I(f'v_mfma_f32_16x16x32_bf16 v[{KA+4*tau}:{KA+4*tau+3}], v[{w+4}:{w+7}], {X_}, v[{KA+4*tau}:{KA+4*tau+3}]')
        if j == 1 and tau == 0:
            next_slot()
            I(f'v_add_u32 v{XA}, s{sSL}, v{XAb}\nv_add_u32 v{WA}, s{sSL}, v{WAb}')
        I(f'v_mfma_f32_16x16x32_bf16 v[{VA+4*tau}:{VA+4*tau+3}], {X_}, v[{w+8}:{w+11}], v[{VA+4*tau}:{VA+4*tau+3}]')
        if j == 1 and tau == 0:
            I(f'v_add_u32 v{XA+1}, s{sSL}, v{XAb+1}\ns_add_u32 s{sIT}, s{sIT}, 1\ns_barrier')
        if tau >= 1:
            q = QA + 4*(tau - 1)
            I(f'v_mfma_f32_16x16x32_bf16 v[{q}:{q+3}], v[{w}:{w+3}], {X_}, v[{q}:{q+3}]')
        do_reads(sched(tau), 1 - j)
assert lg == entry, (lg, entry)
I(f's_cmp_lt_u32 s{sIT}, 8\ns_cbranch_scc1 L_QLOOP')
k.check_backedge(m0_)
stamp(3)
k.c('---- QKV epilogue (attention)')
KB, VB, QB = 152, 178, 204
AS, SMR, CSQ, CSK, CSV = 208, 216, 224, 228, 232
SEL, ONES, VAD = 234, 238, 242
sPAR, sOA, sOB, sVA_, sVB_ = sM, sM+2, sM+4, sM+6, sM+8
I(f"""s_waitcnt lgkmcnt(0)
v_and_b32 v246, 15, v{VLANE}
v_lshrrev_b32 v247, 4, v{VLANE}
v_lshlrev_b32 v{VAD}, 4, v246
v_add_u32 v{VAD}, {L_AOS}, v{VAD}
v_lshlrev_b32 v{VAD+1}, 4, v247
s_lshl_b32 s{t}, s{sWAVE}, 6
s_add_u32 s{t}, s{t}, {L_CS}
v_add_u32 v{VAD+2}, s{t}, v{VAD+1}
v_add_u32 v{VAD+1}, {L_SM}, v{VAD+1}
v_lshlrev_b32 v248, 2, v246
v_add_u32 v248, s{t}, v248
ds_read_b128 v[{CSQ}:{CSQ+3}], v{VAD+2}
ds_read_b128 v[{CSK}:{CSK+3}], v{VAD+2} offset:256
ds_read_b32 v{CSV}, v248 offset:512
v_lshlrev_b32 v{VAD+3}, 4, v{VLANE}
v_and_b32 v248, 1, v{VLANE}
v_cmp_eq_u32 s[{sPAR}:{sPAR+1}], 1, v248
v_lshl_add_u32 v249, v247, 2, v248
v_cmp_le_u32 s[{sOA}:{sOA+1}], v249, v246
v_add_u32 v249, 2, v249
v_cmp_le_u32 s[{sOB}:{sOB+1}], v249, v246
s_cmp_eq_u32 s{sRB}, 0
s_cselect_b64 s[{sVA_}:{sVA_+1}], s[{sOA}:{sOA+1}], -1
s_cselect_b64 s[{sVB_}:{sVB_+1}], s[{sOB}:{sOB+1}], -1
v_mov_b32 v246, 0x0c0c0100
v_mov_b32 v247, 0x01000c0c
v_cndmask_b32 v246, v246, v247, s[{sPAR}:{sPAR+1}]
v_mov_b32 v247, 0x0c0c0302
v_mov_b32 v248, 0x03020c0c
v_cndmask_b32 v247, v247, v248, s[{sPAR}:{sPAR+1}]
v_mov_b32 v248, 0x0c0c0c0c
v_cndmask_b32 v{SEL}, v246, v248, s[{sOA}:{sOA+1}]
v_cndmask_b32 v{SEL+1}, v247, v248, s[{sOB}:{sOB+1}]
v_cndmask_b32 v{SEL+2}, v248, v246, s[{sOA}:{sOA+1}]
v_cndmask_b32 v{SEL+3}, v248, v247, s[{sOB}:{sOB+1}]""")
for i in range(4): I(f'v_mov_b32 v{ONES+i}, 0x3f803f80')
I(f"""s_mul_i32 s{t+4}, s{sRB}, {6*118}
s_sub_u32 s{t+5}, s{sCOL}, 15
s_lshl_b32 s{t+5}, s{t+5}, 2
s_add_u32 s{t+4}, s{t+4}, s{t+5}
s_add_u32 s{t+4}, s{t+4}, s{sWAVE}
s_lshl_b32 s{t+4}, s{t+4}, 10""")
NEG = 'neg_lo:[0,1,0] neg_hi:[0,1,0]'
def st_reads(tau):
    a = AS + 4*(tau & 1)
    I(f'ds_read_b128 v[{a}:{a+3}], v{VAD} offset:{tau*256}')
def smr_reads(tau):
    I(f'ds_read_b128 v[{SMR}:{SMR+3}], v{VAD+1} offset:{tau*64}\nds_read_b128 v[{SMR+4}:{SMR+7}], v{VAD+1} offset:{1024+tau*64}')
st_reads(0); smr_reads(0)
for tau in range(13):
    a = AS + 4*(tau & 1)
    if tau < 12: st_reads(tau + 1)
    I(f's_waitcnt lgkmcnt({1 if tau < 12 else 0})')
    Kc, Vc = KA + 4*tau, VA + 4*tau
    for p in range(2): I(f'v_pk_fma_f32 v[{Vc+2*p}:{Vc+2*p+1}], v[{SMR+2*p}:{SMR+2*p+1}], v[{CSV}:{CSV+1}], v[{Vc+2*p}:{Vc+2*p+1}] op_sel_hi:[1,0,1] {NEG}')
    for p in range(2): I(f'v_pk_fma_f32 v[{Kc+2*p}:{Kc+2*p+1}], v[{CSK+2*p}:{CSK+2*p+1}], v[{a}:{a+1}], v[{Kc+2*p}:{Kc+2*p+1}] op_sel_hi:[1,0,1] {NEG}')
    for p in range(2): I(f'v_pk_mul_f32 v[{Vc+2*p}:{Vc+2*p+1}], v[{Vc+2*p}:{Vc+2*p+1}], v[{SMR+4+2*p}:{SMR+4+2*p+1}]')
    if tau < 12: smr_reads(tau + 1)
    for p in range(2): I(f'v_pk_mul_f32 v[{Kc+2*p}:{Kc+2*p+1}], v[{Kc+2*p}:{Kc+2*p+1}], v[{a}:{a+1}] op_sel:[0,1] op_sel_hi:[1,1]')
    if tau >= 1:
        Qc = QA + 4*(tau - 1)
        for p in range(2): I(f'v_pk_fma_f32 v[{Qc+2*p}:{Qc+2*p+1}], v[{CSQ+2*p}:{CSQ+2*p+1}], v[{a}:{a+1}], v[{Qc+2*p}:{Qc+2*p+1}] op_sel_hi:[1,0,1] {NEG}')
    for p in range(2): I(f'v_cvt_pk_bf16_f32 v{VB+2*tau+p}, v{Vc+2*p}, v{Vc+2*p+1}')
    for p in range(2): I(f'v_cvt_pk_bf16_f32 v{KB+2*tau+p}, v{Kc+2*p}, v{Kc+2*p+1}')
    if tau >= 1:
        for p in range(2): I(f'v_cvt_pk_bf16_f32 v{Qc+p}, v{Qc+2*p}, v{Qc+2*p+1}')
        I(f'v_mov_b32 v{Qc+2}, v{a+3}')
for g in range(3):
    ts = list(range(4*g, 4*g + 4))
    def SO(i): return 48 + 24*i
    def SP(i): return SO(i) + 4
    def PP(i): return SO(i) + 8
    def OO(i): return SO(i) + 12
    def LL(i): return SO(i) + 16
    def TT(i): return SO(i) + 20
    for i, tq in enumerate(ts):
        q = QA + 4*tq; tau = tq + 1
        I(f'v_mfma_f32_16x16x16_bf16 v[{SO(i)}:{SO(i)+3}], v[{KB+2*tau}:{KB+2*tau+1}], v[{q}:{q+1}], 0')
        I(f'v_mfma_f32_16x16x16_bf16 v[{SP(i)}:{SP(i)+3}], v[{KB+2*tau-2}:{KB+2*tau-1}], v[{q}:{q+1}], 0')
    par = f's[{sPAR}:{sPAR+1}]'
    def each(fmt):
        for i, tq in enumerate(ts): I(fmt(i, tq))
    each(lambda i, tq: f'v_cndmask_b32 v{SO(i)}, v{SO(i)}, v{SO(i)+1}, {par}\nv_cndmask_b32 v{SO(i)+2}, v{SO(i)+2}, v{SO(i)+3}, {par}\n'
                       f'v_cndmask_b32 v{SP(i)}, v{SP(i)}, v{SP(i)+1}, {par}\nv_cndmask_b32 v{SP(i)+2}, v{SP(i)+2}, v{SP(i)+3}, {par}')
    each(lambda i, tq: f'v_cndmask_b32 v{SO(i)}, v{SP(i)}, v{SO(i)}, s[{sOA}:{sOA+1}]\nv_cndmask_b32 v{SO(i)+1}, v{SP(i)+2}, v{SO(i)+2}, s[{sOB}:{sOB+1}]')
    if g == 0:
        I(f'v_mov_b32 v{TT(0)}, {f32(-1e30)}\nv_cndmask_b32 v{SO(0)}, v{TT(0)}, v{SO(0)}, s[{sVA_}:{sVA_+1}]\nv_cndmask_b32 v{SO(0)+1}, v{TT(0)}, v{SO(0)+1}, s[{sVB_}:{sVB_+1}]')
    each(lambda i, tq: f'v_max_f32 v{TT(i)}, v{SO(i)}, v{SO(i)+1}\nv_max_f32 v{TT(i)+1}, v{SO(i)}, v{SO(i)+1}')
    each(lambda i, tq: f'v_permlane32_swap_b32 v{TT(i)}, v{TT(i)+1}')
    each(lambda i, tq: f'v_max_f32 v{TT(i)+2}, v{TT(i)}, v{TT(i)+1}\nv_max_f32 v{TT(i)+3}, v{TT(i)}, v{TT(i)+1}')
    each(lambda i, tq: f'v_permlane16_swap_b32 v{TT(i)+2}, v{TT(i)+3}')
    each(lambda i, tq: f'v_max_f32 v{TT(i)}, v{TT(i)+2}, v{TT(i)+3}')
    each(lambda i, tq: f'v_sub_f32 v{SO(i)}, v{SO(i)}, v{TT(i)}\nv_sub_f32 v{SO(i)+1}, v{SO(i)+1}, v{TT(i)}')
    each(lambda i, tq: f'v_mul_f32 v{SO(i)}, v{SO(i)}, v{QA+4*tq+2}\nv_mul_f32 v{SO(i)+1}, v{SO(i)+1}, v{QA+4*tq+2}')
    each(lambda i, tq: f'v_exp_f32 v{SO(i)}, v{SO(i)}\nv_exp_f32 v{SO(i)+1}, v{SO(i)+1}')
    each(lambda i, tq: f'v_cvt_pk_bf16_f32 v{TT(i)}, v{SO(i)}, v{SO(i)+1}')
    each(lambda i, tq: '\n'.join(f'v_perm_b32 v{PP(i)+e}, v{TT(i)}, v{TT(i)}, v{SEL+e}' for e in range(4)))
    each(lambda i, tq: f'v_mfma_f32_16x16x32_bf16 v[{LL(i)}:{LL(i)+3}], v[{ONES}:{ONES+3}], v[{PP(i)}:{PP(i)+3}], 0\n'
                       f'v_mfma_f32_16x16x32_bf16 v[{OO(i)}:{OO(i)+3}], v[{VB+2*tq}:{VB+2*tq+3}], v[{PP(i)}:{PP(i)+3}], 0')
    each(lambda i, tq: f'v_rcp_f32 v{TT(i)}, v{LL(i)}')
    each(lambda i, tq: '\n'.join(f'v_pk_mul_f32 v[{OO(i)+2*p}:{OO(i)+2*p+1}], v[{OO(i)+2*p}:{OO(i)+2*p+1}], v[{TT(i)}:{TT(i)+1}] op_sel_hi:[1,0]' for p in range(2)))
    for pr in range(2):
        i0, i1 = 2*pr, 2*pr + 1; o = SP(i0)
        I(f'v_cvt_pk_bf16_f32 v{o}, v{OO(i0)}, v{OO(i0)+1}\nv_cvt_pk_bf16_f32 v{o+1}, v{OO(i0)+2}, v{OO(i0)+3}\n'
          f'v_cvt_pk_bf16_f32 v{o+2}, v{OO(i1)}, v{OO(i1)+1}\nv_cvt_pk_bf16_f32 v{o+3}, v{OO(i1)+2}, v{OO(i1)+3}')
    for pr in range(2):
        o = SP(2*pr)
        I(f'v_permlane16_swap_b32 v{o}, v{o+2}\nv_permlane16_swap_b32 v{o+1}, v{o+3}')
    for pr in range(2):
        o = SP(2*pr)
        I(f'buffer_store_dwordx4 v[{o}:{o+3}], v{VAD+3}, {srd(SAF)}, s{t+4} offen sc1\ns_add_u32 s{t+4}, s{t+4}, {118*1024}')
publish_flag()
k.label('L_CODE_END')
I('s_endpgm')

hdr = open('cdna_kernels/' + NAME + '.s.ref').read().split('; Override launch')[0]
txt = hdr + f"""; @launch grid=(256,1,1) block=(512,1,1) lds=163840
.amdgcn_target "amdgcn-amd-amdhsa--gfx950"
.text
.globl {NAME}_kernel
.p2align 8
.type {NAME}_kernel,@function
{NAME}_kernel:
""" + k.text() + f""".section .rodata,"a"
.p2align 6
.amdhsa_kernel {NAME}_kernel
  .amdhsa_next_free_vgpr 256
  .amdhsa_next_free_sgpr 102
  .amdhsa_accum_offset 256
  .amdhsa_group_segment_fixed_size 0
  .amdhsa_kernarg_size 80
  .amdhsa_user_sgpr_count 2
  .amdhsa_user_sgpr_kernarg_segment_ptr 1
  .amdhsa_system_sgpr_workgroup_id_x 1
.end_amdhsa_kernel
"""
open(sys.argv[1], 'w').write(txt)
print('written', sys.argv[1], 'lines', txt.count('\n'), 'nops', k.nops)
```

```python
import sys, os
from asmlib import K

NAME = "recurrent_scan__sliding_local_dilated__swiglu_ffn__prompt"
OPT = dict(diag=0, nt_x=0, nt_w=0, nt_b2=0, touch_b2=1, rot=4)
for a in sys.argv[2:]:
    k_, v_ = a.split('='); OPT[k_] = int(v_)

SLOT = 51200
MISC = 155648
L_AOS, L_SM, L_SR, L_CS, L_SCR = MISC, MISC + 4096, MISC + 5120, MISC + 6144, MISC + 7168
L_NONCE = L_AOS + 4080
AF_BYTES = 64 * 118 * 1024
W_RS, W_CSP, W_FL, W_DIAG = 0x800000, 0x810000, 0x880000, 0x900000
WS_REC = 0x1000000
OOB = 0x7f000000
LOG2E = 1.4426950408889634
import struct
def f32(x): return '0x%08x' % struct.unpack('<I', struct.pack('<f', x))[0]

SX, SWA, SWB, SWS, SAF, SW2, SSL, SOUT = 24, 28, 32, 36, 40, 44, 48, 52
sWAVE, sRB, sCOL, sISQ, sH, sRB2, sCB2, sSLOTID = 56, 57, 58, 59, 60, 61, 62, 63
sN = 64
sT = 66
sLW = 80
sKWS, sC, sKW, sX7M, sX7S, sPOS = 86, 87, 88, 89, 90, 91
sNV, sBROW, sABASE, sLB2 = 92, 93, 94, 95
sST = 96
sM = 80
VLANE, VDIAG = 254, 255
def srd(i): return f's[{i}:{i+3}]'

k = K()
I = k.I
def stamp(i):
    if not OPT['diag']: return
    I(f's_memrealtime s[{sST}:{sST+1}]\ns_memtime s[{sST+2}:{sST+3}]\ns_waitcnt lgkmcnt(0)\nv_writelane_b32 v{VDIAG}, s{sST}, {i}\nv_writelane_b32 v{VDIAG}, s{sST+2}, {i+32}')

def mk_srd(d, p, rec):
    I(f's_mov_b32 s{d}, s{p}\ns_mov_b32 s{d+1}, s{p+1}\ns_mov_b32 s{d+2}, {rec}\ns_mov_b32 s{d+3}, 0x20000')

lblc = [0]
def newlbl(p):
    lblc[0] += 1; return f'L_{p}_{lblc[0]}'

def nonce_poll():
    L = newlbl('np'); D = newlbl('npd')
    I(f's_mov_b32 s{sT}, 0')
    k.label(L)
    I(f"""s_load_dwordx2 s[{sN}:{sN+1}], s[20:21], 0 glc
s_add_u32 s{sT}, s{sT}, 1
s_waitcnt lgkmcnt(0)
s_cmp_lg_u64 s[{sN}:{sN+1}], 0
s_cbranch_scc1 {D}
s_sleep 2
s_cmp_lt_u32 s{sT}, 0x40000
s_cbranch_scc1 {L}""")
    k.label(D)

k.label('KSTART')
I(f"""s_cmp_ge_u32 s2, 256
s_cbranch_scc1 L_END
s_load_dwordx16 s[4:19], s[0:1], 0
s_load_dwordx4 s[20:23], s[0:1], 64
v_lshrrev_b32 v1, 6, v0
v_and_b32 v{VLANE}, 63, v0
v_readfirstlane_b32 s{sWAVE}, v1""")
if OPT['diag']: I(f'v_mov_b32 v{VDIAG}, 0')
T0 = [18,19,20,4,5,10,31,0]; T1 = [21,22,11,16,17,31,31,0]
def pk(b): return '0x%08x' % (b[0] | b[1] << 8 | b[2] << 16 | b[3] << 24)
t = sT
I(f"""s_and_b32 s{t}, s2, 7
s_lshr_b32 s{sSLOTID}, s2, 3
s_and_b32 s{t+1}, s{t}, 1
s_lshr_b32 s{t+2}, s{t}, 1
s_lshl_b32 s{sRB2}, s{t}, 2
s_lshr_b32 s{t+3}, s{sSLOTID}, 3
s_add_u32 s{sRB2}, s{sRB2}, s{t+3}
s_and_b32 s{sCB2}, s{sSLOTID}, 7
s_mul_i32 s{t+3}, s{sSLOTID}, 52
s_lshr_b32 s{t+3}, s{t+3}, 8
s_mul_i32 s{t+4}, s{t+3}, 5
s_sub_u32 s{t+4}, s{sSLOTID}, s{t+4}
s_mul_i32 s{t+5}, s{t+1}, 6
s_add_u32 s{sRB}, s{t+4}, s{t+5}
s_mul_i32 s{t+5}, s{t+2}, 6
s_add_u32 s{sCOL}, s{t+5}, s{t+3}
s_lshl_b32 s{t+6}, s{t+1}, 1
s_add_u32 s{t+5}, s{t+5}, s{t+6}
s_add_u32 s{t+5}, s{t+5}, s{sSLOTID}
s_sub_u32 s{t+5}, s{t+5}, 30
s_cmp_eq_u32 s{t+1}, 0
s_mov_b32 s{t+6}, {pk(T1[:4])}
s_mov_b32 s{t+7}, {pk(T1[4:])}
s_cmov_b32 s{t+6}, {pk(T0[:4])}
s_cmov_b32 s{t+7}, {pk(T0[4:])}""")
I(f"""s_sub_u32 s{t+8}, s{sSLOTID}, 25
s_lshl_b32 s{t+8}, s{t+8}, 3
s_lshr_b64 s[{t+6}:{t+7}], s[{t+6}:{t+7}], s{t+8}
s_and_b32 s{t+6}, s{t+6}, 0xff
s_cmp_eq_u32 s{t+2}, 3
s_cselect_b32 s{t+5}, s{t+6}, s{t+5}
s_cselect_b32 s{t+7}, 25, 30
s_cmp_ge_u32 s{sSLOTID}, s{t+7}
s_cselect_b32 s{sCOL}, s{t+5}, s{sCOL}
s_cselect_b32 s{sRB}, 5, s{sRB}
s_cmp_eq_u32 s{sCOL}, 31
s_cselect_b32 s{sCOL}, 0, s{sCOL}
s_cselect_b32 s{sRB}, 11, s{sRB}
s_add_u32 s{t+5}, s{sCOL}, 1
s_cmp_ge_u32 s{sCOL}, 14
s_cselect_b32 s{sCOL}, s{t+5}, s{sCOL}
s_cmp_eq_u32 s{sCOL}, 23
s_cselect_b32 s{sCOL}, 14, s{sCOL}
s_cmp_ge_u32 s{sCOL}, 15
s_cselect_b32 s{sISQ}, 1, 0
s_and_b32 s{sH}, s{sWAVE}, 3
s_cmp_lt_u32 s{sWAVE}, 4
s_cbranch_scc1 L_C""")

vXo0, vXo1, vW, vL16, vB2 = 2, 3, 4, 7, 247
vT = 8
NTX = ' nt' if OPT['nt_x'] else ''
NTW = ' nt' if OPT['nt_w'] else ''
NTB = ' nt' if OPT['nt_b2'] else ''
k.c('---- H prologue')
I(f"""v_lshrrev_b32 v{vT}, 3, v{VLANE}
v_and_b32 v{vT+1}, 7, v{VLANE}
v_lshrrev_b32 v{vT+2}, 1, v{vT}
s_and_b32 s{t}, s{sH}, 1
s_lshl_b32 s{t+1}, s{t}, 2
v_or_b32 v{vT+3}, s{t+1}, v{vT+2}
v_xor_b32 v{vT+3}, v{vT+3}, v{vT+1}
v_lshlrev_b32 v{vT+3}, 4, v{vT+3}
s_mul_i32 s{t+2}, s{sRB}, 192
s_lshl_b32 s{t+3}, s{sISQ}, 4
s_sub_i32 s{t+2}, s{t+2}, s{t+3}
s_lshl_b32 s{t+3}, s{sH}, 3
s_add_i32 s{t+2}, s{t+2}, s{t+3}
s_add_i32 s{t+4}, s{t+2}, 32
v_add_u32 v{vXo1}, s{t+4}, v{vT}
v_lshlrev_b32 v{vXo1}, 10, v{vXo1}
v_add_u32 v{vXo1}, v{vXo1}, v{vT+3}
s_cmp_lt_i32 s{t+2}, 0
s_mov_b32 s{t+4}, -32768
s_cmov_b32 s{t+4}, 0x40000000
v_add_u32 v{vXo0}, s{t+4}, v{vXo1}
v_lshlrev_b32 v{vL16}, 4, v{VLANE}
s_cmp_eq_u32 s{sISQ}, 1
s_cbranch_scc1 L_HQ""")
I(f"""s_mul_i32 s{t+2}, s{sH}, {16*2752}
s_mul_i32 s{t+3}, s{sCOL}, 192
s_add_u32 s{t+2}, s{t+2}, s{t+3}
s_movk_i32 s{t+4}, 171
s_movk_i32 s{t+5}, 2752
s_sub_u32 s{t+6}, 2752, s{t+3}""")
for b in range(3):
    I(f"""v_add_u32 v{vT+4}, {64*b}, v{VLANE}
v_mul_u32_u24 v{vT+5}, s{t+4}, v{vT+4}
v_lshrrev_b32 v{vT+5}, 11, v{vT+5}
v_mul_u32_u24 v{vT+6}, 12, v{vT+5}
v_sub_u32 v{vT+6}, v{vT+4}, v{vT+6}
v_lshlrev_b32 v{vT+6}, 4, v{vT+6}
v_mad_u32_u24 v{vW+b}, v{vT+5}, s{t+5}, v{vT+6}
v_add_u32 v{vW+b}, s{t+2}, v{vW+b}
v_cmp_gt_u32 vcc, s{t+6}, v{vT+6}
v_mov_b32 v{vT+7}, {OOB}
v_cndmask_b32 v{vW+b}, v{vT+7}, v{vW+b}, vcc""")
I(f"""s_mul_i32 s{sLW}, s{sH}, 3072
s_add_u32 s{sLW}, s{sLW}, 24576
s_add_u32 s{sLW+1}, s{sLW}, 1024
s_add_u32 s{sLW+2}, s{sLW}, 2048
s_add_u32 s{sLW+3}, s{sLW}, 12320
s_add_u32 s{sLW+4}, s{sLW}, {12320+1024}
s_add_u32 s{sLW+5}, s{sLW}, {12320+2048}
s_mov_b32 s{sKWS}, {64*2752}
s_mov_b32 s{sC}, 0
s_mov_b32 s{sX7M}, {L_SCR}
s_mov_b32 s{sX7S}, {OOB}
s_waitcnt lgkmcnt(0)""")
mk_srd(SWA, 12, 512*2752); mk_srd(SWB, 14, 512*2752)
I('s_branch L_HJ')
k.label('L_HQ')
I(f"""v_and_b32 v{vT+4}, 1, v{vT+2}
s_lshl_b32 s{t+1}, s{t}, 1
v_or_b32 v{vT+4}, s{t+1}, v{vT+4}
v_lshlrev_b32 v{vT+4}, 1, v{vT+4}
v_xor_b32 v{vT+4}, v{vT+4}, v{vT+1}
v_lshlrev_b32 v{vT+4}, 4, v{vT+4}
s_movk_i32 s{t+5}, 3072
v_mad_u32_u24 v{vW}, v{vT}, s{t+5}, v{vT+4}
s_mul_i32 s{t+2}, s{sH}, {8*3072}
s_sub_u32 s{t+3}, s{sCOL}, 15
s_lshl_b32 s{t+3}, s{t+3}, 7
s_add_u32 s{t+2}, s{t+2}, s{t+3}
v_add_u32 v{vW}, s{t+2}, v{vW}
v_add_u32 v{vW+1}, 1024, v{vW}
v_add_u32 v{vW+2}, 2048, v{vW}
s_lshl_b32 s{sLW}, s{sH}, 10
s_add_u32 s{sLW}, s{sLW}, 26624
s_add_u32 s{sLW+1}, s{sLW}, 8192
s_add_u32 s{sLW+2}, s{sLW}, 16384
s_add_u32 s{sLW+3}, s{sLW}, 4096
s_add_u32 s{sLW+4}, s{sLW}, {4096+8192}
s_add_u32 s{sLW+5}, s{sLW}, {4096+16384}
s_mov_b32 s{sKWS}, {64*3072}
s_mov_b32 s{sC}, {32*3072}
s_lshl_b32 s{t+2}, s{sH}, 10
s_add_u32 s{t+2}, s{t+2}, {24*1024}
s_cmp_lt_u32 s{sH}, 2
s_cselect_b32 s{sX7M}, s{t+2}, {L_SCR}
s_mov_b32 s{sX7S}, {OOB}
s_cmov_b32 s{sX7S}, {5*32768}
s_waitcnt lgkmcnt(0)""")
mk_srd(SWA, 6, 512*3072); mk_srd(SWB, 6, 512*3072)
k.label('L_HJ')
mk_srd(SX, 4, 2048*1024)
I(f's_lshl_b32 s{t+10}, s{sH}, 10\ns_mov_b32 s{sKW}, 0\ns_cmp_eq_u32 s{sX7M}, {L_SCR}\ns_cselect_b32 s{t+11}, 0, 1')
sH1K, sX7R = t + 10, t + 11

def stage_dma(st):
    base = (st % 3) * SLOT
    tag = f'D{st}'
    for tt in range(6):
        I(f's_add_u32 m0, s{sH1K}, {base + tt*4096}')
        if tt == 0: I(f's_movk_i32 s{t}, {st*128}\nbuffer_load_dwordx4 v{vXo0}, {srd(SX)}, s{t} offen lds{NTX}', tag)
        else: I(f's_mov_b32 s{t}, {(tt-1)*32768 + st*128}\nbuffer_load_dwordx4 v{vXo1}, {srd(SX)}, s{t} offen lds{NTX}', tag)
    I(f"""s_mul_i32 s{t}, s{sX7R}, {base}
s_add_u32 m0, s{t}, s{sX7M}
s_add_u32 s{t}, s{sX7S}, {st*128}
buffer_load_dwordx4 v{vXo1}, {srd(SX)}, s{t} offen lds{NTX}""", tag)
    I(f's_add_u32 s{t+1}, s{sKW}, s{sC}')
    for i in range(6):
        I(f's_add_u32 m0, s{sLW+i}, {base}')
        if i == 0: I('s_nop 0')
        I(f'buffer_load_dwordx4 v{vW + i%3}, {srd(SWA if i < 3 else SWB)}, s{sKW if i < 3 else t+1} offen lds{NTW}', tag)
    I(f's_add_u32 s{sKW}, s{sKW}, s{sKWS}')

stamp(0)
stage_dma(0)
I(f"""s_getpc_b64 s[{t+2}:{t+3}]""")
k.label('L_PC')
I(f"""s_lshl_b32 s{t+4}, s{sSLOTID}, 10
v_and_b32 v{vT+4}, 7, v{VLANE}
v_lshlrev_b32 v{vT+4}, 7, v{vT+4}
v_add_u32 v{vT+4}, s{t+4}, v{vT+4}
v_min_u32 v{vT+4}, L_CODE_END-L_PC-4, v{vT+4}
global_load_dword v{vT+5}, v{vT+4}, s[{t+2}:{t+3}]""", 'CODE')
stage_dma(1)
stage_dma(2)
mk_srd(SWS, 22, WS_REC); mk_srd(SAF, 22, AF_BYTES)
vRD, vSD = 20, 32
vSO = 64
I(f"""s_mul_i32 s{t}, s{sRB}, 192
s_mul_i32 s{t+1}, s{sCOL}, 12
s_add_u32 s{t}, s{t}, s{t+1}
s_mul_i32 s{t+1}, s{sH}, 3
s_add_u32 s{t}, s{t}, s{t+1}
s_cmp_lt_u32 s{sCOL}, 16
s_cselect_b32 s{t+12}, s{t}, 0x100000
s_lshl_b32 s{t}, s{t+12}, 10""")
sROW = t + 12
for a in range(3):
    I(f'buffer_load_dwordx4 v[{vRD+4*a}:{vRD+4*a+3}], v{vL16}, {srd(SX)}, s{t} offen offset:{a*1024}{NTX}', 'SR')
I(f"""s_cmp_ge_u32 s{sH}, 2
s_cselect_b32 s{SSL}, s{SWB}, s{SWA}
s_cselect_b32 s{SSL+1}, s{SWB+1}, s{SWA+1}
s_mov_b32 s{SSL+2}, s{SWA+2}
s_mov_b32 s{SSL+3}, 0x20000
s_cmp_eq_u32 s{sISQ}, 1
s_movk_i32 s{t+1}, 2752
s_cmov_b32 s{t+1}, 3072
s_and_b32 s{t+2}, s{sH}, 1
s_lshl_b32 s{t+2}, s{t+2}, 7
s_mul_i32 s{t+3}, s{sCOL}, 192
s_add_u32 s{t+4}, s{t+3}, s{t+2}
s_add_u32 s{t+3}, s{t+3}, 192
s_min_u32 s{t+3}, s{t+3}, 2752
s_sub_u32 s{t+5}, s{sCOL}, 15
s_lshl_b32 s{t+5}, s{t+5}, 7
s_lshl_b32 s{t+6}, s{sH}, 10
s_add_u32 s{t+5}, s{t+5}, s{t+6}
s_cmp_eq_u32 s{sISQ}, 1
s_cselect_b32 s{t+4}, s{t+5}, s{t+4}
s_cselect_b32 s{t+3}, 3072, s{t+3}
v_lshlrev_b32 v{vT+4}, 4, v{vT+1}
v_add_u32 v{vT+4}, s{t+4}, v{vT+4}
v_cmp_gt_u32 vcc, s{t+3}, v{vT+4}
v_mad_u32_u24 v{vSO}, v{vT}, s{t+1}, v{vT+4}
v_mov_b32 v{vT+7}, {OOB}
v_cndmask_b32 v{vSO}, v{vT+7}, v{vSO}, vcc
s_mul_i32 s{t+2}, s{sRB}, s{sKWS}
s_cmp_lt_u32 s{sRB}, 8
s_cselect_b32 s{t+2}, s{t+2}, {OOB}
s_lshl_b32 s{t+1}, s{t+1}, 3""")
for a in range(8):
    I(f'buffer_load_dwordx4 v[{vSD+4*a}:{vSD+4*a+3}], v{vSO}, {srd(SSL)}, s{t+2} offen{NTW}', 'SC')
    if a < 7: I(f's_add_u32 s{t+2}, s{t+2}, s{t+1}')
I(f'v_mov_b32 v136, 0\nglobal_load_dwordx2 v[138:139], v136, s[20:21] sc1', 'NC')
def nonce_get():
    k.wait_vm('NC')
    L = newlbl('np'); D = newlbl('npd')
    I(f's_mov_b32 s{t+4}, 0')
    k.label(L)
    I(f"""v_readfirstlane_b32 s{sN}, v138
v_readfirstlane_b32 s{sN+1}, v139
s_add_u32 s{t+4}, s{t+4}, 1
s_cmp_lg_u64 s[{sN}:{sN+1}], 0
s_cbranch_scc1 {D}
s_sleep 8""")
    sv = list(k.vm)
    I(f"""global_load_dwordx2 v[138:139], v136, s[20:21] sc1
s_waitcnt vmcnt(0)
s_cmp_lt_u32 s{t+4}, 0x20000
s_cbranch_scc1 {L}""")
    k.vm = sv
    k.label(D)
def p2_params(kqreg):
    I(f"""s_cmp_eq_u32 s{kqreg}, 0
s_cselect_b32 s{SW2}, s8, s16
s_cselect_b32 s{SW2+1}, s9, s17
s_mov_b32 s{SW2+2}, {1376*1024}
s_cmov_b32 s{SW2+2}, {512*1024}
s_mov_b32 s{SW2+3}, 0x20000
s_cselect_b32 s{sNV}, 32, 29
s_cselect_b32 s{t}, 29, 0
s_mul_i32 s{sBROW}, s{kqreg}, 29
s_add_u32 s{sBROW}, s{sBROW}, s{t}
s_sub_u32 s{sBROW}, s{sBROW}, 29
s_cmp_eq_u32 s{kqreg}, 3
s_cselect_b32 s{sNV}, 28, s{sNV}
s_lshl_b32 s{sLB2}, s{kqreg}, 11""")
p2_params(sH)
I(f"""v_and_b32 v{vT+4}, 4, v{vT}
v_and_b32 v{vT+5}, 1, v{vT}
v_add_u32 v{vT+4}, v{vT+4}, v{vT+5}
v_bfe_u32 v{vT+5}, v{VLANE}, 2, 1
v_lshl_add_u32 v{vT+4}, v{vT+5}, 1, v{vT+4}
v_lshlrev_b32 v{vT+4}, 10, v{vT+4}
v_bfe_u32 v{vT+5}, v{vT}, 1, 1
v_lshl_add_u32 v{vT+4}, v{vT+5}, 6, v{vT+4}
v_and_b32 v{vT+5}, 3, v{VLANE}
v_lshl_add_u32 v{vT+4}, v{vT+5}, 4, v{vT+4}
s_lshl_b32 s{t}, s{sCB2}, 7
v_add_u32 v{vB2}, s{t}, v{vT+4}
s_mul_i32 s{sPOS}, s{sCB2}, {OPT['rot']}
s_and_b32 s{sPOS}, s{sPOS}, 31""")

SIGMA = [13,14,15,16,17,18, 0,1,2,3,4,5, 6, 7,8,9,10,11,12]
SIGMA += SIGMA[:13]
def b2_dma(i, tag):
    I(f"""s_add_u32 s{t}, s{sBROW}, s{sPOS}
s_lshl_b32 s{t}, s{t}, 14
s_cmp_lt_u32 s{sPOS}, s{sNV}
s_cselect_b32 s{t}, s{t}, {OOB}
s_add_u32 m0, s{sLB2}, {SIGMA[i]*8192}
s_add_u32 s{t+1}, s{t}, 8192
buffer_load_dwordx4 v{vB2}, {srd(SW2)}, s{t} offen lds{NTB}
s_add_u32 m0, s{sLB2}, {SIGMA[i]*8192 + 1024}
s_add_u32 s{sPOS}, s{sPOS}, 1
buffer_load_dwordx4 v{vB2}, {srd(SW2)}, s{t+1} offen lds{NTB}
s_and_b32 s{sPOS}, s{sPOS}, 31""", tag)

def row_stats():
    k.wait_vm('SR')
    vA = 66
    for a in range(3):
        for d in range(4):
            D = vRD + 4*a + d
            I(f'v_lshlrev_b32 v72, 16, v{D}\nv_and_b32 v73, 0xffff0000, v{D}')
            if d == 0:
                I(f'v_add_f32 v{vA+2*a}, v72, v73\nv_mul_f32 v{vA+2*a+1}, v72, v72\nv_fmac_f32 v{vA+2*a+1}, v73, v73')
            else:
                I(f'v_add_f32 v{vA+2*a}, v{vA+2*a}, v72\nv_fmac_f32 v{vA+2*a+1}, v72, v72\nv_add_f32 v{vA+2*a}, v{vA+2*a}, v73\nv_fmac_f32 v{vA+2*a+1}, v73, v73')
    for step in ('row_shr:1 row_mask:0xf bank_mask:0xf bound_ctrl:0', 'row_shr:2 row_mask:0xf bank_mask:0xf bound_ctrl:0',
                 'row_shr:4 row_mask:0xf bank_mask:0xf bound_ctrl:0', 'row_shr:8 row_mask:0xf bank_mask:0xf bound_ctrl:0',
                 'row_bcast:15 row_mask:0xa bank_mask:0xf', 'row_bcast:31 row_mask:0xc bank_mask:0xf'):
        for i in range(6): I(f'v_add_f32_dpp v{vA+i}, v{vA+i}, v{vA+i} {step}')
    I(f"""s_lshl_b32 s{t}, s{sROW}, 4
s_add_u32 s{t}, s{t}, {W_RS}
s_cmp_lt_u32 s{sROW}, 2048
s_cselect_b32 s{t}, s{t}, {OOB}
v_mov_b32 v74, {OOB}
v_cmp_eq_u32 vcc, 63, v{VLANE}
v_cndmask_b32 v74, v74, 0, vcc
s_mov_b32 s{t+1}, {f32(1/512)}
s_mov_b32 s{t+2}, {f32(1e-5)}""")
    for a in range(3):
        G = 76 + 4*a
        I(f"""v_mul_f32 v{G}, s{t+1}, v{vA+2*a}
v_mul_f32 v{G+1}, s{t+1}, v{vA+2*a+1}
v_fma_f32 v{G+1}, -v{G}, v{G}, v{G+1}
v_max_f32 v{G+1}, 0, v{G+1}
v_add_f32 v{G+1}, s{t+2}, v{G+1}
v_mov_b32 v{G+2}, s{sN}
v_mov_b32 v{G+3}, s{sN+1}
buffer_store_dwordx4 v[{G}:{G+3}], v74, {srd(SWS)}, s{t} offen offset:{16*a} sc1""", 'PUB')

def col_stats():
    k.wait_vm('SC')
    vA = 90
    for a in range(8):
        for d in range(4):
            D = vSD + 4*a + d
            if a == 0:
                I(f'v_lshlrev_b32 v{vA+2*d}, 16, v{D}\nv_and_b32 v{vA+2*d+1}, 0xffff0000, v{D}')
            else:
                I(f'v_lshlrev_b32 v72, 16, v{D}\nv_and_b32 v73, 0xffff0000, v{D}\nv_add_f32 v{vA+2*d}, v{vA+2*d}, v72\nv_add_f32 v{vA+2*d+1}, v{vA+2*d+1}, v73')
    for e in range(4): I(f'v_permlane32_swap_b32 v{vA+e}, v{vA+e+4}')
    for e in range(4): I(f'v_add_f32 v{vA+e}, v{vA+e}, v{vA+e+4}')
    for e in range(2): I(f'v_permlane16_swap_b32 v{vA+e}, v{vA+e+2}')
    for e in range(2): I(f'v_add_f32 v{vA+e}, v{vA+e}, v{vA+e+2}')
    for e in range(2): I(f'v_add_f32_dpp v{vA+8+e}, v{vA+e}, v{vA+e} row_ror:8 row_mask:0xf bank_mask:0xf')
    I(f"""v_mov_b32 v{vA+10}, s{sN}
v_mov_b32 v{vA+11}, s{sN+1}
v_lshrrev_b32 v72, 4, v{VLANE}
v_lshl_add_u32 v72, v{vT+1}, 2, v72
v_lshlrev_b32 v72, 4, v72
v_and_b32 v73, 8, v{VLANE}
v_cmp_eq_u32 vcc, 0, v73
v_mov_b32 v73, {OOB}
v_cndmask_b32 v72, v73, v72, vcc
s_lshl_b32 s{t}, s{sCOL}, 14
s_lshl_b32 s{t+1}, s{sRB}, 11
s_add_u32 s{t}, s{t}, s{t+1}
s_lshl_b32 s{t+1}, s{sH}, 9
s_add_u32 s{t}, s{t}, s{t+1}
s_add_u32 s{t}, s{t}, {W_CSP}
s_cmp_lt_u32 s{sRB}, 8
s_cselect_b32 s{t}, s{t}, {OOB}
buffer_store_dwordx4 v[{vA+8}:{vA+11}], v72, {srd(SWS)}, s{t} offen sc1""", 'PUB')

vCL = 104
def collect_setup():
    I(f"""s_and_b32 s{t}, s{sH}, 1
s_lshl_b32 s{t}, s{t}, 10
s_lshr_b32 s{t+1}, s{sH}, 1
s_lshl_b32 s{t+1}, s{t+1}, 13
s_add_u32 s{t}, s{t}, s{t+1}
s_lshl_b32 s{t+1}, s{sCOL}, 14
s_add_u32 s{t}, s{t}, s{t+1}
s_add_u32 s{t}, s{t}, {W_CSP}
v_add_u32 v124, s{t}, v{vL16}
s_lshl_b32 s{t}, s{sH}, 6
v_add_u32 v126, s{t}, v{VLANE}
s_mul_i32 s{t}, s{sRB}, 192
s_lshl_b32 s{t+1}, s{sISQ}, 4
s_sub_i32 s{t}, s{t}, s{t+1}
v_add_u32 v125, s{t}, v126
s_add_u32 s{t+1}, s{t+1}, 192
v_cmp_gt_u32 vcc, s{t+1}, v126
s_mov_b64 s[{t+2}:{t+3}], vcc
v_cmp_gt_u32 vcc, 2048, v125
s_and_b64 s[{t+8}:{t+9}], vcc, s[{t+2}:{t+3}]
v_lshlrev_b32 v125, 4, v125
v_add_u32 v125, {W_RS}, v125
v_mov_b32 v127, {OOB}
v_cndmask_b32 v125, v127, v125, s[{t+8}:{t+9}]""".replace('v_cmp_gt_u32 vcc, 2048, v125', 'v_mov_b32 v127, 2048\nv_cmp_gt_u32 vcc, v127, v125'))
sVAL = t + 8
def collect_loads(tag):
    for p in range(4):
        if p < 2: I(f'buffer_load_dwordx4 v[{vCL+4*p}:{vCL+4*p+3}], v124, {srd(SWS)}, 0 offen offset:{p*2048} sc1', tag)
        else: I(f's_movk_i32 s{t}, {p*2048}\nbuffer_load_dwordx4 v[{vCL+4*p}:{vCL+4*p+3}], v124, {srd(SWS)}, s{t} offen sc1', tag)
    I(f'buffer_load_dwordx4 v[{vCL+16}:{vCL+19}], v125, {srd(SWS)}, 0 offen sc1', tag)
def collect_check(ok):
    I(f"""v_cmp_eq_u64 vcc, s[{sN}:{sN+1}], v[{vCL+18}:{vCL+19}]
s_orn2_b64 s[{t+2}:{t+3}], vcc, s[{sVAL}:{sVAL+1}]""")
    for p in range(4):
        I(f"""v_cmp_eq_u64 vcc, s[{sN}:{sN+1}], v[{vCL+4*p+2}:{vCL+4*p+3}]
s_and_b64 s[{t+2}:{t+3}], s[{t+2}:{t+3}], vcc""")
    I(f's_cmp_eq_u64 s[{t+2}:{t+3}], -1\ns_cbranch_scc1 {ok}')
def collect_finish():
    k.wait_vm('CL')
    ok = newlbl('clok'); L = newlbl('clre')
    collect_check(ok)
    I(f's_mov_b32 s{t+4}, 0')
    k.label(L)
    sv = list(k.vm)
    I('s_sleep 4')
    collect_loads(None)
    I(f's_waitcnt vmcnt(0)\ns_add_u32 s{t+4}, s{t+4}, 1')
    collect_check(ok)
    I(f's_cmp_lt_u32 s{t+4}, 0x20000\ns_cbranch_scc1 {L}')
    k.vm = sv
    k.label(ok)
    I(f"""v_add_f32 v{vCL}, v{vCL}, v{vCL+4}
v_add_f32 v{vCL+1}, v{vCL+1}, v{vCL+5}
v_add_f32 v{vCL+8}, v{vCL+8}, v{vCL+12}
v_add_f32 v{vCL+9}, v{vCL+9}, v{vCL+13}
v_add_f32 v{vCL}, v{vCL}, v{vCL+8}
v_add_f32 v{vCL+1}, v{vCL+1}, v{vCL+9}
s_and_b32 s{t}, s{sH}, 1
s_lshl_b32 s{t}, s{t}, 9
s_add_u32 s{t}, s{t}, {L_CS}
v_lshlrev_b32 v127, 3, v{VLANE}
v_add_u32 v127, s{t}, v127""")
    R = vCL + 16
    I(f"""v_cndmask_b32 v{R}, 0, v{R}, s[{sVAL}:{sVAL+1}]
v_cndmask_b32 v{R+2}, 1.0, v{R+1}, s[{sVAL}:{sVAL+1}]
v_rsq_f32 v{R+1}, v{R+2}
s_cmp_eq_u32 s{sISQ}, 1
s_mov_b32 s{t}, {f32(-LOG2E)}
s_cmov_b32 s{t}, {f32(0.25*LOG2E)}
v_mul_f32 v{R+3}, s{t}, v{R+1}
v_lshlrev_b32 v128, 4, v126
v_add_u32 v128, {L_AOS}, v128
v_lshlrev_b32 v129, 2, v126
v_add_u32 v129, {L_SM}, v129
ds_write_b128 v128, v[{R}:{R+3}]
ds_write_b32 v129, v{R}
ds_write_b32 v129, v{R+1} offset:1024""")
    S = newlbl('csw')
    I(f's_cmp_ge_u32 s{sH}, 2\ns_cbranch_scc1 {S}\nds_write_b64 v127, v[{vCL}:{vCL+1}]')
    k.label(S)
def collect_add():
    I(f'v_mov_b32 v136, {L_NONCE}\nds_write_b64 v136, v[138:139]')
    S = newlbl('csa')
    I(f's_cmp_lt_u32 s{sH}, 2\ns_cbranch_scc1 {S}\nds_add_f32 v127, v{vCL}\nds_add_f32 v127, v{vCL+1} offset:4')
    k.label(S)

def b2_touch():
    I(f"""s_lshl_b32 s{t}, s{sSLOTID}, 2
s_add_u32 s{t}, s{t}, s{sH}
s_mul_i32 s{t}, s{t}, 43*256
v_lshlrev_b32 v130, 7, v{VLANE}
v_add_u32 v130, s{t}, v130""")
    mk_srd(SSL, 16, 1376*1024)
    I(f"""v_cmp_gt_u32 vcc, 22, v{VLANE}
v_add_u32 v131, 8192, v130
v_mov_b32 v132, {OOB}
v_cndmask_b32 v131, v132, v131, vcc
buffer_load_dword v133, v130, {srd(SSL)}, 0 offen{NTB}
buffer_load_dword v134, v131, {srd(SSL)}, 0 offen{NTB}""", 'TB')
    I(f"""s_lshl_b32 s{t}, s{sSLOTID}, 2
s_add_u32 s{t}, s{t}, s{sH}
s_lshl_b32 s{t}, s{t}, 12
v_and_b32 v130, 31, v{VLANE}
v_lshlrev_b32 v130, 7, v130
v_add_u32 v130, s{t}, v130""")
    mk_srd(SSL, 8, 512*1024)
    I(f'buffer_load_dword v135, v130, {srd(SSL)}, 0 offen{NTB}', 'TB')

def hbar(st, lg=None):
    stamp(9 + 2*st)
    k.wait_vm(f'D{st}', lg)
    stamp(10 + 2*st)
    I('s_barrier')

stamp(1)
hbar(0); stamp(2)
hbar(1); stage_dma(3); nonce_get(); row_stats()
hbar(2); stage_dma(4); col_stats()
hbar(3); stage_dma(5)
if OPT['touch_b2']: b2_touch()
collect_setup()
hbar(4); stage_dma(6)
hbar(5); stage_dma(7); collect_loads('CL')
hbar(6)
for i in range(0, 6): b2_dma(i, 'B2')
collect_finish()
hbar(7, 0)
for i in range(6, 12): b2_dma(i, 'B2')
collect_add()
I('s_waitcnt lgkmcnt(0)\ns_barrier')
stamp(3)
for i in range(12, 19): b2_dma(i, 'B2')
I('s_waitcnt vmcnt(0)')
k.vm_reset()
stamp(4)

k.label('L_P2')
ACC, BR, BD, AW, VA1, VA2, VL16, VXR = 0, 32, 136, 152, 240, 243, 246, 250
NAW = 22
k.c('---- phase 2 setup')
I(f"""s_lshr_b32 s{t+4}, s{sWAVE}, 2
s_lshl_b32 s{t+5}, s{sRB2}, 1
s_add_u32 s{t+5}, s{t+5}, s{t+4}
s_mul_i32 s{t+5}, s{t+5}, 118
s_add_u32 s{t+5}, s{t+5}, s{sBROW}
s_cmp_eq_u32 s{sH}, 0
s_cselect_b32 s{t+6}, 0, 32
s_add_u32 s{sABASE}, s{t+5}, s{t+6}
s_cmp_eq_u32 s{sH}, 0
s_cselect_b32 s{t+6}, 10, 9
s_movk_i32 s{t+7}, 1024
s_cmov_b32 s{t+7}, 512
v_lshrrev_b32 v1, 5, v{VLANE}
v_lshlrev_b32 v1, s{t+6}, v1
v_bfe_u32 v2, v{VLANE}, 2, 1
v_lshl_add_u32 v1, v2, 7, v1
v_bfe_u32 v2, v{VLANE}, 3, 1
v_lshl_add_u32 v1, v2, 6, v1
v_bfe_u32 v2, v{VLANE}, 4, 1
v_lshl_add_u32 v1, v2, 5, v1
v_and_b32 v2, 3, v{VLANE}
v_lshl_add_u32 v1, v2, 3, v1
v_add_u32 v{VA1}, s{sLB2}, v1
v_add_u32 v{VA1+1}, 0x10000, v{VA1}
v_add_u32 v{VA1+2}, 0x20000, v{VA1}
v_add_u32 v{VA2}, s{t+7}, v{VA1}
v_add_u32 v{VA2+1}, s{t+7}, v{VA1+1}
v_add_u32 v{VA2+2}, s{t+7}, v{VA1+2}
v_lshlrev_b32 v{VL16}, 4, v{VLANE}""")
VOO = 248
I(f"""s_lshl_b32 s{t}, s{sRB2}, 6
s_lshl_b32 s{t+1}, s{sWAVE}, 3
s_add_u32 s{t}, s{t}, s{t+1}
v_lshrrev_b32 v1, 3, v{VLANE}
v_add_u32 v1, s{t}, v1
v_lshlrev_b32 v1, 10, v1
v_and_b32 v2, 7, v{VLANE}
v_lshl_add_u32 v1, v2, 4, v1
s_lshl_b32 s{t}, s{sCB2}, 7
v_add_u32 v{VOO}, s{t}, v1
buffer_load_dwordx4 v[{VXR}:{VXR+3}], v{VOO}, {srd(SX)}, 0 offen""")
VP = AW
I(f"""s_mul_i32 s{t}, s{sRB2}, 86
s_lshr_b32 s{t}, s{t}, 8
s_mul_i32 s{t}, s{t}, 23
s_mov_b32 s{t+1}, 0x0904000f
s_mov_b32 s{t+2}, 0x05050407
s_lshl_b32 s{t+3}, s{sH}, 3
s_lshr_b32 s{t+1}, s{t+1}, s{t+3}
s_lshr_b32 s{t+2}, s{t+2}, s{t+3}
s_and_b32 s{t+1}, s{t+1}, 0xff
s_and_b32 s{t+2}, s{t+2}, 0xff
s_add_u32 s{t}, s{t}, s{t+1}
v_lshrrev_b32 v1, 2, v{VLANE}
v_min_u32 v1, s{t+2}, v1
v_add_u32 v1, s{t}, v1
v_lshlrev_b32 v1, 7, v1
v_and_b32 v2, 3, v{VLANE}
v_lshl_add_u32 v1, v2, 4, v1
v_add_u32 v{VP}, {W_FL}, v1
s_barrier""")
def tr_reads(i, dst):
    off = SIGMA[i] * 8192; r = off >> 16; off &= 0xffff
    for ct in range(2):
        I(f'ds_read_b64_tr_b16 v[{dst+4*ct}:{dst+4*ct+1}], v{VA1+r} offset:{off+ct*256}')
        I(f'ds_read_b64_tr_b16 v[{dst+4*ct+2}:{dst+4*ct+3}], v{VA2+r} offset:{off+ct*256}')
for i in range(13): tr_reads(i, BR + 8*i)
I('s_waitcnt lgkmcnt(0)\ns_barrier')
stamp(5)
I(f's_cmp_lt_u32 s{sWAVE}, 4\ns_cbranch_scc1 L_NOREFILL')
for i in range(19, 32): b2_dma(i, None)
k.label('L_NOREFILL')
I(f's_mov_b32 s{t+4}, 0')
k.label('L_POLL')
I(f"""buffer_load_dwordx2 v[{VP+2}:{VP+3}], v{VP}, {srd(SWS)}, 0 offen sc1
s_add_u32 s{t+4}, s{t+4}, 1
s_waitcnt vmcnt(0)
v_cmp_eq_u64 vcc, s[{sN}:{sN+1}], v[{VP+2}:{VP+3}]
s_cmp_eq_u64 vcc, -1
s_cbranch_scc1 L_POLLED
s_sleep 2
s_cmp_lt_u32 s{t+4}, 0x20000
s_cbranch_scc1 L_POLL""")
k.label('L_POLLED')
k.vm_reset()
stamp(6)
I(f's_mul_i32 s{sPOS}, s{sCB2}, {OPT["rot"]}\ns_and_b32 s{sPOS}, s{sPOS}, 31')
def a_load(i):
    d = AW + 4 * (i % NAW)
    I(f"""s_add_u32 s{t}, s{sABASE}, s{sPOS}
s_lshl_b32 s{t}, s{t}, 10
s_cmp_lt_u32 s{sPOS}, s{sNV}
s_cselect_b32 s{t}, s{t}, {OOB}
s_add_u32 s{sPOS}, s{sPOS}, 1
buffer_load_dwordx4 v[{d}:{d+3}], v{VL16}, {srd(SAF)}, s{t} offen sc1
s_and_b32 s{sPOS}, s{sPOS}, 31""", f'A{i}')
for i in range(NAW): a_load(i)
for i in range(32):
    if i + 1 == 19: I('s_barrier')
    if 13 <= i + 1 < 32: tr_reads(i + 1, BD + 8 * ((i + 1) & 1))
    b = BR + 8*i if i < 13 else BD + 8 * (i & 1)
    a = AW + 4 * (i % NAW)
    k.wait_vm(f'A{i}', (4 if i + 1 < 32 else 0) if i >= 13 else None)
    for ct in range(2):
        c_ = '0' if i == 0 else f'v[{ACC+16*ct}:{ACC+16*ct+15}]'
        I(f'v_mfma_f32_32x32x16_bf16 v[{ACC+16*ct}:{ACC+16*ct+15}], v[{b+4*ct}:{b+4*ct+3}], v[{a}:{a+3}], {c_}')
    if i + NAW < 32: a_load(i + NAW)
stamp(7)
k.c('---- reduction + final epilogue')
mk_srd(SOUT, 18, 2048*1024)
I(f"""s_mul_i32 s{t}, s{sH}, 17408
s_lshr_b32 s{t+1}, s{sWAVE}, 2
s_mul_i32 s{t+1}, s{t+1}, {32*272}
s_add_u32 s{t}, s{t}, s{t+1}
s_movk_i32 s{t+2}, 272
v_and_b32 v40, 31, v{VLANE}
v_mul_u32_u24 v40, s{t+2}, v40
v_lshrrev_b32 v41, 5, v{VLANE}
v_lshl_add_u32 v40, v41, 4, v40
v_add_u32 v40, s{t}, v40
s_mul_i32 s{t}, s{sWAVE}, {8*272}
v_lshrrev_b32 v41, 3, v{VLANE}
v_mul_u32_u24 v41, s{t+2}, v41
v_and_b32 v42, 7, v{VLANE}
v_lshl_add_u32 v41, v42, 5, v41
v_add_u32 v41, s{t}, v41
s_barrier""")
for ct in range(2):
    for i2 in range(4):
        r = ACC + 16*ct + 4*i2
        I(f'ds_write_b128 v40, v[{r}:{r+3}] offset:{ct*128 + i2*32}')
I('s_waitcnt lgkmcnt(0)\ns_barrier')
R = 48
for q in (1, 2, 3, 0):
    for hlf in range(2):
        I(f'ds_read_b128 v[{R+8*q+4*hlf}:{R+8*q+4*hlf+3}], v41 offset:{q*17408 + hlf*16}')
I(f's_mov_b32 s{t}, {f32(-LOG2E)}\ns_mov_b32 s{t+1}, {f32(-LOG2E)}\ns_mov_b32 s{t+2}, 1.0\ns_mov_b32 s{t+3}, 1.0')
X = 88
for d in range(4): I(f'v_lshlrev_b32 v{X+2*d}, 16, v{VXR+d}\nv_and_b32 v{X+2*d+1}, 0xffff0000, v{VXR+d}')
F, E = R + 8, 96
I('s_waitcnt lgkmcnt(4)')
for p in range(4): I(f'v_pk_add_f32 v[{F+2*p}:{F+2*p+1}], v[{F+2*p}:{F+2*p+1}], v[{F+8+2*p}:{F+8+2*p+1}]')
I('s_waitcnt lgkmcnt(2)')
for p in range(4): I(f'v_pk_add_f32 v[{F+2*p}:{F+2*p+1}], v[{F+2*p}:{F+2*p+1}], v[{F+16+2*p}:{F+16+2*p+1}]')
for p in range(4): I(f'v_pk_mul_f32 v[{E+2*p}:{E+2*p+1}], v[{F+2*p}:{F+2*p+1}], s[{t}:{t+1}]')
for e in range(8): I(f'v_exp_f32 v{E+e}, v{E+e}')
for p in range(4): I(f'v_pk_add_f32 v[{E+2*p}:{E+2*p+1}], v[{E+2*p}:{E+2*p+1}], s[{t+2}:{t+3}]')
for e in range(8): I(f'v_rcp_f32 v{E+e}, v{E+e}')
I('s_waitcnt lgkmcnt(0)')
for p in range(4): I(f'v_pk_mul_f32 v[{F+2*p}:{F+2*p+1}], v[{F+2*p}:{F+2*p+1}], v[{R+2*p}:{R+2*p+1}]')
for p in range(4): I(f'v_pk_fma_f32 v[{F+2*p}:{F+2*p+1}], v[{F+2*p}:{F+2*p+1}], v[{E+2*p}:{E+2*p+1}], v[{X+2*p}:{X+2*p+1}]')
for p in range(4): I(f'v_cvt_pk_bf16_f32 v{E+8+p}, v{F+2*p}, v{F+2*p+1}')
I(f'buffer_store_dwordx4 v[{E+8}:{E+11}], v{VOO}, {srd(SOUT)}, 0 offen')
if OPT['diag']:
    I('s_waitcnt vmcnt(0)')
    stamp(8)
    I(f"""s_lshl_b32 s{t}, s2, 3
s_add_u32 s{t}, s{t}, s{sWAVE}
s_lshl_b32 s{t}, s{t}, 8
s_add_u32 s{t}, s{t}, {W_DIAG}
v_lshlrev_b32 v1, 2, v{VLANE}
buffer_store_dword v{VDIAG}, v1, {srd(SWS)}, s{t} offen""")
    if OPT['diag'] == 2:
        I(f"""s_cmp_lg_u32 s2, {OPT.get('dw', 0)}
s_cbranch_scc1 L_END
s_and_b32 s{t}, s{sWAVE}, 3
s_cmp_lg_u32 s{t}, 0
s_cbranch_scc1 L_END
s_cmp_eq_u32 s{sWAVE}, 0
s_cselect_b32 s{t}, 8, 44
s_cselect_b32 s{t+1}, 9, 5
v_add_u32 v1, s{t}, v1
v_cmp_gt_u32 vcc, s{t+1}, v{VLANE}
s_and_saveexec_b64 s[{t+2}:{t+3}], vcc
global_store_dword v1, v{VDIAG}, s[20:21]""")
k.label('L_END')
I('s_endpgm')

k.label('L_C')
k.ins.clear(); k.vm_reset()
I('s_waitcnt lgkmcnt(0)')
stamp(0)
NW = newlbl('nw')
I(f"""s_or_b32 s{t}, s2, s{sWAVE}
s_cmp_lg_u32 s{t}, 0
s_cbranch_scc1 {NW}
s_memrealtime s[{t+2}:{t+3}]
s_waitcnt lgkmcnt(0)
s_or_b32 s{t+2}, s{t+2}, 1
v_mov_b32 v2, s{t+2}
v_mov_b32 v3, s{t+3}
v_mov_b32 v4, 0
global_store_dwordx2 v4, v[2:3], s[20:21] sc1""")
k.label(NW)
mk_srd(SX, 4, 2048*1024); mk_srd(SWS, 22, WS_REC); mk_srd(SAF, 22, AF_BYTES)
p2_params(sH)
I(f's_cmp_eq_u32 s{sISQ}, 1\ns_cbranch_scc1 L_CQ')

def publish_flag():
    I(f"""s_mul_i32 s{t}, s{sRB}, 23
s_add_u32 s{t}, s{t}, s{sCOL}
s_lshl_b32 s{t}, s{t}, 7
s_lshl_b32 s{t+1}, s{sWAVE}, 4
s_add_u32 s{t}, s{t}, s{t+1}
s_add_u32 s{t}, s{t}, {W_FL}
v_mov_b32 v1, {OOB}
v_cmp_eq_u32 vcc, 0, v{VLANE}
v_cndmask_b32 v1, v1, 0, vcc
v_mov_b32 v4, {L_NONCE}
ds_read_b64 v[2:3], v4
s_waitcnt vmcnt(0) lgkmcnt(0)
v_readfirstlane_b32 s{sN}, v2
v_readfirstlane_b32 s{sN+1}, v3
buffer_store_dwordx2 v[2:3], v1, {srd(SWS)}, s{t} offen sc1""")
    stamp(4)
    I('s_branch L_P2')

sSL, sIT = t + 12, t + 13
def next_slot():
    I(f"""s_add_u32 s{sSL}, s{sSL}, {SLOT}
s_cmp_eq_u32 s{sSL}, {3*SLOT}
s_cselect_b32 s{sSL}, 0, s{sSL}""")

k.c('---- C FFN')
XF, WF, XAb, XA, WAb, WA = 144, 168, 192, 196, 200, 201
I(f"""s_lshr_b32 s{t}, s{sWAVE}, 1
s_and_b32 s{t+1}, s{sWAVE}, 1
s_mul_i32 s{t+2}, s{t}, {96*128}
v_and_b32 v150, 31, v{VLANE}
v_bfe_u32 v151, v{VLANE}, 1, 3
v_lshrrev_b32 v152, 5, v{VLANE}
v_xor_b32 v151, v151, v152
v_lshlrev_b32 v150, 7, v150
v_add_u32 v150, s{t+2}, v150""")
for j in range(4):
    I(f'v_xor_b32 v153, {2*j}, v151\nv_lshl_add_u32 v{XAb+j}, v153, 4, v150\nv_mov_b32 v{XA+j}, v{XAb+j}')
I(f"""v_bfe_u32 v150, v{VLANE}, 2, 2
v_lshl_add_u32 v150, v152, 3, v150
v_mul_u32_u24 v150, 192, v150
v_bfe_u32 v151, v{VLANE}, 4, 1
v_mul_u32_u24 v151, 12320, v151
v_add_u32 v150, v150, v151
v_and_b32 v151, 3, v{VLANE}
v_lshl_add_u32 v150, v151, 3, v150
s_mul_i32 s{t+2}, s{t+1}, 96
s_add_u32 s{t+2}, s{t+2}, 24576
v_add_u32 v{WAb}, s{t+2}, v150
v_mov_b32 v{WA}, v{WAb}""")
I(f'v_mov_b32 v{vB2}, 0')
for r in range(144): I(f'v_mov_b32 v{r}, 0')
I(f's_mov_b32 s{sSL}, 0\ns_mov_b32 s{sIT}, 0')
def ffn_reads(u):
    buf = u & 1; out = []
    for a in range(3):
        d = XF + 12*buf + 4*a
        out.append(f'ds_read_b128 v[{d}:{d+3}], v{XA+u} offset:{a*4096}')
    for b in range(3):
        d = WF + 12*buf + 4*b
        for s_ in range(2):
            out.append(f'ds_read_b64_tr_b16 v[{d+2*s_}:{d+2*s_+1}], v{WA} offset:{(16*u+4*s_)*192 + b*32}')
    return out
stamp(1)
I('s_barrier')
stamp(2)
for r in ffn_reads(0): I(r)
k.label('L_FLOOP')
m0_ = k.mark()
for u in range(4):
    I('s_waitcnt lgkmcnt(0)')
    rd = ffn_reads((u + 1) & 3)
    first = 0
    if u == 3: first = 2
    n = 0
    for a in range(3):
        for b in range(3):
            ac = (a*3 + b) * 16; x = XF + 12*(u & 1) + 4*a; w = WF + 12*(u & 1) + 4*b
            I(f'v_mfma_f32_32x32x16_bf16 v[{ac}:{ac+15}], v[{w}:{w+3}], v[{x}:{x+3}], v[{ac}:{ac+15}]')
            if u == 3 and n == 0:
                next_slot()
                for j in range(4): I(f'v_add_u32 v{XA+j}, s{sSL}, v{XAb+j}')
            if u == 3 and n == 1:
                I(f'v_add_u32 v{WA}, s{sSL}, v{WAb}\ns_add_u32 s{sIT}, s{sIT}, 1\ns_barrier')
            if n >= first - (1 if u == 3 else 0):
                for _ in range(2):
                    if rd: I(rd.pop(0))
            n += 1
    assert not rd
I(f's_cmp_lt_u32 s{sIT}, 8\ns_cbranch_scc1 L_FLOOP')
k.check_backedge(m0_)
stamp(3)
k.c('---- FFN epilogue')
ST, CSB, EE, OUTR = 144, 156, 188, 196
VA_ = 204
I(f"""s_lshr_b32 s{t}, s{sWAVE}, 1
s_and_b32 s{t+1}, s{sWAVE}, 1
s_mul_i32 s{t+2}, s{t}, {96*16}
s_add_u32 s{t+2}, s{t+2}, {L_AOS}
v_and_b32 v{VA_}, 31, v{VLANE}
v_lshlrev_b32 v{VA_}, 4, v{VA_}
v_add_u32 v{VA_}, s{t+2}, v{VA_}
s_mul_i32 s{t+2}, s{t+1}, {48*4}
s_add_u32 s{t+2}, s{t+2}, {L_CS}
v_lshrrev_b32 v{VA_+1}, 5, v{VLANE}
v_lshlrev_b32 v{VA_+1}, 4, v{VA_+1}
v_add_u32 v{VA_+1}, s{t+2}, v{VA_+1}
v_lshlrev_b32 v{VA_+2}, 4, v{VLANE}
s_waitcnt lgkmcnt(0)""")
for a in range(3): I(f'ds_read_b128 v[{ST+4*a}:{ST+4*a+3}], v{VA_} offset:{a*512}')
def cs_reads(b):
    d = CSB + 16*(b & 1)
    for m in range(2):
        for i2 in range(2):
            I(f'ds_read_b128 v[{d+8*m+4*i2}:{d+8*m+4*i2+3}], v{VA_+1} offset:{m*512 + b*64 + i2*32}')
cs_reads(0)
I(f"""s_mul_i32 s{t+4}, s{sRB}, 6
s_mul_i32 s{t+2}, s{t}, 3
s_add_u32 s{t+4}, s{t+4}, s{t+2}
s_mul_i32 s{t+4}, s{t+4}, 118
s_mul_i32 s{t+5}, s{sCOL}, 6
s_mul_i32 s{t+2}, s{t+1}, 3
s_add_u32 s{t+5}, s{t+5}, s{t+2}
s_add_u32 s{t+4}, s{t+4}, s{t+5}
s_add_u32 s{t+4}, s{t+4}, 32
s_lshl_b32 s{t+4}, s{t+4}, 10""")
tile = 0
for b in range(3):
    if b < 2: cs_reads(b + 1)
    I(f's_waitcnt lgkmcnt({4 if b < 2 else 0})')
    cg_ = CSB + 16*(b & 1); cu_ = cg_ + 8
    I(f's_add_u32 s{t+6}, s{t+5}, {b}\ns_add_u32 s{t+7}, s{t+4}, {b*1024}\ns_cmp_lt_u32 s{t+6}, 86\ns_cselect_b32 s{t+7}, s{t+7}, {OOB}')
    for a in range(3):
        G = (a*3 + b) * 16; U = G + 8; s0 = ST + 4*a; o = OUTR + 4*(tile & 1)
        P = lambda r, p: f'v[{r+2*p}:{r+2*p+1}]'
        for p in range(4): I(f'v_pk_fma_f32 {P(G,p)}, {P(cg_,p)}, v[{s0}:{s0+1}], {P(G,p)} op_sel_hi:[1,0,1] neg_lo:[0,1,0] neg_hi:[0,1,0]')
        for p in range(4): I(f'v_pk_mul_f32 {P(EE,p)}, {P(G,p)}, v[{s0+2}:{s0+3}] op_sel:[0,1] op_sel_hi:[1,1]')
        for p in range(4): I(f'v_pk_fma_f32 {P(U,p)}, {P(cu_,p)}, v[{s0}:{s0+1}], {P(U,p)} op_sel_hi:[1,0,1] neg_lo:[0,1,0] neg_hi:[0,1,0]')
        for e in range(8): I(f'v_exp_f32 v{EE+e}, v{EE+e}')
        for p in range(4): I(f'v_pk_mul_f32 {P(U,p)}, {P(U,p)}, {P(G,p)}')
        for p in range(4): I(f'v_pk_fma_f32 {P(EE,p)}, {P(EE,p)}, v[{s0+2}:{s0+3}], v[{s0+2}:{s0+3}] op_sel_hi:[1,0,0]')
        for e in range(8): I(f'v_rcp_f32 v{EE+e}, v{EE+e}')
        for p in range(4): I(f'v_pk_mul_f32 {P(U,p)}, {P(U,p)}, {P(EE,p)}')
        for p in range(4): I(f'v_cvt_pk_bf16_f32 v{o+p}, v{U+2*p}, v{U+2*p+1}')
        I(f'buffer_store_dwordx4 v[{o}:{o+3}], v{VA_+2}, {srd(SAF)}, s{t+7} offen sc1')
        if a < 2: I(f's_add_u32 s{t+7}, s{t+7}, {118*1024}')
        tile += 1
publish_flag()

k.label('L_CQ')
k.ins.clear(); k.vm_reset()
k.c('---- C QKV')
QA, KA, VA = 0, 48, 100
XS, XD, WQ = 152, 196, 212
XAb, XA, WAb, WA = 236, 238, 240, 241
I(f"""v_and_b32 v160, 15, v{VLANE}
v_bfe_u32 v161, v{VLANE}, 1, 3
v_lshrrev_b32 v162, 4, v{VLANE}
v_xor_b32 v161, v161, v162
v_lshlrev_b32 v163, 7, v160
v_lshl_add_u32 v{XAb}, v161, 4, v163
v_xor_b32 v{XAb+1}, 64, v{XAb}
v_mov_b32 v{XA}, v{XAb}
v_mov_b32 v{XA+1}, v{XAb+1}
v_bfe_u32 v163, v{VLANE}, 2, 2
v_lshl_add_u32 v163, v162, 3, v163
v_lshlrev_b32 v163, 7, v163
v_bfe_u32 v164, v{VLANE}, 3, 1
v_and_b32 v165, 1, v162
v_lshl_or_b32 v164, v165, 1, v164
v_xor_b32 v164, s{sWAVE}, v164
v_lshl_add_u32 v163, v164, 5, v163
v_and_b32 v164, 3, v{VLANE}
v_lshl_add_u32 v163, v164, 3, v163
v_add_u32 v{WAb}, 26624, v163
v_mov_b32 v{WA}, v{WAb}""")
for r in range(152): I(f'v_mov_b32 v{r}, 0')
I(f's_mov_b32 s{sSL}, 0\ns_mov_b32 s{sIT}, 0')
lg = []
def xreg(tau, j): return XS + 4*tau if tau < 11 else XD + 8*(j & 1) + 4*(tau - 11)
def rd_x(tau, j):
    d = xreg(tau, j); I(f'ds_read_b128 v[{d}:{d+3}], v{XA+j} offset:{tau*2048}'); lg.append(('x', tau, j))
def rd_w(m, s_, j):
    d = WQ + 12*j + 4*m + 2*s_; I(f'ds_read_b64_tr_b16 v[{d}:{d+1}], v{WA} offset:{m*8192 + (32*j+4*s_)*128}'); lg.append(('w', m, s_, j))
def lg_wait(tags):
    idx = max((i for i, x in enumerate(lg) if x in tags), default=None)
    if idx is None: return
    n = min(15, len(lg) - 1 - idx)
    I(f's_waitcnt lgkmcnt({n})')
    del lg[:len(lg) - n]
def sched(tau):
    r = []
    if tau < 11: r.append(('x', tau))
    extra = {1: [('w',1,0),('w',1,1)], 2: [('w',2,0),('w',2,1)], 3: [('w',0,0),('w',0,1)], 4: [('x',11)], 5: [('x',12)]}
    return r + extra.get(tau, [])
def do_reads(lst, j):
    for x in lst:
        if x[0] == 'x': rd_x(x[1], j)
        else: rd_w(x[1], x[2], j)
stamp(1)
I('s_barrier')
stamp(2)
for tau in range(13): do_reads(sched(tau), 0)
entry = list(lg)
k.label('L_QLOOP')
m0_ = k.mark()
for j in range(2):
    for tau in range(13):
        if j == 1 and tau == 0:
            I('s_waitcnt lgkmcnt(0)'); lg.clear()
        else:
            lg_wait([('x', tau, j)] + ([('w',1,0,j),('w',1,1,j),('w',2,0,j),('w',2,1,j)] if tau == 0 else []) + ([('w',0,0,j),('w',0,1,j)] if tau == 1 else []))
        x = xreg(tau, j); w = WQ + 12*j
        X_ = f'v[{x}:{x+3}]'
        I(f'v_mfma_f32_16x16x32_bf16 v[{KA+4*tau}:{KA+4*tau+3}], v[{w+4}:{w+7}], {X_}, v[{KA+4*tau}:{KA+4*tau+3}]')
        if j == 1 and tau == 0:
            next_slot()
            I(f'v_add_u32 v{XA}, s{sSL}, v{XAb}\nv_add_u32 v{WA}, s{sSL}, v{WAb}')
        I(f'v_mfma_f32_16x16x32_bf16 v[{VA+4*tau}:{VA+4*tau+3}], {X_}, v[{w+8}:{w+11}], v[{VA+4*tau}:{VA+4*tau+3}]')
        if j == 1 and tau == 0:
            I(f'v_add_u32 v{XA+1}, s{sSL}, v{XAb+1}\ns_add_u32 s{sIT}, s{sIT}, 1\ns_barrier')
        if tau >= 1:
            q = QA + 4*(tau - 1)
            I(f'v_mfma_f32_16x16x32_bf16 v[{q}:{q+3}], v[{w}:{w+3}], {X_}, v[{q}:{q+3}]')
        do_reads(sched(tau), 1 - j)
assert lg == entry, (lg, entry)
I(f's_cmp_lt_u32 s{sIT}, 8\ns_cbranch_scc1 L_QLOOP')
k.check_backedge(m0_)
stamp(3)
k.c('---- QKV epilogue (attention)')
KB, VB, QB = 152, 178, 204
AS, SMR, CSQ, CSK, CSV = 208, 216, 224, 228, 232
SEL, ONES, VAD = 234, 238, 242
sPAR, sOA, sOB, sVA_, sVB_ = sM, sM+2, sM+4, sM+6, sM+8
I(f"""s_waitcnt lgkmcnt(0)
v_and_b32 v246, 15, v{VLANE}
v_lshrrev_b32 v247, 4, v{VLANE}
v_lshlrev_b32 v{VAD}, 4, v246
v_add_u32 v{VAD}, {L_AOS}, v{VAD}
v_lshlrev_b32 v{VAD+1}, 4, v247
s_lshl_b32 s{t}, s{sWAVE}, 6
s_add_u32 s{t}, s{t}, {L_CS}
v_add_u32 v{VAD+2}, s{t}, v{VAD+1}
v_add_u32 v{VAD+1}, {L_SM}, v{VAD+1}
v_lshlrev_b32 v248, 2, v246
v_add_u32 v248, s{t}, v248
ds_read_b128 v[{CSQ}:{CSQ+3}], v{VAD+2}
ds_read_b128 v[{CSK}:{CSK+3}], v{VAD+2} offset:256
ds_read_b32 v{CSV}, v248 offset:512
v_lshlrev_b32 v{VAD+3}, 4, v{VLANE}
v_and_b32 v248, 1, v{VLANE}
v_cmp_eq_u32 s[{sPAR}:{sPAR+1}], 1, v248
v_lshl_add_u32 v249, v247, 2, v248
v_cmp_le_u32 s[{sOA}:{sOA+1}], v249, v246
v_add_u32 v249, 2, v249
v_cmp_le_u32 s[{sOB}:{sOB+1}], v249, v246
s_cmp_eq_u32 s{sRB}, 0
s_cselect_b64 s[{sVA_}:{sVA_+1}], s[{sOA}:{sOA+1}], -1
s_cselect_b64 s[{sVB_}:{sVB_+1}], s[{sOB}:{sOB+1}], -1
v_mov_b32 v246, 0x0c0c0100
v_mov_b32 v247, 0x01000c0c
v_cndmask_b32 v246, v246, v247, s[{sPAR}:{sPAR+1}]
v_mov_b32 v247, 0x0c0c0302
v_mov_b32 v248, 0x03020c0c
v_cndmask_b32 v247, v247, v248, s[{sPAR}:{sPAR+1}]
v_mov_b32 v248, 0x0c0c0c0c
v_cndmask_b32 v{SEL}, v246, v248, s[{sOA}:{sOA+1}]
v_cndmask_b32 v{SEL+1}, v247, v248, s[{sOB}:{sOB+1}]
v_cndmask_b32 v{SEL+2}, v248, v246, s[{sOA}:{sOA+1}]
v_cndmask_b32 v{SEL+3}, v248, v247, s[{sOB}:{sOB+1}]""")
for i in range(4): I(f'v_mov_b32 v{ONES+i}, 0x3f803f80')
I(f"""s_mul_i32 s{t+4}, s{sRB}, {6*118}
s_sub_u32 s{t+5}, s{sCOL}, 15
s_lshl_b32 s{t+5}, s{t+5}, 2
s_add_u32 s{t+4}, s{t+4}, s{t+5}
s_add_u32 s{t+4}, s{t+4}, s{sWAVE}
s_lshl_b32 s{t+4}, s{t+4}, 10""")
NEG = 'neg_lo:[0,1,0] neg_hi:[0,1,0]'
def st_reads(tau):
    a = AS + 4*(tau & 1)
    I(f'ds_read_b128 v[{a}:{a+3}], v{VAD} offset:{tau*256}')
def smr_reads(tau):
    I(f'ds_read_b128 v[{SMR}:{SMR+3}], v{VAD+1} offset:{tau*64}\nds_read_b128 v[{SMR+4}:{SMR+7}], v{VAD+1} offset:{1024+tau*64}')
st_reads(0); smr_reads(0)
for tau in range(13):
    a = AS + 4*(tau & 1)
    if tau < 12: st_reads(tau + 1)
    I(f's_waitcnt lgkmcnt({1 if tau < 12 else 0})')
    Kc, Vc = KA + 4*tau, VA + 4*tau
    for p in range(2): I(f'v_pk_fma_f32 v[{Vc+2*p}:{Vc+2*p+1}], v[{SMR+2*p}:{SMR+2*p+1}], v[{CSV}:{CSV+1}], v[{Vc+2*p}:{Vc+2*p+1}] op_sel_hi:[1,0,1] {NEG}')
    for p in range(2): I(f'v_pk_fma_f32 v[{Kc+2*p}:{Kc+2*p+1}], v[{CSK+2*p}:{CSK+2*p+1}], v[{a}:{a+1}], v[{Kc+2*p}:{Kc+2*p+1}] op_sel_hi:[1,0,1] {NEG}')
    for p in range(2): I(f'v_pk_mul_f32 v[{Vc+2*p}:{Vc+2*p+1}], v[{Vc+2*p}:{Vc+2*p+1}], v[{SMR+4+2*p}:{SMR+4+2*p+1}]')
    if tau < 12: smr_reads(tau + 1)
    for p in range(2): I(f'v_pk_mul_f32 v[{Kc+2*p}:{Kc+2*p+1}], v[{Kc+2*p}:{Kc+2*p+1}], v[{a}:{a+1}] op_sel:[0,1] op_sel_hi:[1,1]')
    if tau >= 1:
        Qc = QA + 4*(tau - 1)
        for p in range(2): I(f'v_pk_fma_f32 v[{Qc+2*p}:{Qc+2*p+1}], v[{CSQ+2*p}:{CSQ+2*p+1}], v[{a}:{a+1}], v[{Qc+2*p}:{Qc+2*p+1}] op_sel_hi:[1,0,1] {NEG}')
    for p in range(2): I(f'v_cvt_pk_bf16_f32 v{VB+2*tau+p}, v{Vc+2*p}, v{Vc+2*p+1}')
    for p in range(2): I(f'v_cvt_pk_bf16_f32 v{KB+2*tau+p}, v{Kc+2*p}, v{Kc+2*p+1}')
    if tau >= 1:
        for p in range(2): I(f'v_cvt_pk_bf16_f32 v{Qc+p}, v{Qc+2*p}, v{Qc+2*p+1}')
        I(f'v_mov_b32 v{Qc+2}, v{a+3}')
for g in range(3):
    ts = list(range(4*g, 4*g + 4))
    def SO(i): return 48 + 24*i
    def SP(i): return SO(i) + 4
    def PP(i): return SO(i) + 8
    def OO(i): return SO(i) + 12
    def LL(i): return SO(i) + 16
    def TT(i): return SO(i) + 20
    for i, tq in enumerate(ts):
        q = QA + 4*tq; tau = tq + 1
        I(f'v_mfma_f32_16x16x16_bf16 v[{SO(i)}:{SO(i)+3}], v[{KB+2*tau}:{KB+2*tau+1}], v[{q}:{q+1}], 0')
        I(f'v_mfma_f32_16x16x16_bf16 v[{SP(i)}:{SP(i)+3}], v[{KB+2*tau-2}:{KB+2*tau-1}], v[{q}:{q+1}], 0')
    par = f's[{sPAR}:{sPAR+1}]'
    def each(fmt):
        for i, tq in enumerate(ts): I(fmt(i, tq))
    each(lambda i, tq: f'v_cndmask_b32 v{SO(i)}, v{SO(i)}, v{SO(i)+1}, {par}\nv_cndmask_b32 v{SO(i)+2}, v{SO(i)+2}, v{SO(i)+3}, {par}\n'
                       f'v_cndmask_b32 v{SP(i)}, v{SP(i)}, v{SP(i)+1}, {par}\nv_cndmask_b32 v{SP(i)+2}, v{SP(i)+2}, v{SP(i)+3}, {par}')
    each(lambda i, tq: f'v_cndmask_b32 v{SO(i)}, v{SP(i)}, v{SO(i)}, s[{sOA}:{sOA+1}]\nv_cndmask_b32 v{SO(i)+1}, v{SP(i)+2}, v{SO(i)+2}, s[{sOB}:{sOB+1}]')
    if g == 0:
        I(f'v_mov_b32 v{TT(0)}, {f32(-1e30)}\nv_cndmask_b32 v{SO(0)}, v{TT(0)}, v{SO(0)}, s[{sVA_}:{sVA_+1}]\nv_cndmask_b32 v{SO(0)+1}, v{TT(0)}, v{SO(0)+1}, s[{sVB_}:{sVB_+1}]')
    each(lambda i, tq: f'v_max_f32 v{TT(i)}, v{SO(i)}, v{SO(i)+1}\nv_max_f32 v{TT(i)+1}, v{SO(i)}, v{SO(i)+1}')
    each(lambda i, tq: f'v_permlane32_swap_b32 v{TT(i)}, v{TT(i)+1}')
    each(lambda i, tq: f'v_max_f32 v{TT(i)+2}, v{TT(i)}, v{TT(i)+1}\nv_max_f32 v{TT(i)+3}, v{TT(i)}, v{TT(i)+1}')
    each(lambda i, tq: f'v_permlane16_swap_b32 v{TT(i)+2}, v{TT(i)+3}')
    each(lambda i, tq: f'v_max_f32 v{TT(i)}, v{TT(i)+2}, v{TT(i)+3}')
    each(lambda i, tq: f'v_sub_f32 v{SO(i)}, v{SO(i)}, v{TT(i)}\nv_sub_f32 v{SO(i)+1}, v{SO(i)+1}, v{TT(i)}')
    each(lambda i, tq: f'v_mul_f32 v{SO(i)}, v{SO(i)}, v{QA+4*tq+2}\nv_mul_f32 v{SO(i)+1}, v{SO(i)+1}, v{QA+4*tq+2}')
    each(lambda i, tq: f'v_exp_f32 v{SO(i)}, v{SO(i)}\nv_exp_f32 v{SO(i)+1}, v{SO(i)+1}')
    each(lambda i, tq: f'v_cvt_pk_bf16_f32 v{TT(i)}, v{SO(i)}, v{SO(i)+1}')
    each(lambda i, tq: '\n'.join(f'v_perm_b32 v{PP(i)+e}, v{TT(i)}, v{TT(i)}, v{SEL+e}' for e in range(4)))
    each(lambda i, tq: f'v_mfma_f32_16x16x32_bf16 v[{LL(i)}:{LL(i)+3}], v[{ONES}:{ONES+3}], v[{PP(i)}:{PP(i)+3}], 0\n'
                       f'v_mfma_f32_16x16x32_bf16 v[{OO(i)}:{OO(i)+3}], v[{VB+2*tq}:{VB+2*tq+3}], v[{PP(i)}:{PP(i)+3}], 0')
    each(lambda i, tq: f'v_rcp_f32 v{TT(i)}, v{LL(i)}')
    each(lambda i, tq: '\n'.join(f'v_pk_mul_f32 v[{OO(i)+2*p}:{OO(i)+2*p+1}], v[{OO(i)+2*p}:{OO(i)+2*p+1}], v[{TT(i)}:{TT(i)+1}] op_sel_hi:[1,0]' for p in range(2)))
    for pr in range(2):
        i0, i1 = 2*pr, 2*pr + 1; o = SP(i0)
        I(f'v_cvt_pk_bf16_f32 v{o}, v{OO(i0)}, v{OO(i0)+1}\nv_cvt_pk_bf16_f32 v{o+1}, v{OO(i0)+2}, v{OO(i0)+3}\n'
          f'v_cvt_pk_bf16_f32 v{o+2}, v{OO(i1)}, v{OO(i1)+1}\nv_cvt_pk_bf16_f32 v{o+3}, v{OO(i1)+2}, v{OO(i1)+3}')
    for pr in range(2):
        o = SP(2*pr)
        I(f'v_permlane16_swap_b32 v{o}, v{o+2}\nv_permlane16_swap_b32 v{o+1}, v{o+3}')
    for pr in range(2):
        o = SP(2*pr)
        I(f'buffer_store_dwordx4 v[{o}:{o+3}], v{VAD+3}, {srd(SAF)}, s{t+4} offen sc1\ns_add_u32 s{t+4}, s{t+4}, {118*1024}')
publish_flag()
k.label('L_CODE_END')
I('s_endpgm')

hdr = open('cdna_kernels/' + NAME + '.s.ref').read().split('; Override launch')[0]
txt = hdr + f"""; @launch grid=(256,1,1) block=(512,1,1) lds=163840
.amdgcn_target "amdgcn-amd-amdhsa--gfx950"
.text
.globl {NAME}_kernel
.p2align 8
.type {NAME}_kernel,@function
{NAME}_kernel:
""" + k.text() + f""".section .rodata,"a"
.p2align 6
.amdhsa_kernel {NAME}_kernel
  .amdhsa_next_free_vgpr 256
  .amdhsa_next_free_sgpr 102
  .amdhsa_accum_offset 256
  .amdhsa_group_segment_fixed_size 0
  .amdhsa_kernarg_size 80
  .amdhsa_user_sgpr_count 2
  .amdhsa_user_sgpr_kernarg_segment_ptr 1
  .amdhsa_system_sgpr_workgroup_id_x 1
.end_amdhsa_kernel
"""
open(sys.argv[1], 'w').write(txt)
print('written', sys.argv[1], 'lines', txt.count('\n'), 'nops', k.nops)
```

```python
import sys, os
from asmlib import K

NAME = "recurrent_scan__sliding_local_dilated__swiglu_ffn__prompt"
OPT = dict(diag=0, nt_x=0, nt_w=0, nt_b2=0, touch_b2=1, rot=4)
for a in sys.argv[2:]:
    k_, v_ = a.split('='); OPT[k_] = int(v_)

SLOT = 51200
MISC = 155648
L_AOS, L_SM, L_SR, L_CS, L_SCR = MISC, MISC + 4096, MISC + 5120, MISC + 6144, MISC + 7168
L_NONCE = L_AOS + 4080
AF_BYTES = 64 * 118 * 1024
W_RS, W_CSP, W_FL, W_DIAG = 0x800000, 0x810000, 0x880000, 0x900000
WS_REC = 0x1000000
OOB = 0x7f000000
LOG2E = 1.4426950408889634
import struct
def f32(x): return '0x%08x' % struct.unpack('<I', struct.pack('<f', x))[0]

SX, SWA, SWB, SWS, SAF, SW2, SSL, SOUT = 24, 28, 32, 36, 40, 44, 48, 52
sWAVE, sRB, sCOL, sISQ, sH, sRB2, sCB2, sSLOTID = 56, 57, 58, 59, 60, 61, 62, 63
sN = 64
sT = 66
sLW = 80
sKWS, sC, sKW, sX7M, sX7S, sPOS = 86, 87, 88, 89, 90, 91
sNV, sBROW, sABASE, sLB2 = 92, 93, 94, 95
sST = 96
sM = 80
VLANE, VDIAG = 254, 255
def srd(i): return f's[{i}:{i+3}]'

k = K()
I = k.I
def stamp(i):
    if not OPT['diag']: return
    I(f's_memrealtime s[{sST}:{sST+1}]\ns_memtime s[{sST+2}:{sST+3}]\ns_waitcnt lgkmcnt(0)\nv_writelane_b32 v{VDIAG}, s{sST}, {i}\nv_writelane_b32 v{VDIAG}, s{sST+2}, {i+32}')

def mk_srd(d, p, rec):
    I(f's_mov_b32 s{d}, s{p}\ns_mov_b32 s{d+1}, s{p+1}\ns_mov_b32 s{d+2}, {rec}\ns_mov_b32 s{d+3}, 0x20000')

lblc = [0]
def newlbl(p):
    lblc[0] += 1; return f'L_{p}_{lblc[0]}'

def nonce_poll():
    L = newlbl('np'); D = newlbl('npd')
    I(f's_mov_b32 s{sT}, 0')
    k.label(L)
    I(f"""s_load_dwordx2 s[{sN}:{sN+1}], s[20:21], 0 glc
s_add_u32 s{sT}, s{sT}, 1
s_waitcnt lgkmcnt(0)
s_cmp_lg_u64 s[{sN}:{sN+1}], 0
s_cbranch_scc1 {D}
s_sleep 2
s_cmp_lt_u32 s{sT}, 0x40000
s_cbranch_scc1 {L}""")
    k.label(D)

k.label('KSTART')
I(f"""s_cmp_ge_u32 s2, 256
s_cbranch_scc1 L_END
s_load_dwordx16 s[4:19], s[0:1], 0
s_load_dwordx4 s[20:23], s[0:1], 64
v_lshrrev_b32 v1, 6, v0
v_and_b32 v{VLANE}, 63, v0
v_readfirstlane_b32 s{sWAVE}, v1""")
if OPT.get('padto'): I('s_memrealtime s[100:101]')
if OPT['diag']: I(f'v_mov_b32 v{VDIAG}, 0')
T0 = [18,19,20,4,5,10,31,0]; T1 = [21,22,11,16,17,31,31,0]
def pk(b): return '0x%08x' % (b[0] | b[1] << 8 | b[2] << 16 | b[3] << 24)
t = sT
I(f"""s_and_b32 s{t}, s2, 7
s_lshr_b32 s{sSLOTID}, s2, 3
s_and_b32 s{t+1}, s{t}, 1
s_lshr_b32 s{t+2}, s{t}, 1
s_lshl_b32 s{sRB2}, s{t}, 2
s_lshr_b32 s{t+3}, s{sSLOTID}, 3
s_add_u32 s{sRB2}, s{sRB2}, s{t+3}
s_and_b32 s{sCB2}, s{sSLOTID}, 7
s_mul_i32 s{t+3}, s{sSLOTID}, 52
s_lshr_b32 s{t+3}, s{t+3}, 8
s_mul_i32 s{t+4}, s{t+3}, 5
s_sub_u32 s{t+4}, s{sSLOTID}, s{t+4}
s_mul_i32 s{t+5}, s{t+1}, 6
s_add_u32 s{sRB}, s{t+4}, s{t+5}
s_mul_i32 s{t+5}, s{t+2}, 6
s_add_u32 s{sCOL}, s{t+5}, s{t+3}
s_lshl_b32 s{t+6}, s{t+1}, 1
s_add_u32 s{t+5}, s{t+5}, s{t+6}
s_add_u32 s{t+5}, s{t+5}, s{sSLOTID}
s_sub_u32 s{t+5}, s{t+5}, 30
s_cmp_eq_u32 s{t+1}, 0
s_mov_b32 s{t+6}, {pk(T1[:4])}
s_mov_b32 s{t+7}, {pk(T1[4:])}
s_cmov_b32 s{t+6}, {pk(T0[:4])}
s_cmov_b32 s{t+7}, {pk(T0[4:])}""")
I(f"""s_sub_u32 s{t+8}, s{sSLOTID}, 25
s_lshl_b32 s{t+8}, s{t+8}, 3
s_lshr_b64 s[{t+6}:{t+7}], s[{t+6}:{t+7}], s{t+8}
s_and_b32 s{t+6}, s{t+6}, 0xff
s_cmp_eq_u32 s{t+2}, 3
s_cselect_b32 s{t+5}, s{t+6}, s{t+5}
s_cselect_b32 s{t+7}, 25, 30
s_cmp_ge_u32 s{sSLOTID}, s{t+7}
s_cselect_b32 s{sCOL}, s{t+5}, s{sCOL}
s_cselect_b32 s{sRB}, 5, s{sRB}
s_cmp_eq_u32 s{sCOL}, 31
s_cselect_b32 s{sCOL}, 0, s{sCOL}
s_cselect_b32 s{sRB}, 11, s{sRB}
s_add_u32 s{t+5}, s{sCOL}, 1
s_cmp_ge_u32 s{sCOL}, 14
s_cselect_b32 s{sCOL}, s{t+5}, s{sCOL}
s_cmp_eq_u32 s{sCOL}, 23
s_cselect_b32 s{sCOL}, 14, s{sCOL}
s_cmp_ge_u32 s{sCOL}, 15
s_cselect_b32 s{sISQ}, 1, 0
s_and_b32 s{sH}, s{sWAVE}, 3
s_cmp_lt_u32 s{sWAVE}, 4
s_cbranch_scc1 L_C""")

vXo0, vXo1, vW, vL16, vB2 = 2, 3, 4, 7, 247
vT = 8
NTX = ' nt' if OPT['nt_x'] else ''
NTW = ' nt' if OPT['nt_w'] else ''
NTB = ' nt' if OPT['nt_b2'] else ''
k.c('---- H prologue')
I(f"""v_lshrrev_b32 v{vT}, 3, v{VLANE}
v_and_b32 v{vT+1}, 7, v{VLANE}
v_lshrrev_b32 v{vT+2}, 1, v{vT}
s_and_b32 s{t}, s{sH}, 1
s_lshl_b32 s{t+1}, s{t}, 2
v_or_b32 v{vT+3}, s{t+1}, v{vT+2}
v_xor_b32 v{vT+3}, v{vT+3}, v{vT+1}
v_lshlrev_b32 v{vT+3}, 4, v{vT+3}
s_mul_i32 s{t+2}, s{sRB}, 192
s_lshl_b32 s{t+3}, s{sISQ}, 4
s_sub_i32 s{t+2}, s{t+2}, s{t+3}
s_lshl_b32 s{t+3}, s{sH}, 3
s_add_i32 s{t+2}, s{t+2}, s{t+3}
s_add_i32 s{t+4}, s{t+2}, 32
v_add_u32 v{vXo1}, s{t+4}, v{vT}
v_lshlrev_b32 v{vXo1}, 10, v{vXo1}
v_add_u32 v{vXo1}, v{vXo1}, v{vT+3}
s_cmp_lt_i32 s{t+2}, 0
s_mov_b32 s{t+4}, -32768
s_cmov_b32 s{t+4}, 0x40000000
v_add_u32 v{vXo0}, s{t+4}, v{vXo1}
v_lshlrev_b32 v{vL16}, 4, v{VLANE}
s_cmp_eq_u32 s{sISQ}, 1
s_cbranch_scc1 L_HQ""")
I(f"""s_mul_i32 s{t+2}, s{sH}, {16*2752}
s_mul_i32 s{t+3}, s{sCOL}, 192
s_add_u32 s{t+2}, s{t+2}, s{t+3}
s_movk_i32 s{t+4}, 171
s_movk_i32 s{t+5}, 2752
s_sub_u32 s{t+6}, 2752, s{t+3}""")
for b in range(3):
    I(f"""v_add_u32 v{vT+4}, {64*b}, v{VLANE}
v_mul_u32_u24 v{vT+5}, s{t+4}, v{vT+4}
v_lshrrev_b32 v{vT+5}, 11, v{vT+5}
v_mul_u32_u24 v{vT+6}, 12, v{vT+5}
v_sub_u32 v{vT+6}, v{vT+4}, v{vT+6}
v_lshlrev_b32 v{vT+6}, 4, v{vT+6}
v_mad_u32_u24 v{vW+b}, v{vT+5}, s{t+5}, v{vT+6}
v_add_u32 v{vW+b}, s{t+2}, v{vW+b}
v_cmp_gt_u32 vcc, s{t+6}, v{vT+6}
v_mov_b32 v{vT+7}, {OOB}
v_cndmask_b32 v{vW+b}, v{vT+7}, v{vW+b}, vcc""")
I(f"""s_mul_i32 s{sLW}, s{sH}, 3072
s_add_u32 s{sLW}, s{sLW}, 24576
s_add_u32 s{sLW+1}, s{sLW}, 1024
s_add_u32 s{sLW+2}, s{sLW}, 2048
s_add_u32 s{sLW+3}, s{sLW}, 12320
s_add_u32 s{sLW+4}, s{sLW}, {12320+1024}
s_add_u32 s{sLW+5}, s{sLW}, {12320+2048}
s_mov_b32 s{sKWS}, {64*2752}
s_mov_b32 s{sC}, 0
s_mov_b32 s{sX7M}, {L_SCR}
s_mov_b32 s{sX7S}, {OOB}
s_waitcnt lgkmcnt(0)""")
mk_srd(SWA, 12, 512*2752); mk_srd(SWB, 14, 512*2752)
I('s_branch L_HJ')
k.label('L_HQ')
I(f"""v_and_b32 v{vT+4}, 1, v{vT+2}
s_lshl_b32 s{t+1}, s{t}, 1
v_or_b32 v{vT+4}, s{t+1}, v{vT+4}
v_lshlrev_b32 v{vT+4}, 1, v{vT+4}
v_xor_b32 v{vT+4}, v{vT+4}, v{vT+1}
v_lshlrev_b32 v{vT+4}, 4, v{vT+4}
s_movk_i32 s{t+5}, 3072
v_mad_u32_u24 v{vW}, v{vT}, s{t+5}, v{vT+4}
s_mul_i32 s{t+2}, s{sH}, {8*3072}
s_sub_u32 s{t+3}, s{sCOL}, 15
s_lshl_b32 s{t+3}, s{t+3}, 7
s_add_u32 s{t+2}, s{t+2}, s{t+3}
v_add_u32 v{vW}, s{t+2}, v{vW}
v_add_u32 v{vW+1}, 1024, v{vW}
v_add_u32 v{vW+2}, 2048, v{vW}
s_lshl_b32 s{sLW}, s{sH}, 10
s_add_u32 s{sLW}, s{sLW}, 26624
s_add_u32 s{sLW+1}, s{sLW}, 8192
s_add_u32 s{sLW+2}, s{sLW}, 16384
s_add_u32 s{sLW+3}, s{sLW}, 4096
s_add_u32 s{sLW+4}, s{sLW}, {4096+8192}
s_add_u32 s{sLW+5}, s{sLW}, {4096+16384}
s_mov_b32 s{sKWS}, {64*3072}
s_mov_b32 s{sC}, {32*3072}
s_lshl_b32 s{t+2}, s{sH}, 10
s_add_u32 s{t+2}, s{t+2}, {24*1024}
s_cmp_lt_u32 s{sH}, 2
s_cselect_b32 s{sX7M}, s{t+2}, {L_SCR}
s_mov_b32 s{sX7S}, {OOB}
s_cmov_b32 s{sX7S}, {5*32768}
s_waitcnt lgkmcnt(0)""")
mk_srd(SWA, 6, 512*3072); mk_srd(SWB, 6, 512*3072)
k.label('L_HJ')
mk_srd(SX, 4, 2048*1024)
I(f's_lshl_b32 s{t+10}, s{sH}, 10\ns_mov_b32 s{sKW}, 0\ns_cmp_eq_u32 s{sX7M}, {L_SCR}\ns_cselect_b32 s{t+11}, 0, 1')
sH1K, sX7R = t + 10, t + 11

def stage_dma(st):
    base = (st % 3) * SLOT
    tag = f'D{st}'
    for tt in range(6):
        I(f's_add_u32 m0, s{sH1K}, {base + tt*4096}')
        if tt == 0: I(f's_movk_i32 s{t}, {st*128}\nbuffer_load_dwordx4 v{vXo0}, {srd(SX)}, s{t} offen lds{NTX}', tag)
        else: I(f's_mov_b32 s{t}, {(tt-1)*32768 + st*128}\nbuffer_load_dwordx4 v{vXo1}, {srd(SX)}, s{t} offen lds{NTX}', tag)
    I(f"""s_mul_i32 s{t}, s{sX7R}, {base}
s_add_u32 m0, s{t}, s{sX7M}
s_add_u32 s{t}, s{sX7S}, {st*128}
buffer_load_dwordx4 v{vXo1}, {srd(SX)}, s{t} offen lds{NTX}""", tag)
    I(f's_add_u32 s{t+1}, s{sKW}, s{sC}')
    for i in range(6):
        I(f's_add_u32 m0, s{sLW+i}, {base}')
        if i == 0: I('s_nop 0')
        I(f'buffer_load_dwordx4 v{vW + i%3}, {srd(SWA if i < 3 else SWB)}, s{sKW if i < 3 else t+1} offen lds{NTW}', tag)
    I(f's_add_u32 s{sKW}, s{sKW}, s{sKWS}')

stamp(0)
stage_dma(0)
I(f"""s_getpc_b64 s[{t+2}:{t+3}]""")
k.label('L_PC')
I(f"""s_lshl_b32 s{t+4}, s{sSLOTID}, 10
v_and_b32 v{vT+4}, 7, v{VLANE}
v_lshlrev_b32 v{vT+4}, 7, v{vT+4}
v_add_u32 v{vT+4}, s{t+4}, v{vT+4}
v_min_u32 v{vT+4}, L_CODE_END-L_PC-4, v{vT+4}
global_load_dword v{vT+5}, v{vT+4}, s[{t+2}:{t+3}]""", 'CODE')
stage_dma(1)
stage_dma(2)
mk_srd(SWS, 22, WS_REC); mk_srd(SAF, 22, AF_BYTES)
vRD, vSD = 20, 32
vSO = 64
I(f"""s_mul_i32 s{t}, s{sRB}, 192
s_mul_i32 s{t+1}, s{sCOL}, 12
s_add_u32 s{t}, s{t}, s{t+1}
s_mul_i32 s{t+1}, s{sH}, 3
s_add_u32 s{t}, s{t}, s{t+1}
s_cmp_lt_u32 s{sCOL}, 16
s_cselect_b32 s{t+12}, s{t}, 0x100000
s_lshl_b32 s{t}, s{t+12}, 10""")
sROW = t + 12
for a in range(3):
    I(f'buffer_load_dwordx4 v[{vRD+4*a}:{vRD+4*a+3}], v{vL16}, {srd(SX)}, s{t} offen offset:{a*1024}{NTX}', 'SR')
I(f"""s_cmp_ge_u32 s{sH}, 2
s_cselect_b32 s{SSL}, s{SWB}, s{SWA}
s_cselect_b32 s{SSL+1}, s{SWB+1}, s{SWA+1}
s_mov_b32 s{SSL+2}, s{SWA+2}
s_mov_b32 s{SSL+3}, 0x20000
s_cmp_eq_u32 s{sISQ}, 1
s_movk_i32 s{t+1}, 2752
s_cmov_b32 s{t+1}, 3072
s_and_b32 s{t+2}, s{sH}, 1
s_lshl_b32 s{t+2}, s{t+2}, 7
s_mul_i32 s{t+3}, s{sCOL}, 192
s_add_u32 s{t+4}, s{t+3}, s{t+2}
s_add_u32 s{t+3}, s{t+3}, 192
s_min_u32 s{t+3}, s{t+3}, 2752
s_sub_u32 s{t+5}, s{sCOL}, 15
s_lshl_b32 s{t+5}, s{t+5}, 7
s_lshl_b32 s{t+6}, s{sH}, 10
s_add_u32 s{t+5}, s{t+5}, s{t+6}
s_cmp_eq_u32 s{sISQ}, 1
s_cselect_b32 s{t+4}, s{t+5}, s{t+4}
s_cselect_b32 s{t+3}, 3072, s{t+3}
v_lshlrev_b32 v{vT+4}, 4, v{vT+1}
v_add_u32 v{vT+4}, s{t+4}, v{vT+4}
v_cmp_gt_u32 vcc, s{t+3}, v{vT+4}
v_mad_u32_u24 v{vSO}, v{vT}, s{t+1}, v{vT+4}
v_mov_b32 v{vT+7}, {OOB}
v_cndmask_b32 v{vSO}, v{vT+7}, v{vSO}, vcc
s_mul_i32 s{t+2}, s{sRB}, s{sKWS}
s_cmp_lt_u32 s{sRB}, 8
s_cselect_b32 s{t+2}, s{t+2}, {OOB}
s_lshl_b32 s{t+1}, s{t+1}, 3""")
for a in range(8):
    I(f'buffer_load_dwordx4 v[{vSD+4*a}:{vSD+4*a+3}], v{vSO}, {srd(SSL)}, s{t+2} offen{NTW}', 'SC')
    if a < 7: I(f's_add_u32 s{t+2}, s{t+2}, s{t+1}')
I(f'v_mov_b32 v136, 0\nglobal_load_dwordx2 v[138:139], v136, s[20:21] sc1', 'NC')
def nonce_get():
    k.wait_vm('NC')
    L = newlbl('np'); D = newlbl('npd')
    I(f's_mov_b32 s{t+4}, 0')
    k.label(L)
    I(f"""v_readfirstlane_b32 s{sN}, v138
v_readfirstlane_b32 s{sN+1}, v139
s_add_u32 s{t+4}, s{t+4}, 1
s_cmp_lg_u64 s[{sN}:{sN+1}], 0
s_cbranch_scc1 {D}
s_sleep 8""")
    sv = list(k.vm)
    I(f"""global_load_dwordx2 v[138:139], v136, s[20:21] sc1
s_waitcnt vmcnt(0)
s_cmp_lt_u32 s{t+4}, 0x20000
s_cbranch_scc1 {L}""")
    k.vm = sv
    k.label(D)
def p2_params(kqreg):
    I(f"""s_cmp_eq_u32 s{kqreg}, 0
s_cselect_b32 s{SW2}, s8, s16
s_cselect_b32 s{SW2+1}, s9, s17
s_mov_b32 s{SW2+2}, {1376*1024}
s_cmov_b32 s{SW2+2}, {512*1024}
s_mov_b32 s{SW2+3}, 0x20000
s_cselect_b32 s{sNV}, 32, 29
s_cselect_b32 s{t}, 29, 0
s_mul_i32 s{sBROW}, s{kqreg}, 29
s_add_u32 s{sBROW}, s{sBROW}, s{t}
s_sub_u32 s{sBROW}, s{sBROW}, 29
s_cmp_eq_u32 s{kqreg}, 3
s_cselect_b32 s{sNV}, 28, s{sNV}
s_lshl_b32 s{sLB2}, s{kqreg}, 11""")
p2_params(sH)
I(f"""v_and_b32 v{vT+4}, 4, v{vT}
v_and_b32 v{vT+5}, 1, v{vT}
v_add_u32 v{vT+4}, v{vT+4}, v{vT+5}
v_bfe_u32 v{vT+5}, v{VLANE}, 2, 1
v_lshl_add_u32 v{vT+4}, v{vT+5}, 1, v{vT+4}
v_lshlrev_b32 v{vT+4}, 10, v{vT+4}
v_bfe_u32 v{vT+5}, v{vT}, 1, 1
v_lshl_add_u32 v{vT+4}, v{vT+5}, 6, v{vT+4}
v_and_b32 v{vT+5}, 3, v{VLANE}
v_lshl_add_u32 v{vT+4}, v{vT+5}, 4, v{vT+4}
s_lshl_b32 s{t}, s{sCB2}, 7
v_add_u32 v{vB2}, s{t}, v{vT+4}
s_mul_i32 s{sPOS}, s{sCB2}, {OPT['rot']}
s_and_b32 s{sPOS}, s{sPOS}, 31""")

SIGMA = [13,14,15,16,17,18, 0,1,2,3,4,5, 6, 7,8,9,10,11,12]
SIGMA += SIGMA[:13]
def b2_dma(i, tag):
    I(f"""s_add_u32 s{t}, s{sBROW}, s{sPOS}
s_lshl_b32 s{t}, s{t}, 14
s_cmp_lt_u32 s{sPOS}, s{sNV}
s_cselect_b32 s{t}, s{t}, {OOB}
s_add_u32 m0, s{sLB2}, {SIGMA[i]*8192}
s_add_u32 s{t+1}, s{t}, 8192
buffer_load_dwordx4 v{vB2}, {srd(SW2)}, s{t} offen lds{NTB}
s_add_u32 m0, s{sLB2}, {SIGMA[i]*8192 + 1024}
s_add_u32 s{sPOS}, s{sPOS}, 1
buffer_load_dwordx4 v{vB2}, {srd(SW2)}, s{t+1} offen lds{NTB}
s_and_b32 s{sPOS}, s{sPOS}, 31""", tag)

def row_stats():
    k.wait_vm('SR')
    vA = 66
    for a in range(3):
        for d in range(4):
            D = vRD + 4*a + d
            I(f'v_lshlrev_b32 v72, 16, v{D}\nv_and_b32 v73, 0xffff0000, v{D}')
            if d == 0:
                I(f'v_add_f32 v{vA+2*a}, v72, v73\nv_mul_f32 v{vA+2*a+1}, v72, v72\nv_fmac_f32 v{vA+2*a+1}, v73, v73')
            else:
                I(f'v_add_f32 v{vA+2*a}, v{vA+2*a}, v72\nv_fmac_f32 v{vA+2*a+1}, v72, v72\nv_add_f32 v{vA+2*a}, v{vA+2*a}, v73\nv_fmac_f32 v{vA+2*a+1}, v73, v73')
    for step in ('row_shr:1 row_mask:0xf bank_mask:0xf bound_ctrl:0', 'row_shr:2 row_mask:0xf bank_mask:0xf bound_ctrl:0',
                 'row_shr:4 row_mask:0xf bank_mask:0xf bound_ctrl:0', 'row_shr:8 row_mask:0xf bank_mask:0xf bound_ctrl:0',
                 'row_bcast:15 row_mask:0xa bank_mask:0xf', 'row_bcast:31 row_mask:0xc bank_mask:0xf'):
        for i in range(6): I(f'v_add_f32_dpp v{vA+i}, v{vA+i}, v{vA+i} {step}')
    I(f"""s_lshl_b32 s{t}, s{sROW}, 4
s_add_u32 s{t}, s{t}, {W_RS}
s_cmp_lt_u32 s{sROW}, 2048
s_cselect_b32 s{t}, s{t}, {OOB}
v_mov_b32 v74, {OOB}
v_cmp_eq_u32 vcc, 63, v{VLANE}
v_cndmask_b32 v74, v74, 0, vcc
s_mov_b32 s{t+1}, {f32(1/512)}
s_mov_b32 s{t+2}, {f32(1e-5)}""")
    for a in range(3):
        G = 76 + 4*a
        I(f"""v_mul_f32 v{G}, s{t+1}, v{vA+2*a}
v_mul_f32 v{G+1}, s{t+1}, v{vA+2*a+1}
v_fma_f32 v{G+1}, -v{G}, v{G}, v{G+1}
v_max_f32 v{G+1}, 0, v{G+1}
v_add_f32 v{G+1}, s{t+2}, v{G+1}
v_mov_b32 v{G+2}, s{sN}
v_mov_b32 v{G+3}, s{sN+1}
buffer_store_dwordx4 v[{G}:{G+3}], v74, {srd(SWS)}, s{t} offen offset:{16*a} sc1""", 'PUB')

def col_stats():
    k.wait_vm('SC')
    vA = 90
    for a in range(8):
        for d in range(4):
            D = vSD + 4*a + d
            if a == 0:
                I(f'v_lshlrev_b32 v{vA+2*d}, 16, v{D}\nv_and_b32 v{vA+2*d+1}, 0xffff0000, v{D}')
            else:
                I(f'v_lshlrev_b32 v72, 16, v{D}\nv_and_b32 v73, 0xffff0000, v{D}\nv_add_f32 v{vA+2*d}, v{vA+2*d}, v72\nv_add_f32 v{vA+2*d+1}, v{vA+2*d+1}, v73')
    for e in range(4): I(f'v_permlane32_swap_b32 v{vA+e}, v{vA+e+4}')
    for e in range(4): I(f'v_add_f32 v{vA+e}, v{vA+e}, v{vA+e+4}')
    for e in range(2): I(f'v_permlane16_swap_b32 v{vA+e}, v{vA+e+2}')
    for e in range(2): I(f'v_add_f32 v{vA+e}, v{vA+e}, v{vA+e+2}')
    for e in range(2): I(f'v_add_f32_dpp v{vA+8+e}, v{vA+e}, v{vA+e} row_ror:8 row_mask:0xf bank_mask:0xf')
    I(f"""v_mov_b32 v{vA+10}, s{sN}
v_mov_b32 v{vA+11}, s{sN+1}
v_lshrrev_b32 v72, 4, v{VLANE}
v_lshl_add_u32 v72, v{vT+1}, 2, v72
v_lshlrev_b32 v72, 4, v72
v_and_b32 v73, 8, v{VLANE}
v_cmp_eq_u32 vcc, 0, v73
v_mov_b32 v73, {OOB}
v_cndmask_b32 v72, v73, v72, vcc
s_lshl_b32 s{t}, s{sCOL}, 14
s_lshl_b32 s{t+1}, s{sRB}, 11
s_add_u32 s{t}, s{t}, s{t+1}
s_lshl_b32 s{t+1}, s{sH}, 9
s_add_u32 s{t}, s{t}, s{t+1}
s_add_u32 s{t}, s{t}, {W_CSP}
s_cmp_lt_u32 s{sRB}, 8
s_cselect_b32 s{t}, s{t}, {OOB}
buffer_store_dwordx4 v[{vA+8}:{vA+11}], v72, {srd(SWS)}, s{t} offen sc1""", 'PUB')

vCL = 104
def collect_setup():
    I(f"""s_and_b32 s{t}, s{sH}, 1
s_lshl_b32 s{t}, s{t}, 10
s_lshr_b32 s{t+1}, s{sH}, 1
s_lshl_b32 s{t+1}, s{t+1}, 13
s_add_u32 s{t}, s{t}, s{t+1}
s_lshl_b32 s{t+1}, s{sCOL}, 14
s_add_u32 s{t}, s{t}, s{t+1}
s_add_u32 s{t}, s{t}, {W_CSP}
v_add_u32 v124, s{t}, v{vL16}
s_lshl_b32 s{t}, s{sH}, 6
v_add_u32 v126, s{t}, v{VLANE}
s_mul_i32 s{t}, s{sRB}, 192
s_lshl_b32 s{t+1}, s{sISQ}, 4
s_sub_i32 s{t}, s{t}, s{t+1}
v_add_u32 v125, s{t}, v126
s_add_u32 s{t+1}, s{t+1}, 192
v_cmp_gt_u32 vcc, s{t+1}, v126
s_mov_b64 s[{t+2}:{t+3}], vcc
v_cmp_gt_u32 vcc, 2048, v125
s_and_b64 s[{t+8}:{t+9}], vcc, s[{t+2}:{t+3}]
v_lshlrev_b32 v125, 4, v125
v_add_u32 v125, {W_RS}, v125
v_mov_b32 v127, {OOB}
v_cndmask_b32 v125, v127, v125, s[{t+8}:{t+9}]""".replace('v_cmp_gt_u32 vcc, 2048, v125', 'v_mov_b32 v127, 2048\nv_cmp_gt_u32 vcc, v127, v125'))
sVAL = t + 8
def collect_loads(tag):
    for p in range(4):
        if p < 2: I(f'buffer_load_dwordx4 v[{vCL+4*p}:{vCL+4*p+3}], v124, {srd(SWS)}, 0 offen offset:{p*2048} sc1', tag)
        else: I(f's_movk_i32 s{t}, {p*2048}\nbuffer_load_dwordx4 v[{vCL+4*p}:{vCL+4*p+3}], v124, {srd(SWS)}, s{t} offen sc1', tag)
    I(f'buffer_load_dwordx4 v[{vCL+16}:{vCL+19}], v125, {srd(SWS)}, 0 offen sc1', tag)
def collect_check(ok):
    I(f"""v_cmp_eq_u64 vcc, s[{sN}:{sN+1}], v[{vCL+18}:{vCL+19}]
s_orn2_b64 s[{t+2}:{t+3}], vcc, s[{sVAL}:{sVAL+1}]""")
    for p in range(4):
        I(f"""v_cmp_eq_u64 vcc, s[{sN}:{sN+1}], v[{vCL+4*p+2}:{vCL+4*p+3}]
s_and_b64 s[{t+2}:{t+3}], s[{t+2}:{t+3}], vcc""")
    I(f's_cmp_eq_u64 s[{t+2}:{t+3}], -1\ns_cbranch_scc1 {ok}')
def collect_finish():
    k.wait_vm('CL')
    ok = newlbl('clok'); L = newlbl('clre')
    collect_check(ok)
    I(f's_mov_b32 s{t+4}, 0')
    k.label(L)
    sv = list(k.vm)
    I('s_sleep 4')
    collect_loads(None)
    I(f's_waitcnt vmcnt(0)\ns_add_u32 s{t+4}, s{t+4}, 1')
    collect_check(ok)
    I(f's_cmp_lt_u32 s{t+4}, 0x20000\ns_cbranch_scc1 {L}')
    k.vm = sv
    k.label(ok)
    I(f"""v_add_f32 v{vCL}, v{vCL}, v{vCL+4}
v_add_f32 v{vCL+1}, v{vCL+1}, v{vCL+5}
v_add_f32 v{vCL+8}, v{vCL+8}, v{vCL+12}
v_add_f32 v{vCL+9}, v{vCL+9}, v{vCL+13}
v_add_f32 v{vCL}, v{vCL}, v{vCL+8}
v_add_f32 v{vCL+1}, v{vCL+1}, v{vCL+9}
s_and_b32 s{t}, s{sH}, 1
s_lshl_b32 s{t}, s{t}, 9
s_add_u32 s{t}, s{t}, {L_CS}
v_lshlrev_b32 v127, 3, v{VLANE}
v_add_u32 v127, s{t}, v127""")
    R = vCL + 16
    I(f"""v_cndmask_b32 v{R}, 0, v{R}, s[{sVAL}:{sVAL+1}]
v_cndmask_b32 v{R+2}, 1.0, v{R+1}, s[{sVAL}:{sVAL+1}]
v_rsq_f32 v{R+1}, v{R+2}
s_cmp_eq_u32 s{sISQ}, 1
s_mov_b32 s{t}, {f32(-LOG2E)}
s_cmov_b32 s{t}, {f32(0.25*LOG2E)}
v_mul_f32 v{R+3}, s{t}, v{R+1}
v_lshlrev_b32 v128, 4, v126
v_add_u32 v128, {L_AOS}, v128
v_lshlrev_b32 v129, 2, v126
v_add_u32 v129, {L_SM}, v129
ds_write_b128 v128, v[{R}:{R+3}]
ds_write_b32 v129, v{R}
ds_write_b32 v129, v{R+1} offset:1024""")
    S = newlbl('csw')
    I(f's_cmp_ge_u32 s{sH}, 2\ns_cbranch_scc1 {S}\nds_write_b64 v127, v[{vCL}:{vCL+1}]')
    k.label(S)
def collect_add():
    I(f'v_mov_b32 v136, {L_NONCE}\nds_write_b64 v136, v[138:139]')
    S = newlbl('csa')
    I(f's_cmp_lt_u32 s{sH}, 2\ns_cbranch_scc1 {S}\nds_add_f32 v127, v{vCL}\nds_add_f32 v127, v{vCL+1} offset:4')
    k.label(S)

def b2_touch():
    I(f"""s_lshl_b32 s{t}, s{sSLOTID}, 2
s_add_u32 s{t}, s{t}, s{sH}
s_mul_i32 s{t}, s{t}, 43*256
v_lshlrev_b32 v130, 7, v{VLANE}
v_add_u32 v130, s{t}, v130""")
    mk_srd(SSL, 16, 1376*1024)
    I(f"""v_cmp_gt_u32 vcc, 22, v{VLANE}
v_add_u32 v131, 8192, v130
v_mov_b32 v132, {OOB}
v_cndmask_b32 v131, v132, v131, vcc
buffer_load_dword v133, v130, {srd(SSL)}, 0 offen{NTB}
buffer_load_dword v134, v131, {srd(SSL)}, 0 offen{NTB}""", 'TB')
    I(f"""s_lshl_b32 s{t}, s{sSLOTID}, 2
s_add_u32 s{t}, s{t}, s{sH}
s_lshl_b32 s{t}, s{t}, 12
v_and_b32 v130, 31, v{VLANE}
v_lshlrev_b32 v130, 7, v130
v_add_u32 v130, s{t}, v130""")
    mk_srd(SSL, 8, 512*1024)
    I(f'buffer_load_dword v135, v130, {srd(SSL)}, 0 offen{NTB}', 'TB')

def hbar(st, lg=None):
    stamp(9 + 2*st)
    k.wait_vm(f'D{st}', lg)
    stamp(10 + 2*st)
    I('s_barrier')

stamp(1)
hbar(0); stamp(2)
hbar(1); stage_dma(3); nonce_get(); row_stats()
hbar(2); stage_dma(4); col_stats()
hbar(3); stage_dma(5)
if OPT['touch_b2']: b2_touch()
collect_setup()
hbar(4); stage_dma(6)
hbar(5); stage_dma(7); collect_loads('CL')
hbar(6)
for i in range(0, 6): b2_dma(i, 'B2')
collect_finish()
hbar(7, 0)
for i in range(6, 12): b2_dma(i, 'B2')
collect_add()
I('s_waitcnt lgkmcnt(0)\ns_barrier')
stamp(3)
for i in range(12, 19): b2_dma(i, 'B2')
I('s_waitcnt vmcnt(0)')
k.vm_reset()
stamp(4)

k.label('L_P2')
ACC, BR, BD, AW, VA1, VA2, VL16, VXR = 0, 32, 136, 152, 240, 243, 246, 250
NAW = 22
k.c('---- phase 2 setup')
I(f"""s_lshr_b32 s{t+4}, s{sWAVE}, 2
s_lshl_b32 s{t+5}, s{sRB2}, 1
s_add_u32 s{t+5}, s{t+5}, s{t+4}
s_mul_i32 s{t+5}, s{t+5}, 118
s_add_u32 s{t+5}, s{t+5}, s{sBROW}
s_cmp_eq_u32 s{sH}, 0
s_cselect_b32 s{t+6}, 0, 32
s_add_u32 s{sABASE}, s{t+5}, s{t+6}
s_cmp_eq_u32 s{sH}, 0
s_cselect_b32 s{t+6}, 10, 9
s_movk_i32 s{t+7}, 1024
s_cmov_b32 s{t+7}, 512
v_lshrrev_b32 v1, 5, v{VLANE}
v_lshlrev_b32 v1, s{t+6}, v1
v_bfe_u32 v2, v{VLANE}, 2, 1
v_lshl_add_u32 v1, v2, 7, v1
v_bfe_u32 v2, v{VLANE}, 3, 1
v_lshl_add_u32 v1, v2, 6, v1
v_bfe_u32 v2, v{VLANE}, 4, 1
v_lshl_add_u32 v1, v2, 5, v1
v_and_b32 v2, 3, v{VLANE}
v_lshl_add_u32 v1, v2, 3, v1
v_add_u32 v{VA1}, s{sLB2}, v1
v_add_u32 v{VA1+1}, 0x10000, v{VA1}
v_add_u32 v{VA1+2}, 0x20000, v{VA1}
v_add_u32 v{VA2}, s{t+7}, v{VA1}
v_add_u32 v{VA2+1}, s{t+7}, v{VA1+1}
v_add_u32 v{VA2+2}, s{t+7}, v{VA1+2}
v_lshlrev_b32 v{VL16}, 4, v{VLANE}""")
VOO = 248
I(f"""s_lshl_b32 s{t}, s{sRB2}, 6
s_lshl_b32 s{t+1}, s{sWAVE}, 3
s_add_u32 s{t}, s{t}, s{t+1}
v_lshrrev_b32 v1, 3, v{VLANE}
v_add_u32 v1, s{t}, v1
v_lshlrev_b32 v1, 10, v1
v_and_b32 v2, 7, v{VLANE}
v_lshl_add_u32 v1, v2, 4, v1
s_lshl_b32 s{t}, s{sCB2}, 7
v_add_u32 v{VOO}, s{t}, v1
buffer_load_dwordx4 v[{VXR}:{VXR+3}], v{VOO}, {srd(SX)}, 0 offen""")
VP = AW
I(f"""s_mul_i32 s{t}, s{sRB2}, 86
s_lshr_b32 s{t}, s{t}, 8
s_mul_i32 s{t}, s{t}, 23
s_mov_b32 s{t+1}, 0x0904000f
s_mov_b32 s{t+2}, 0x05050407
s_lshl_b32 s{t+3}, s{sH}, 3
s_lshr_b32 s{t+1}, s{t+1}, s{t+3}
s_lshr_b32 s{t+2}, s{t+2}, s{t+3}
s_and_b32 s{t+1}, s{t+1}, 0xff
s_and_b32 s{t+2}, s{t+2}, 0xff
s_add_u32 s{t}, s{t}, s{t+1}
v_lshrrev_b32 v1, 2, v{VLANE}
v_min_u32 v1, s{t+2}, v1
v_add_u32 v1, s{t}, v1
v_lshlrev_b32 v1, 7, v1
v_and_b32 v2, 3, v{VLANE}
v_lshl_add_u32 v1, v2, 4, v1
v_add_u32 v{VP}, {W_FL}, v1
s_barrier""")
def tr_reads(i, dst):
    off = SIGMA[i] * 8192; r = off >> 16; off &= 0xffff
    for ct in range(2):
        I(f'ds_read_b64_tr_b16 v[{dst+4*ct}:{dst+4*ct+1}], v{VA1+r} offset:{off+ct*256}')
        I(f'ds_read_b64_tr_b16 v[{dst+4*ct+2}:{dst+4*ct+3}], v{VA2+r} offset:{off+ct*256}')
for i in range(13): tr_reads(i, BR + 8*i)
I('s_waitcnt lgkmcnt(0)\ns_barrier')
stamp(5)
I(f's_cmp_lt_u32 s{sWAVE}, 4\ns_cbranch_scc1 L_NOREFILL')
for i in range(19, 32): b2_dma(i, None)
k.label('L_NOREFILL')
I(f's_mov_b32 s{t+4}, 0')
k.label('L_POLL')
I(f"""buffer_load_dwordx2 v[{VP+2}:{VP+3}], v{VP}, {srd(SWS)}, 0 offen sc1
s_add_u32 s{t+4}, s{t+4}, 1
s_waitcnt vmcnt(0)
v_cmp_eq_u64 vcc, s[{sN}:{sN+1}], v[{VP+2}:{VP+3}]
s_cmp_eq_u64 vcc, -1
s_cbranch_scc1 L_POLLED
s_sleep 2
s_cmp_lt_u32 s{t+4}, 0x20000
s_cbranch_scc1 L_POLL""")
k.label('L_POLLED')
k.vm_reset()
stamp(6)
I(f's_mul_i32 s{sPOS}, s{sCB2}, {OPT["rot"]}\ns_and_b32 s{sPOS}, s{sPOS}, 31')
def a_load(i):
    d = AW + 4 * (i % NAW)
    I(f"""s_add_u32 s{t}, s{sABASE}, s{sPOS}
s_lshl_b32 s{t}, s{t}, 10
s_cmp_lt_u32 s{sPOS}, s{sNV}
s_cselect_b32 s{t}, s{t}, {OOB}
s_add_u32 s{sPOS}, s{sPOS}, 1
buffer_load_dwordx4 v[{d}:{d+3}], v{VL16}, {srd(SAF)}, s{t} offen sc1
s_and_b32 s{sPOS}, s{sPOS}, 31""", f'A{i}')
for i in range(NAW): a_load(i)
for i in range(32):
    if i + 1 == 19: I('s_barrier')
    if 13 <= i + 1 < 32: tr_reads(i + 1, BD + 8 * ((i + 1) & 1))
    b = BR + 8*i if i < 13 else BD + 8 * (i & 1)
    a = AW + 4 * (i % NAW)
    k.wait_vm(f'A{i}', (4 if i + 1 < 32 else 0) if i >= 13 else None)
    for ct in range(2):
        c_ = '0' if i == 0 else f'v[{ACC+16*ct}:{ACC+16*ct+15}]'
        I(f'v_mfma_f32_32x32x16_bf16 v[{ACC+16*ct}:{ACC+16*ct+15}], v[{b+4*ct}:{b+4*ct+3}], v[{a}:{a+3}], {c_}')
    if i + NAW < 32: a_load(i + NAW)
stamp(7)
k.c('---- reduction + final epilogue')
mk_srd(SOUT, 18, 2048*1024)
I(f"""s_mul_i32 s{t}, s{sH}, 17408
s_lshr_b32 s{t+1}, s{sWAVE}, 2
s_mul_i32 s{t+1}, s{t+1}, {32*272}
s_add_u32 s{t}, s{t}, s{t+1}
s_movk_i32 s{t+2}, 272
v_and_b32 v40, 31, v{VLANE}
v_mul_u32_u24 v40, s{t+2}, v40
v_lshrrev_b32 v41, 5, v{VLANE}
v_lshl_add_u32 v40, v41, 4, v40
v_add_u32 v40, s{t}, v40
s_mul_i32 s{t}, s{sWAVE}, {8*272}
v_lshrrev_b32 v41, 3, v{VLANE}
v_mul_u32_u24 v41, s{t+2}, v41
v_and_b32 v42, 7, v{VLANE}
v_lshl_add_u32 v41, v42, 5, v41
v_add_u32 v41, s{t}, v41
s_barrier""")
for ct in range(2):
    for i2 in range(4):
        r = ACC + 16*ct + 4*i2
        I(f'ds_write_b128 v40, v[{r}:{r+3}] offset:{ct*128 + i2*32}')
I('s_waitcnt lgkmcnt(0)\ns_barrier')
R = 48
for q in (1, 2, 3, 0):
    for hlf in range(2):
        I(f'ds_read_b128 v[{R+8*q+4*hlf}:{R+8*q+4*hlf+3}], v41 offset:{q*17408 + hlf*16}')
I(f's_mov_b32 s{t}, {f32(-LOG2E)}\ns_mov_b32 s{t+1}, {f32(-LOG2E)}\ns_mov_b32 s{t+2}, 1.0\ns_mov_b32 s{t+3}, 1.0')
X = 88
for d in range(4): I(f'v_lshlrev_b32 v{X+2*d}, 16, v{VXR+d}\nv_and_b32 v{X+2*d+1}, 0xffff0000, v{VXR+d}')
F, E = R + 8, 96
I('s_waitcnt lgkmcnt(4)')
for p in range(4): I(f'v_pk_add_f32 v[{F+2*p}:{F+2*p+1}], v[{F+2*p}:{F+2*p+1}], v[{F+8+2*p}:{F+8+2*p+1}]')
I('s_waitcnt lgkmcnt(2)')
for p in range(4): I(f'v_pk_add_f32 v[{F+2*p}:{F+2*p+1}], v[{F+2*p}:{F+2*p+1}], v[{F+16+2*p}:{F+16+2*p+1}]')
for p in range(4): I(f'v_pk_mul_f32 v[{E+2*p}:{E+2*p+1}], v[{F+2*p}:{F+2*p+1}], s[{t}:{t+1}]')
for e in range(8): I(f'v_exp_f32 v{E+e}, v{E+e}')
for p in range(4): I(f'v_pk_add_f32 v[{E+2*p}:{E+2*p+1}], v[{E+2*p}:{E+2*p+1}], s[{t+2}:{t+3}]')
for e in range(8): I(f'v_rcp_f32 v{E+e}, v{E+e}')
I('s_waitcnt lgkmcnt(0)')
for p in range(4): I(f'v_pk_mul_f32 v[{F+2*p}:{F+2*p+1}], v[{F+2*p}:{F+2*p+1}], v[{R+2*p}:{R+2*p+1}]')
for p in range(4): I(f'v_pk_fma_f32 v[{F+2*p}:{F+2*p+1}], v[{F+2*p}:{F+2*p+1}], v[{E+2*p}:{E+2*p+1}], v[{X+2*p}:{X+2*p+1}]')
for p in range(4): I(f'v_cvt_pk_bf16_f32 v{E+8+p}, v{F+2*p}, v{F+2*p+1}')
I(f'buffer_store_dwordx4 v[{E+8}:{E+11}], v{VOO}, {srd(SOUT)}, 0 offen')
if OPT['diag']:
    I('s_waitcnt vmcnt(0)')
    stamp(8)
    I(f"""s_lshl_b32 s{t}, s2, 3
s_add_u32 s{t}, s{t}, s{sWAVE}
s_lshl_b32 s{t}, s{t}, 8
s_add_u32 s{t}, s{t}, {W_DIAG}
v_lshlrev_b32 v1, 2, v{VLANE}
buffer_store_dword v{VDIAG}, v1, {srd(SWS)}, s{t} offen""")
    if OPT['diag'] == 2:
        I(f"""s_cmp_lg_u32 s2, {OPT.get('dw', 0)}
s_cbranch_scc1 L_END
s_and_b32 s{t}, s{sWAVE}, 3
s_cmp_lg_u32 s{t}, 0
s_cbranch_scc1 L_END
s_cmp_eq_u32 s{sWAVE}, 0
s_cselect_b32 s{t}, 8, 44
s_cselect_b32 s{t+1}, 9, 5
v_add_u32 v1, s{t}, v1
v_cmp_gt_u32 vcc, s{t+1}, v{VLANE}
s_and_saveexec_b64 s[{t+2}:{t+3}], vcc
global_store_dword v1, v{VDIAG}, s[20:21]""")
if OPT.get('padto'):
    k.label('L_PAD')
    I(f"""s_memrealtime s[{t}:{t+1}]
s_waitcnt lgkmcnt(0)
s_sub_u32 s{t}, s{t}, s100
s_cmp_lt_u32 s{t}, {OPT['padto']}
s_cbranch_scc1 L_PAD""")
k.label('L_END')
I('s_endpgm')

k.label('L_C')
k.ins.clear(); k.vm_reset()
I('s_waitcnt lgkmcnt(0)')
stamp(0)
NW = newlbl('nw')
I(f"""s_or_b32 s{t}, s2, s{sWAVE}
s_cmp_lg_u32 s{t}, 0
s_cbranch_scc1 {NW}
s_memrealtime s[{t+2}:{t+3}]
s_waitcnt lgkmcnt(0)
s_or_b32 s{t+2}, s{t+2}, 1
v_mov_b32 v2, s{t+2}
v_mov_b32 v3, s{t+3}
v_mov_b32 v4, 0
global_store_dwordx2 v4, v[2:3], s[20:21] sc1""")
k.label(NW)
mk_srd(SX, 4, 2048*1024); mk_srd(SWS, 22, WS_REC); mk_srd(SAF, 22, AF_BYTES)
p2_params(sH)
I(f's_cmp_eq_u32 s{sISQ}, 1\ns_cbranch_scc1 L_CQ')

def publish_flag():
    I(f"""s_mul_i32 s{t}, s{sRB}, 23
s_add_u32 s{t}, s{t}, s{sCOL}
s_lshl_b32 s{t}, s{t}, 7
s_lshl_b32 s{t+1}, s{sWAVE}, 4
s_add_u32 s{t}, s{t}, s{t+1}
s_add_u32 s{t}, s{t}, {W_FL}
v_mov_b32 v1, {OOB}
v_cmp_eq_u32 vcc, 0, v{VLANE}
v_cndmask_b32 v1, v1, 0, vcc
v_mov_b32 v4, {L_NONCE}
ds_read_b64 v[2:3], v4
s_waitcnt vmcnt(0) lgkmcnt(0)
v_readfirstlane_b32 s{sN}, v2
v_readfirstlane_b32 s{sN+1}, v3
buffer_store_dwordx2 v[2:3], v1, {srd(SWS)}, s{t} offen sc1""")
    stamp(4)
    I('s_branch L_P2')

sSL, sIT = t + 12, t + 13
def next_slot():
    I(f"""s_add_u32 s{sSL}, s{sSL}, {SLOT}
s_cmp_eq_u32 s{sSL}, {3*SLOT}
s_cselect_b32 s{sSL}, 0, s{sSL}""")

k.c('---- C FFN')
XF, WF, XAb, XA, WAb, WA = 144, 168, 192, 196, 200, 201
I(f"""s_lshr_b32 s{t}, s{sWAVE}, 1
s_and_b32 s{t+1}, s{sWAVE}, 1
s_mul_i32 s{t+2}, s{t}, {96*128}
v_and_b32 v150, 31, v{VLANE}
v_bfe_u32 v151, v{VLANE}, 1, 3
v_lshrrev_b32 v152, 5, v{VLANE}
v_xor_b32 v151, v151, v152
v_lshlrev_b32 v150, 7, v150
v_add_u32 v150, s{t+2}, v150""")
for j in range(4):
    I(f'v_xor_b32 v153, {2*j}, v151\nv_lshl_add_u32 v{XAb+j}, v153, 4, v150\nv_mov_b32 v{XA+j}, v{XAb+j}')
I(f"""v_bfe_u32 v150, v{VLANE}, 2, 2
v_lshl_add_u32 v150, v152, 3, v150
v_mul_u32_u24 v150, 192, v150
v_bfe_u32 v151, v{VLANE}, 4, 1
v_mul_u32_u24 v151, 12320, v151
v_add_u32 v150, v150, v151
v_and_b32 v151, 3, v{VLANE}
v_lshl_add_u32 v150, v151, 3, v150
s_mul_i32 s{t+2}, s{t+1}, 96
s_add_u32 s{t+2}, s{t+2}, 24576
v_add_u32 v{WAb}, s{t+2}, v150
v_mov_b32 v{WA}, v{WAb}""")
I(f'v_mov_b32 v{vB2}, 0')
for r in range(144): I(f'v_mov_b32 v{r}, 0')
I(f's_mov_b32 s{sSL}, 0\ns_mov_b32 s{sIT}, 0')
def ffn_reads(u):
    buf = u & 1; out = []
    for a in range(3):
        d = XF + 12*buf + 4*a
        out.append(f'ds_read_b128 v[{d}:{d+3}], v{XA+u} offset:{a*4096}')
    for b in range(3):
        d = WF + 12*buf + 4*b
        for s_ in range(2):
            out.append(f'ds_read_b64_tr_b16 v[{d+2*s_}:{d+2*s_+1}], v{WA} offset:{(16*u+4*s_)*192 + b*32}')
    return out
stamp(1)
I('s_barrier')
stamp(2)
for r in ffn_reads(0): I(r)
k.label('L_FLOOP')
m0_ = k.mark()
for u in range(4):
    I('s_waitcnt lgkmcnt(0)')
    rd = ffn_reads((u + 1) & 3)
    first = 0
    if u == 3: first = 2
    n = 0
    for a in range(3):
        for b in range(3):
            ac = (a*3 + b) * 16; x = XF + 12*(u & 1) + 4*a; w = WF + 12*(u & 1) + 4*b
            I(f'v_mfma_f32_32x32x16_bf16 v[{ac}:{ac+15}], v[{w}:{w+3}], v[{x}:{x+3}], v[{ac}:{ac+15}]')
            if u == 3 and n == 0:
                next_slot()
                for j in range(4): I(f'v_add_u32 v{XA+j}, s{sSL}, v{XAb+j}')
            if u == 3 and n == 1:
                I(f'v_add_u32 v{WA}, s{sSL}, v{WAb}\ns_add_u32 s{sIT}, s{sIT}, 1\ns_barrier')
            if n >= first - (1 if u == 3 else 0):
                for _ in range(2):
                    if rd: I(rd.pop(0))
            n += 1
    assert not rd
I(f's_cmp_lt_u32 s{sIT}, 8\ns_cbranch_scc1 L_FLOOP')
k.check_backedge(m0_)
stamp(3)
k.c('---- FFN epilogue')
ST, CSB, EE, OUTR = 144, 156, 188, 196
VA_ = 204
I(f"""s_lshr_b32 s{t}, s{sWAVE}, 1
s_and_b32 s{t+1}, s{sWAVE}, 1
s_mul_i32 s{t+2}, s{t}, {96*16}
s_add_u32 s{t+2}, s{t+2}, {L_AOS}
v_and_b32 v{VA_}, 31, v{VLANE}
v_lshlrev_b32 v{VA_}, 4, v{VA_}
v_add_u32 v{VA_}, s{t+2}, v{VA_}
s_mul_i32 s{t+2}, s{t+1}, {48*4}
s_add_u32 s{t+2}, s{t+2}, {L_CS}
v_lshrrev_b32 v{VA_+1}, 5, v{VLANE}
v_lshlrev_b32 v{VA_+1}, 4, v{VA_+1}
v_add_u32 v{VA_+1}, s{t+2}, v{VA_+1}
v_lshlrev_b32 v{VA_+2}, 4, v{VLANE}
s_waitcnt lgkmcnt(0)""")
for a in range(3): I(f'ds_read_b128 v[{ST+4*a}:{ST+4*a+3}], v{VA_} offset:{a*512}')
def cs_reads(b):
    d = CSB + 16*(b & 1)
    for m in range(2):
        for i2 in range(2):
            I(f'ds_read_b128 v[{d+8*m+4*i2}:{d+8*m+4*i2+3}], v{VA_+1} offset:{m*512 + b*64 + i2*32}')
cs_reads(0)
I(f"""s_mul_i32 s{t+4}, s{sRB}, 6
s_mul_i32 s{t+2}, s{t}, 3
s_add_u32 s{t+4}, s{t+4}, s{t+2}
s_mul_i32 s{t+4}, s{t+4}, 118
s_mul_i32 s{t+5}, s{sCOL}, 6
s_mul_i32 s{t+2}, s{t+1}, 3
s_add_u32 s{t+5}, s{t+5}, s{t+2}
s_add_u32 s{t+4}, s{t+4}, s{t+5}
s_add_u32 s{t+4}, s{t+4}, 32
s_lshl_b32 s{t+4}, s{t+4}, 10""")
tile = 0
for b in range(3):
    if b < 2: cs_reads(b + 1)
    I(f's_waitcnt lgkmcnt({4 if b < 2 else 0})')
    cg_ = CSB + 16*(b & 1); cu_ = cg_ + 8
    I(f's_add_u32 s{t+6}, s{t+5}, {b}\ns_add_u32 s{t+7}, s{t+4}, {b*1024}\ns_cmp_lt_u32 s{t+6}, 86\ns_cselect_b32 s{t+7}, s{t+7}, {OOB}')
    for a in range(3):
        G = (a*3 + b) * 16; U = G + 8; s0 = ST + 4*a; o = OUTR + 4*(tile & 1)
        P = lambda r, p: f'v[{r+2*p}:{r+2*p+1}]'
        for p in range(4): I(f'v_pk_fma_f32 {P(G,p)}, {P(cg_,p)}, v[{s0}:{s0+1}], {P(G,p)} op_sel_hi:[1,0,1] neg_lo:[0,1,0] neg_hi:[0,1,0]')
        for p in range(4): I(f'v_pk_mul_f32 {P(EE,p)}, {P(G,p)}, v[{s0+2}:{s0+3}] op_sel:[0,1] op_sel_hi:[1,1]')
        for p in range(4): I(f'v_pk_fma_f32 {P(U,p)}, {P(cu_,p)}, v[{s0}:{s0+1}], {P(U,p)} op_sel_hi:[1,0,1] neg_lo:[0,1,0] neg_hi:[0,1,0]')
        for e in range(8): I(f'v_exp_f32 v{EE+e}, v{EE+e}')
        for p in range(4): I(f'v_pk_mul_f32 {P(U,p)}, {P(U,p)}, {P(G,p)}')
        for p in range(4): I(f'v_pk_fma_f32 {P(EE,p)}, {P(EE,p)}, v[{s0+2}:{s0+3}], v[{s0+2}:{s0+3}] op_sel_hi:[1,0,0]')
        for e in range(8): I(f'v_rcp_f32 v{EE+e}, v{EE+e}')
        for p in range(4): I(f'v_pk_mul_f32 {P(U,p)}, {P(U,p)}, {P(EE,p)}')
        for p in range(4): I(f'v_cvt_pk_bf16_f32 v{o+p}, v{U+2*p}, v{U+2*p+1}')
        I(f'buffer_store_dwordx4 v[{o}:{o+3}], v{VA_+2}, {srd(SAF)}, s{t+7} offen sc1')
        if a < 2: I(f's_add_u32 s{t+7}, s{t+7}, {118*1024}')
        tile += 1
publish_flag()

k.label('L_CQ')
k.ins.clear(); k.vm_reset()
k.c('---- C QKV')
QA, KA, VA = 0, 48, 100
XS, XD, WQ = 152, 196, 212
XAb, XA, WAb, WA = 236, 238, 240, 241
I(f"""v_and_b32 v160, 15, v{VLANE}
v_bfe_u32 v161, v{VLANE}, 1, 3
v_lshrrev_b32 v162, 4, v{VLANE}
v_xor_b32 v161, v161, v162
v_lshlrev_b32 v163, 7, v160
v_lshl_add_u32 v{XAb}, v161, 4, v163
v_xor_b32 v{XAb+1}, 64, v{XAb}
v_mov_b32 v{XA}, v{XAb}
v_mov_b32 v{XA+1}, v{XAb+1}
v_bfe_u32 v163, v{VLANE}, 2, 2
v_lshl_add_u32 v163, v162, 3, v163
v_lshlrev_b32 v163, 7, v163
v_bfe_u32 v164, v{VLANE}, 3, 1
v_and_b32 v165, 1, v162
v_lshl_or_b32 v164, v165, 1, v164
v_xor_b32 v164, s{sWAVE}, v164
v_lshl_add_u32 v163, v164, 5, v163
v_and_b32 v164, 3, v{VLANE}
v_lshl_add_u32 v163, v164, 3, v163
v_add_u32 v{WAb}, 26624, v163
v_mov_b32 v{WA}, v{WAb}""")
for r in range(152): I(f'v_mov_b32 v{r}, 0')
I(f's_mov_b32 s{sSL}, 0\ns_mov_b32 s{sIT}, 0')
lg = []
def xreg(tau, j): return XS + 4*tau if tau < 11 else XD + 8*(j & 1) + 4*(tau - 11)
def rd_x(tau, j):
    d = xreg(tau, j); I(f'ds_read_b128 v[{d}:{d+3}], v{XA+j} offset:{tau*2048}'); lg.append(('x', tau, j))
def rd_w(m, s_, j):
    d = WQ + 12*j + 4*m + 2*s_; I(f'ds_read_b64_tr_b16 v[{d}:{d+1}], v{WA} offset:{m*8192 + (32*j+4*s_)*128}'); lg.append(('w', m, s_, j))
def lg_wait(tags):
    idx = max((i for i, x in enumerate(lg) if x in tags), default=None)
    if idx is None: return
    n = min(15, len(lg) - 1 - idx)
    I(f's_waitcnt lgkmcnt({n})')
    del lg[:len(lg) - n]
def sched(tau):
    r = []
    if tau < 11: r.append(('x', tau))
    extra = {1: [('w',1,0),('w',1,1)], 2: [('w',2,0),('w',2,1)], 3: [('w',0,0),('w',0,1)], 4: [('x',11)], 5: [('x',12)]}
    return r + extra.get(tau, [])
def do_reads(lst, j):
    for x in lst:
        if x[0] == 'x': rd_x(x[1], j)
        else: rd_w(x[1], x[2], j)
stamp(1)
I('s_barrier')
stamp(2)
for tau in range(13): do_reads(sched(tau), 0)
entry = list(lg)
k.label('L_QLOOP')
m0_ = k.mark()
for j in range(2):
    for tau in range(13):
        if j == 1 and tau == 0:
            I('s_waitcnt lgkmcnt(0)'); lg.clear()
        else:
            lg_wait([('x', tau, j)] + ([('w',1,0,j),('w',1,1,j),('w',2,0,j),('w',2,1,j)] if tau == 0 else []) + ([('w',0,0,j),('w',0,1,j)] if tau == 1 else []))
        x = xreg(tau, j); w = WQ + 12*j
        X_ = f'v[{x}:{x+3}]'
        I(f'v_mfma_f32_16x16x32_bf16 v[{KA+4*tau}:{KA+4*tau+3}], v[{w+4}:{w+7}], {X_}, v[{KA+4*tau}:{KA+4*tau+3}]')
        if j == 1 and tau == 0:
            next_slot()
            I(f'v_add_u32 v{XA}, s{sSL}, v{XAb}\nv_add_u32 v{WA}, s{sSL}, v{WAb}')
        I(f'v_mfma_f32_16x16x32_bf16 v[{VA+4*tau}:{VA+4*tau+3}], {X_}, v[{w+8}:{w+11}], v[{VA+4*tau}:{VA+4*tau+3}]')
        if j == 1 and tau == 0:
            I(f'v_add_u32 v{XA+1}, s{sSL}, v{XAb+1}\ns_add_u32 s{sIT}, s{sIT}, 1\ns_barrier')
        if tau >= 1:
            q = QA + 4*(tau - 1)
            I(f'v_mfma_f32_16x16x32_bf16 v[{q}:{q+3}], v[{w}:{w+3}], {X_}, v[{q}:{q+3}]')
        do_reads(sched(tau), 1 - j)
assert lg == entry, (lg, entry)
I(f's_cmp_lt_u32 s{sIT}, 8\ns_cbranch_scc1 L_QLOOP')
k.check_backedge(m0_)
stamp(3)
k.c('---- QKV epilogue (attention)')
KB, VB, QB = 152, 178, 204
AS, SMR, CSQ, CSK, CSV = 208, 216, 224, 228, 232
SEL, ONES, VAD = 234, 238, 242
sPAR, sOA, sOB, sVA_, sVB_ = sM, sM+2, sM+4, sM+6, sM+8
I(f"""s_waitcnt lgkmcnt(0)
v_and_b32 v246, 15, v{VLANE}
v_lshrrev_b32 v247, 4, v{VLANE}
v_lshlrev_b32 v{VAD}, 4, v246
v_add_u32 v{VAD}, {L_AOS}, v{VAD}
v_lshlrev_b32 v{VAD+1}, 4, v247
s_lshl_b32 s{t}, s{sWAVE}, 6
s_add_u32 s{t}, s{t}, {L_CS}
v_add_u32 v{VAD+2}, s{t}, v{VAD+1}
v_add_u32 v{VAD+1}, {L_SM}, v{VAD+1}
v_lshlrev_b32 v248, 2, v246
v_add_u32 v248, s{t}, v248
ds_read_b128 v[{CSQ}:{CSQ+3}], v{VAD+2}
ds_read_b128 v[{CSK}:{CSK+3}], v{VAD+2} offset:256
ds_read_b32 v{CSV}, v248 offset:512
v_lshlrev_b32 v{VAD+3}, 4, v{VLANE}
v_and_b32 v248, 1, v{VLANE}
v_cmp_eq_u32 s[{sPAR}:{sPAR+1}], 1, v248
v_lshl_add_u32 v249, v247, 2, v248
v_cmp_le_u32 s[{sOA}:{sOA+1}], v249, v246
v_add_u32 v249, 2, v249
v_cmp_le_u32 s[{sOB}:{sOB+1}], v249, v246
s_cmp_eq_u32 s{sRB}, 0
s_cselect_b64 s[{sVA_}:{sVA_+1}], s[{sOA}:{sOA+1}], -1
s_cselect_b64 s[{sVB_}:{sVB_+1}], s[{sOB}:{sOB+1}], -1
v_mov_b32 v246, 0x0c0c0100
v_mov_b32 v247, 0x01000c0c
v_cndmask_b32 v246, v246, v247, s[{sPAR}:{sPAR+1}]
v_mov_b32 v247, 0x0c0c0302
v_mov_b32 v248, 0x03020c0c
v_cndmask_b32 v247, v247, v248, s[{sPAR}:{sPAR+1}]
v_mov_b32 v248, 0x0c0c0c0c
v_cndmask_b32 v{SEL}, v246, v248, s[{sOA}:{sOA+1}]
v_cndmask_b32 v{SEL+1}, v247, v248, s[{sOB}:{sOB+1}]
v_cndmask_b32 v{SEL+2}, v248, v246, s[{sOA}:{sOA+1}]
v_cndmask_b32 v{SEL+3}, v248, v247, s[{sOB}:{sOB+1}]""")
for i in range(4): I(f'v_mov_b32 v{ONES+i}, 0x3f803f80')
I(f"""s_mul_i32 s{t+4}, s{sRB}, {6*118}
s_sub_u32 s{t+5}, s{sCOL}, 15
s_lshl_b32 s{t+5}, s{t+5}, 2
s_add_u32 s{t+4}, s{t+4}, s{t+5}
s_add_u32 s{t+4}, s{t+4}, s{sWAVE}
s_lshl_b32 s{t+4}, s{t+4}, 10""")
NEG = 'neg_lo:[0,1,0] neg_hi:[0,1,0]'
def st_reads(tau):
    a = AS + 4*(tau & 1)
    I(f'ds_read_b128 v[{a}:{a+3}], v{VAD} offset:{tau*256}')
def smr_reads(tau):
    I(f'ds_read_b128 v[{SMR}:{SMR+3}], v{VAD+1} offset:{tau*64}\nds_read_b128 v[{SMR+4}:{SMR+7}], v{VAD+1} offset:{1024+tau*64}')
st_reads(0); smr_reads(0)
for tau in range(13):
    a = AS + 4*(tau & 1)
    if tau < 12: st_reads(tau + 1)
    I(f's_waitcnt lgkmcnt({1 if tau < 12 else 0})')
    Kc, Vc = KA + 4*tau, VA + 4*tau
    for p in range(2): I(f'v_pk_fma_f32 v[{Vc+2*p}:{Vc+2*p+1}], v[{SMR+2*p}:{SMR+2*p+1}], v[{CSV}:{CSV+1}], v[{Vc+2*p}:{Vc+2*p+1}] op_sel_hi:[1,0,1] {NEG}')
    for p in range(2): I(f'v_pk_fma_f32 v[{Kc+2*p}:{Kc+2*p+1}], v[{CSK+2*p}:{CSK+2*p+1}], v[{a}:{a+1}], v[{Kc+2*p}:{Kc+2*p+1}] op_sel_hi:[1,0,1] {NEG}')
    for p in range(2): I(f'v_pk_mul_f32 v[{Vc+2*p}:{Vc+2*p+1}], v[{Vc+2*p}:{Vc+2*p+1}], v[{SMR+4+2*p}:{SMR+4+2*p+1}]')
    if tau < 12: smr_reads(tau + 1)
    for p in range(2): I(f'v_pk_mul_f32 v[{Kc+2*p}:{Kc+2*p+1}], v[{Kc+2*p}:{Kc+2*p+1}], v[{a}:{a+1}] op_sel:[0,1] op_sel_hi:[1,1]')
    if tau >= 1:
        Qc = QA + 4*(tau - 1)
        for p in range(2): I(f'v_pk_fma_f32 v[{Qc+2*p}:{Qc+2*p+1}], v[{CSQ+2*p}:{CSQ+2*p+1}], v[{a}:{a+1}], v[{Qc+2*p}:{Qc+2*p+1}] op_sel_hi:[1,0,1] {NEG}')
    for p in range(2): I(f'v_cvt_pk_bf16_f32 v{VB+2*tau+p}, v{Vc+2*p}, v{Vc+2*p+1}')
    for p in range(2): I(f'v_cvt_pk_bf16_f32 v{KB+2*tau+p}, v{Kc+2*p}, v{Kc+2*p+1}')
    if tau >= 1:
        for p in range(2): I(f'v_cvt_pk_bf16_f32 v{Qc+p}, v{Qc+2*p}, v{Qc+2*p+1}')
        I(f'v_mov_b32 v{Qc+2}, v{a+3}')
for g in range(3):
    ts = list(range(4*g, 4*g + 4))
    def SO(i): return 48 + 24*i
    def SP(i): return SO(i) + 4
    def PP(i): return SO(i) + 8
    def OO(i): return SO(i) + 12
    def LL(i): return SO(i) + 16
    def TT(i): return SO(i) + 20
    for i, tq in enumerate(ts):
        q = QA + 4*tq; tau = tq + 1
        I(f'v_mfma_f32_16x16x16_bf16 v[{SO(i)}:{SO(i)+3}], v[{KB+2*tau}:{KB+2*tau+1}], v[{q}:{q+1}], 0')
        I(f'v_mfma_f32_16x16x16_bf16 v[{SP(i)}:{SP(i)+3}], v[{KB+2*tau-2}:{KB+2*tau-1}], v[{q}:{q+1}], 0')
    par = f's[{sPAR}:{sPAR+1}]'
    def each(fmt):
        for i, tq in enumerate(ts): I(fmt(i, tq))
    each(lambda i, tq: f'v_cndmask_b32 v{SO(i)}, v{SO(i)}, v{SO(i)+1}, {par}\nv_cndmask_b32 v{SO(i)+2}, v{SO(i)+2}, v{SO(i)+3}, {par}\n'
                       f'v_cndmask_b32 v{SP(i)}, v{SP(i)}, v{SP(i)+1}, {par}\nv_cndmask_b32 v{SP(i)+2}, v{SP(i)+2}, v{SP(i)+3}, {par}')
    each(lambda i, tq: f'v_cndmask_b32 v{SO(i)}, v{SP(i)}, v{SO(i)}, s[{sOA}:{sOA+1}]\nv_cndmask_b32 v{SO(i)+1}, v{SP(i)+2}, v{SO(i)+2}, s[{sOB}:{sOB+1}]')
    if g == 0:
        I(f'v_mov_b32 v{TT(0)}, {f32(-1e30)}\nv_cndmask_b32 v{SO(0)}, v{TT(0)}, v{SO(0)}, s[{sVA_}:{sVA_+1}]\nv_cndmask_b32 v{SO(0)+1}, v{TT(0)}, v{SO(0)+1}, s[{sVB_}:{sVB_+1}]')
    each(lambda i, tq: f'v_max_f32 v{TT(i)}, v{SO(i)}, v{SO(i)+1}\nv_max_f32 v{TT(i)+1}, v{SO(i)}, v{SO(i)+1}')
    each(lambda i, tq: f'v_permlane32_swap_b32 v{TT(i)}, v{TT(i)+1}')
    each(lambda i, tq: f'v_max_f32 v{TT(i)+2}, v{TT(i)}, v{TT(i)+1}\nv_max_f32 v{TT(i)+3}, v{TT(i)}, v{TT(i)+1}')
    each(lambda i, tq: f'v_permlane16_swap_b32 v{TT(i)+2}, v{TT(i)+3}')
    each(lambda i, tq: f'v_max_f32 v{TT(i)}, v{TT(i)+2}, v{TT(i)+3}')
    each(lambda i, tq: f'v_sub_f32 v{SO(i)}, v{SO(i)}, v{TT(i)}\nv_sub_f32 v{SO(i)+1}, v{SO(i)+1}, v{TT(i)}')
    each(lambda i, tq: f'v_mul_f32 v{SO(i)}, v{SO(i)}, v{QA+4*tq+2}\nv_mul_f32 v{SO(i)+1}, v{SO(i)+1}, v{QA+4*tq+2}')
    each(lambda i, tq: f'v_exp_f32 v{SO(i)}, v{SO(i)}\nv_exp_f32 v{SO(i)+1}, v{SO(i)+1}')
    each(lambda i, tq: f'v_cvt_pk_bf16_f32 v{TT(i)}, v{SO(i)}, v{SO(i)+1}')
    each(lambda i, tq: '\n'.join(f'v_perm_b32 v{PP(i)+e}, v{TT(i)}, v{TT(i)}, v{SEL+e}' for e in range(4)))
    each(lambda i, tq: f'v_mfma_f32_16x16x32_bf16 v[{LL(i)}:{LL(i)+3}], v[{ONES}:{ONES+3}], v[{PP(i)}:{PP(i)+3}], 0\n'
                       f'v_mfma_f32_16x16x32_bf16 v[{OO(i)}:{OO(i)+3}], v[{VB+2*tq}:{VB+2*tq+3}], v[{PP(i)}:{PP(i)+3}], 0')
    each(lambda i, tq: f'v_rcp_f32 v{TT(i)}, v{LL(i)}')
    each(lambda i, tq: '\n'.join(f'v_pk_mul_f32 v[{OO(i)+2*p}:{OO(i)+2*p+1}], v[{OO(i)+2*p}:{OO(i)+2*p+1}], v[{TT(i)}:{TT(i)+1}] op_sel_hi:[1,0]' for p in range(2)))
    for pr in range(2):
        i0, i1 = 2*pr, 2*pr + 1; o = SP(i0)
        I(f'v_cvt_pk_bf16_f32 v{o}, v{OO(i0)}, v{OO(i0)+1}\nv_cvt_pk_bf16_f32 v{o+1}, v{OO(i0)+2}, v{OO(i0)+3}\n'
          f'v_cvt_pk_bf16_f32 v{o+2}, v{OO(i1)}, v{OO(i1)+1}\nv_cvt_pk_bf16_f32 v{o+3}, v{OO(i1)+2}, v{OO(i1)+3}')
    for pr in range(2):
        o = SP(2*pr)
        I(f'v_permlane16_swap_b32 v{o}, v{o+2}\nv_permlane16_swap_b32 v{o+1}, v{o+3}')
    for pr in range(2):
        o = SP(2*pr)
        I(f'buffer_store_dwordx4 v[{o}:{o+3}], v{VAD+3}, {srd(SAF)}, s{t+4} offen sc1\ns_add_u32 s{t+4}, s{t+4}, {118*1024}')
publish_flag()
k.label('L_CODE_END')
I('s_endpgm')

hdr = open('cdna_kernels/' + NAME + '.s.ref').read().split('; Override launch')[0]
txt = hdr + f"""; @launch grid=(256,1,1) block=(512,1,1) lds=163840
.amdgcn_target "amdgcn-amd-amdhsa--gfx950"
.text
.globl {NAME}_kernel
.p2align 8
.type {NAME}_kernel,@function
{NAME}_kernel:
""" + k.text() + f""".section .rodata,"a"
.p2align 6
.amdhsa_kernel {NAME}_kernel
  .amdhsa_next_free_vgpr 256
  .amdhsa_next_free_sgpr 102
  .amdhsa_accum_offset 256
  .amdhsa_group_segment_fixed_size 0
  .amdhsa_kernarg_size 80
  .amdhsa_user_sgpr_count 2
  .amdhsa_user_sgpr_kernarg_segment_ptr 1
  .amdhsa_system_sgpr_workgroup_id_x 1
.end_amdhsa_kernel
"""
open(sys.argv[1], 'w').write(txt)
print('written', sys.argv[1], 'lines', txt.count('\n'), 'nops', k.nops)
```

```python
import sys, os
from asmlib import K

NAME = "recurrent_scan__sliding_local_dilated__swiglu_ffn__prompt"
OPT = dict(diag=0, nt_x=0, nt_w=0, nt_b2=0, rot=2, rotb=4, latin=1, naw=5, defer=0, psleep=2, cbshift=0, pmask=1, outst=0, hst=0, tb0=99, tb1=99, tb2=99, ct=2, hold=0, nr0=4, nr5=0, nr6=0, nawc=5, ald=0, pbar=0, hsleep=1, cprio=0, sigat=8)
for a in sys.argv[2:]:
    k_, v_ = a.split('='); OPT[k_] = int(v_)

SLOT = 51200
MISC = 155648
L_AOS, L_SM, L_SR, L_CS, L_SCR = MISC, MISC + 4096, MISC + 5120, MISC + 6144, MISC + 7168
L_FULL = L_AOS + 4048
L_FREE = L_AOS + 4064
L_NONCE = L_AOS + 4080
AF_BYTES = 64 * 118 * 1024
W_RS, W_CSP, W_FL, W_DIAG = 0x800000, 0x810000, 0x880000, 0x900000
WS_REC = 0x1000000
OOB = 0x7f000000
LOG2E = 1.4426950408889634
import struct
def f32(x): return '0x%08x' % struct.unpack('<I', struct.pack('<f', x))[0]

SX, SWA, SWB, SWS, SAF, SW2, SSL, SOUT = 24, 28, 32, 36, 40, 44, 48, 52
sWAVE, sRB, sCOL, sISQ, sH, sRB2, sCB2, sSLOTID = 56, 57, 58, 59, 60, 61, 62, 63
sN = 64
sT = 66
sLW = 80
sKWS, sC, sKW, sX7M, sX7S, sPOS = 86, 87, 88, 89, 90, 91
sNV, sBROW, sABASE, sLB2 = 92, 93, 94, 95
sST = 96
sS0 = 3
sM = 80
VLANE, VDIAG = 254, 255
def srd(i): return f's[{i}:{i+3}]'

k = K()
OPT_OUTST = ['', ' sc1', ' nt', ' sc0 sc1'][OPT['outst']]
OPT_ALD = [' sc1', '', ' sc0 sc1', ' nt'][OPT['ald']]
OPT_HST = [' sc1', ' sc0 sc1', ' sc1 nt'][OPT['hst']]
I = k.I
def stamp(i):
    if not OPT['diag']: return
    I(f's_memrealtime s[{sST}:{sST+1}]\ns_memtime s[{sST+2}:{sST+3}]\ns_waitcnt lgkmcnt(0)\nv_writelane_b32 v{VDIAG}, s{sST}, {i}\nv_writelane_b32 v{VDIAG}, s{sST+2}, {i+32}')

def mk_srd(d, p, rec):
    I(f's_mov_b32 s{d}, s{p}\ns_mov_b32 s{d+1}, s{p+1}\ns_mov_b32 s{d+2}, {rec}\ns_mov_b32 s{d+3}, 0x20000')

lblc = [0]
def newlbl(p):
    lblc[0] += 1; return f'L_{p}_{lblc[0]}'

def nonce_poll():
    L = newlbl('np'); D = newlbl('npd')
    I(f's_mov_b32 s{sT}, 0')
    k.label(L)
    I(f"""s_load_dwordx2 s[{sN}:{sN+1}], s[20:21], 0 glc
s_add_u32 s{sT}, s{sT}, 1
s_waitcnt lgkmcnt(0)
s_cmp_lg_u64 s[{sN}:{sN+1}], 0
s_cbranch_scc1 {D}
s_sleep 2
s_cmp_lt_u32 s{sT}, 0x40000
s_cbranch_scc1 {L}""")
    k.label(D)

k.label('KSTART')
I(f"""s_cmp_ge_u32 s2, 256
s_cbranch_scc1 L_END
s_load_dwordx16 s[4:19], s[0:1], 0
s_load_dwordx4 s[20:23], s[0:1], 64
v_lshrrev_b32 v1, 6, v0
v_and_b32 v{VLANE}, 63, v0
v_readfirstlane_b32 s{sWAVE}, v1""")
if OPT.get('padto'): I('s_memrealtime s[100:101]')
if OPT['diag']: I(f'v_mov_b32 v{VDIAG}, 0')
T0 = [18,19,20,4,5,10,31,0]; T1 = [21,22,11,16,17,31,31,0]
def pk(b): return '0x%08x' % (b[0] | b[1] << 8 | b[2] << 16 | b[3] << 24)
t = sT
I(f"""s_and_b32 s{t}, s2, 7
s_lshr_b32 s{sSLOTID}, s2, 3
s_and_b32 s{t+1}, s{t}, 1
s_lshr_b32 s{t+2}, s{t}, 1
s_lshl_b32 s{sRB2}, s{t}, 2
s_lshr_b32 s{t+3}, s{sSLOTID}, 3
s_add_u32 s{sRB2}, s{sRB2}, s{t+3}
s_add_u32 s{sCB2}, s{sSLOTID}, {OPT['cbshift']}
s_and_b32 s{sCB2}, s{sCB2}, 7
s_mul_i32 s{t+3}, s{sSLOTID}, 52
s_lshr_b32 s{t+3}, s{t+3}, 8
s_mul_i32 s{t+4}, s{t+3}, 5
s_sub_u32 s{t+4}, s{sSLOTID}, s{t+4}
s_mul_i32 s{t+5}, s{t+1}, 6
s_add_u32 s{sRB}, s{t+4}, s{t+5}
s_mul_i32 s{t+5}, s{t+2}, 6
s_add_u32 s{sCOL}, s{t+5}, s{t+3}
s_lshl_b32 s{t+6}, s{t+1}, 1
s_add_u32 s{t+5}, s{t+5}, s{t+6}
s_add_u32 s{t+5}, s{t+5}, s{sSLOTID}
s_sub_u32 s{t+5}, s{t+5}, 30
s_cmp_eq_u32 s{t+1}, 0
s_mov_b32 s{t+6}, {pk(T1[:4])}
s_mov_b32 s{t+7}, {pk(T1[4:])}
s_cmov_b32 s{t+6}, {pk(T0[:4])}
s_cmov_b32 s{t+7}, {pk(T0[4:])}""")
I(f"""s_sub_u32 s{t+8}, s{sSLOTID}, 25
s_lshl_b32 s{t+8}, s{t+8}, 3
s_lshr_b64 s[{t+6}:{t+7}], s[{t+6}:{t+7}], s{t+8}
s_and_b32 s{t+6}, s{t+6}, 0xff
s_cmp_eq_u32 s{t+2}, 3
s_cselect_b32 s{t+5}, s{t+6}, s{t+5}
s_cselect_b32 s{t+7}, 25, 30
s_cmp_ge_u32 s{sSLOTID}, s{t+7}
s_cselect_b32 s{sCOL}, s{t+5}, s{sCOL}
s_cselect_b32 s{sRB}, 5, s{sRB}
s_cmp_eq_u32 s{sCOL}, 31
s_cselect_b32 s{sCOL}, 0, s{sCOL}
s_cselect_b32 s{sRB}, 11, s{sRB}
s_add_u32 s{t+5}, s{sCOL}, 1
s_cmp_ge_u32 s{sCOL}, 14
s_cselect_b32 s{sCOL}, s{t+5}, s{sCOL}
s_cmp_eq_u32 s{sCOL}, 23
s_cselect_b32 s{sCOL}, 14, s{sCOL}
s_cmp_ge_u32 s{sCOL}, 15
s_cselect_b32 s{sISQ}, 1, 0
s_and_b32 s{sH}, s{sWAVE}, 3""")
if OPT['latin']:
    I(f"""s_cmp_ge_u32 s{t+3}, 3
s_addc_u32 s{sS0}, s{t+3}, s{t+2}
s_cmp_ge_u32 s{t+4}, 3
s_addc_u32 s{sS0}, s{sS0}, s{t+4}
s_lshl_b32 s{t+1}, s{t+1}, 1
s_add_u32 s{sS0}, s{sS0}, s{t+1}
s_cmp_eq_u32 s{sRB}, 5
s_cselect_b32 s{sS0}, s{sCOL}, s{sS0}
s_and_b32 s{sS0}, s{sS0}, 7""")
else:
    I(f's_mov_b32 s{sS0}, 0')
I(f"""s_cmp_lt_u32 s{sWAVE}, 4
s_cbranch_scc1 L_C""")

vXo0, vXo1, vW, vL16, vB2 = 2, 3, 4, 7, 247
vT = 8
NTX = ' nt' if OPT['nt_x'] else ''
NTW = ' nt' if OPT['nt_w'] else ''
NTB = ' nt' if OPT['nt_b2'] else ''
k.c('---- H prologue')
I(f"""v_lshrrev_b32 v{vT}, 3, v{VLANE}
v_and_b32 v{vT+1}, 7, v{VLANE}
v_lshrrev_b32 v{vT+2}, 1, v{vT}
s_and_b32 s{t}, s{sH}, 1
s_lshl_b32 s{t+1}, s{t}, 2
v_or_b32 v{vT+3}, s{t+1}, v{vT+2}
v_xor_b32 v{vT+3}, v{vT+3}, v{vT+1}
v_lshlrev_b32 v{vT+3}, 4, v{vT+3}
s_mul_i32 s{t+2}, s{sRB}, 192
s_lshl_b32 s{t+3}, s{sISQ}, 4
s_sub_i32 s{t+2}, s{t+2}, s{t+3}
s_lshl_b32 s{t+3}, s{sH}, 3
s_add_i32 s{t+2}, s{t+2}, s{t+3}
s_add_i32 s{t+4}, s{t+2}, 32
v_add_u32 v{vXo1}, s{t+4}, v{vT}
v_lshlrev_b32 v{vXo1}, 10, v{vXo1}
v_add_u32 v{vXo1}, v{vXo1}, v{vT+3}
s_cmp_lt_i32 s{t+2}, 0
s_mov_b32 s{t+4}, -32768
s_cmov_b32 s{t+4}, 0x40000000
v_add_u32 v{vXo0}, s{t+4}, v{vXo1}
v_lshlrev_b32 v{vL16}, 4, v{VLANE}
s_cmp_eq_u32 s{sISQ}, 1
s_cbranch_scc1 L_HQ""")
I(f"""s_mul_i32 s{t+2}, s{sH}, {16*2752}
s_mul_i32 s{t+3}, s{sCOL}, 192
s_add_u32 s{t+2}, s{t+2}, s{t+3}
s_movk_i32 s{t+4}, 171
s_movk_i32 s{t+5}, 2752
s_sub_u32 s{t+6}, 2752, s{t+3}""")
for b in range(3):
    I(f"""v_add_u32 v{vT+4}, {64*b}, v{VLANE}
v_mul_u32_u24 v{vT+5}, s{t+4}, v{vT+4}
v_lshrrev_b32 v{vT+5}, 11, v{vT+5}
v_mul_u32_u24 v{vT+6}, 12, v{vT+5}
v_sub_u32 v{vT+6}, v{vT+4}, v{vT+6}
v_lshlrev_b32 v{vT+6}, 4, v{vT+6}
v_mad_u32_u24 v{vW+b}, v{vT+5}, s{t+5}, v{vT+6}
v_add_u32 v{vW+b}, s{t+2}, v{vW+b}
v_cmp_gt_u32 vcc, s{t+6}, v{vT+6}
v_mov_b32 v{vT+7}, {OOB}
v_cndmask_b32 v{vW+b}, v{vT+7}, v{vW+b}, vcc""")
I(f"""s_mul_i32 s{sLW}, s{sH}, 3072
s_add_u32 s{sLW}, s{sLW}, 24576
s_add_u32 s{sLW+1}, s{sLW}, 1024
s_add_u32 s{sLW+2}, s{sLW}, 2048
s_add_u32 s{sLW+3}, s{sLW}, 12320
s_add_u32 s{sLW+4}, s{sLW}, {12320+1024}
s_add_u32 s{sLW+5}, s{sLW}, {12320+2048}
s_mov_b32 s{sKWS}, {64*2752}
s_mov_b32 s{sC}, 0
s_mov_b32 s{sX7M}, {L_SCR}
s_mov_b32 s{sX7S}, {OOB}
s_waitcnt lgkmcnt(0)""")
mk_srd(SWA, 12, 512*2752); mk_srd(SWB, 14, 512*2752)
I('s_branch L_HJ')
k.label('L_HQ')
I(f"""v_and_b32 v{vT+4}, 1, v{vT+2}
s_lshl_b32 s{t+1}, s{t}, 1
v_or_b32 v{vT+4}, s{t+1}, v{vT+4}
v_lshlrev_b32 v{vT+4}, 1, v{vT+4}
v_xor_b32 v{vT+4}, v{vT+4}, v{vT+1}
v_lshlrev_b32 v{vT+4}, 4, v{vT+4}
s_movk_i32 s{t+5}, 3072
v_mad_u32_u24 v{vW}, v{vT}, s{t+5}, v{vT+4}
s_mul_i32 s{t+2}, s{sH}, {8*3072}
s_sub_u32 s{t+3}, s{sCOL}, 15
s_lshl_b32 s{t+3}, s{t+3}, 7
s_add_u32 s{t+2}, s{t+2}, s{t+3}
v_add_u32 v{vW}, s{t+2}, v{vW}
v_add_u32 v{vW+1}, 1024, v{vW}
v_add_u32 v{vW+2}, 2048, v{vW}
s_lshl_b32 s{sLW}, s{sH}, 10
s_add_u32 s{sLW}, s{sLW}, 26624
s_add_u32 s{sLW+1}, s{sLW}, 8192
s_add_u32 s{sLW+2}, s{sLW}, 16384
s_add_u32 s{sLW+3}, s{sLW}, 4096
s_add_u32 s{sLW+4}, s{sLW}, {4096+8192}
s_add_u32 s{sLW+5}, s{sLW}, {4096+16384}
s_mov_b32 s{sKWS}, {64*3072}
s_mov_b32 s{sC}, {32*3072}
s_lshl_b32 s{t+2}, s{sH}, 10
s_add_u32 s{t+2}, s{t+2}, {24*1024}
s_cmp_lt_u32 s{sH}, 2
s_cselect_b32 s{sX7M}, s{t+2}, {L_SCR}
s_mov_b32 s{sX7S}, {OOB}
s_cmov_b32 s{sX7S}, {5*32768}
s_waitcnt lgkmcnt(0)""")
mk_srd(SWA, 6, 512*3072); mk_srd(SWB, 6, 512*3072)
k.label('L_HJ')
mk_srd(SX, 4, 2048*1024)
I(f's_lshl_b32 s{t+10}, s{sH}, 10\ns_mov_b32 s{sKW}, 0\ns_cmp_eq_u32 s{sX7M}, {L_SCR}\ns_cselect_b32 s{t+11}, 0, 1')
sH1K, sX7R = t + 10, t + 11

sXK, sROT = t + 13, sPOS
VFL = 232
def signal_full(n):
    I(f'v_mov_b32 v237, {n}\nds_write_b32 v238, v237')
def spin(base, n):
    L = newlbl('sp'); D = newlbl('spd')
    I(f's_mov_b32 s{t+4}, 0')
    k.label(L)
    I(f"""ds_read_b128 v[{VFL}:{VFL+3}], v236 offset:{base - L_FULL}
s_add_u32 s{t+4}, s{t+4}, 1
s_waitcnt lgkmcnt(0)
v_min_u32 v{VFL}, v{VFL}, v{VFL+1}
v_min3_u32 v{VFL}, v{VFL}, v{VFL+2}, v{VFL+3}
v_cmp_gt_u32 vcc, {n}, v{VFL}
s_cmp_lt_u32 s{t+4}, 0x400000
s_cbranch_vccz {D}
s_sleep {OPT['hsleep']}
s_cbranch_scc1 {L}""")
    k.label(D)

def stage_dma(i, sig=None):
    base = (i % 3) * SLOT
    tag = f'D{i}'
    cnt = [0]
    if OPT.get('nodma') and i >= 3: return
    def after():
        cnt[0] += 1
        if sig is not None and cnt[0] == OPT['sigat']:
            stamp(9 + 2*(i-1)); k.wait_vm(f'D{i-1}'); signal_full(sig); stamp(10 + 2*(i-1))
    I(f"""s_add_u32 s{t+2}, s{sS0}, {i}
s_and_b32 s{t+2}, s{t+2}, 7
s_lshl_b32 s{sXK}, s{t+2}, 7
s_mul_i32 s{sKW}, s{t+2}, s{sKWS}""")
    for tt in range(6):
        I(f's_add_u32 m0, s{sH1K}, {base + tt*4096}')
        if tt <= 1: I(f's_nop 0\nbuffer_load_dwordx4 v{vXo0 if tt == 0 else vXo1}, {srd(SX)}, s{sXK} offen lds{NTX}', tag)
        else: I(f's_add_u32 s{t}, s{sXK}, {(tt-1)*32768}\nbuffer_load_dwordx4 v{vXo1}, {srd(SX)}, s{t} offen lds{NTX}', tag)
        after()
    I(f"""s_mul_i32 s{t}, s{sX7R}, {base}
s_add_u32 m0, s{t}, s{sX7M}
s_add_u32 s{t}, s{sX7S}, s{sXK}
buffer_load_dwordx4 v{vXo1}, {srd(SX)}, s{t} offen lds{NTX}""", tag)
    after()
    I(f's_add_u32 s{t+1}, s{sKW}, s{sC}')
    for j in range(6):
        I(f's_add_u32 m0, s{sLW+j}, {base}')
        I(f'buffer_load_dwordx4 v{vW + j%3}, {srd(SWA if j < 3 else SWB)}, s{sKW if j < 3 else t+1} offen lds{NTW}', tag)
        after()

stamp(0)
stage_dma(0)
I(f"""v_mov_b32 v236, {L_FULL}
s_lshl_b32 s{t}, s{sH}, 2
v_add_u32 v238, s{t}, v236
s_barrier""")
vRD, vSD = 20, 32
I(f"""s_mul_i32 s{t}, s{sRB}, 192
s_mul_i32 s{t+1}, s{sCOL}, 12
s_add_u32 s{t}, s{t}, s{t+1}
s_mul_i32 s{t+1}, s{sH}, 3
s_add_u32 s{t}, s{t}, s{t+1}
s_cmp_lt_u32 s{sCOL}, 16
s_cselect_b32 s{t+12}, s{t}, 0x100000
s_lshl_b32 s{t}, s{t+12}, 10""")
sROW = t + 12
for a_ in range(3):
    I(f'buffer_load_dwordx4 v[{vRD+4*a_}:{vRD+4*a_+3}], v{vL16}, {srd(SX)}, s{t} offen offset:{a_*1024}{NTX}', 'SR')
I(f'v_mov_b32 v18, 0\nglobal_load_dwordx2 v[16:17], v18, s[20:21] sc1', 'NC')
I(f"""s_getpc_b64 s[{t+2}:{t+3}]""")
k.label('L_PC')
I(f"""s_lshl_b32 s{t+4}, s{sSLOTID}, 10
v_and_b32 v{vT+4}, 7, v{VLANE}
v_lshlrev_b32 v{vT+4}, 7, v{vT+4}
v_add_u32 v{vT+4}, s{t+4}, v{vT+4}
v_min_u32 v{vT+4}, L_CODE_END-L_PC-4, v{vT+4}
global_load_dword v{vT+5}, v{vT+4}, s[{t+2}:{t+3}]""", 'CODE')
I(f"""s_lshr_b32 s{t}, s{sH}, 1
s_mul_i32 s{t}, s{t}, 12320
s_and_b32 s{t+1}, s{sH}, 1
s_lshl_b32 s{t+1}, s{t+1}, 7
s_add_u32 s{t}, s{t}, s{t+1}
s_add_u32 s{t}, s{t}, 24576
s_lshl_b32 s{t+1}, s{sH}, 13
s_add_u32 s{t+1}, s{t+1}, 26624
s_cmp_eq_u32 s{sISQ}, 1
s_cselect_b32 s{t}, s{t+1}, s{t}
s_movk_i32 s{t+1}, 192
s_cmov_b32 s{t+1}, 128
s_cselect_b32 s{t+2}, 2, 0
s_cselect_b32 s{t+3}, 64, 0
v_and_b32 v64, s{t+2}, v{vT}
v_xor_b32 v64, v64, v{vT+1}
v_lshlrev_b32 v64, 4, v64
v_mad_u32_u24 v64, v{vT}, s{t+1}, v64
v_add_u32 v64, s{t}, v64
v_xor_b32 v65, s{t+3}, v64
s_lshl_b32 s{t+1}, s{t+1}, 3
v_add_u32 v65, s{t+1}, v65
s_lshl_b32 s{t+5}, s{t+1}, 1""")
sSL2 = t + 5
I(f's_mov_b32 s{SSL}, s{sSL2}')
mk_srd(SWS, 22, WS_REC); mk_srd(SAF, 22, AF_BYTES)

def nonce_get():
    k.wait_vm('NC')
    L = newlbl('np'); D = newlbl('npd')
    I(f's_mov_b32 s{t+4}, 0')
    k.label(L)
    I(f"""v_readfirstlane_b32 s{sN}, v16
v_readfirstlane_b32 s{sN+1}, v17
s_add_u32 s{t+4}, s{t+4}, 1
s_cmp_lg_u64 s[{sN}:{sN+1}], 0
s_cbranch_scc1 {D}
s_sleep 8""")
    sv = list(k.vm)
    I(f"""global_load_dwordx2 v[16:17], v18, s[20:21] sc1
s_waitcnt vmcnt(0)
s_cmp_lt_u32 s{t+4}, 0x20000
s_cbranch_scc1 {L}""")
    k.vm = sv
    k.label(D)

def tab8(vals, dst, idx8):
    lo = sum(v << (8*i) for i, v in enumerate(vals[:4])); hi = sum(v << (8*i) for i, v in enumerate(vals[4:]))
    I(f"""s_mov_b32 s{t}, {lo}
s_mov_b32 s{t+1}, {hi}
s_lshr_b64 s[{t}:{t+1}], s[{t}:{t+1}], s{idx8}
s_and_b32 s{dst}, s{t}, 0xff""")
KBASE = [0, 16, 32, 47, 62, 76, 90, 104]
NSTEP = [16, 16, 15, 15, 14, 14, 14, 14]
PC0 = [15, 19, 0, 2, 5, 7, 9, 12]
PCN = [3, 3, 2, 2, 2, 2, 2, 2]
SWC = SSL
sBROWC, sNVC = 100, 101
def p2_params(helper):
    I(f's_lshl_b32 s{t+2}, s{sWAVE}, 3')
    tab8(KBASE, sABASE, t+2); tab8(NSTEP, sNV, t+2)
    if helper:
        mk_srd(SW2, 16, 1376*1024)
        I(f"""s_cmp_lt_u32 s{sH}, 2
s_cselect_b32 s{SWC}, s8, s16
s_cselect_b32 s{SWC+1}, s9, s17
s_mov_b32 s{SWC+2}, {1376*1024}
s_cmov_b32 s{SWC+2}, {512*1024}
s_mov_b32 s{SWC+3}, 0x20000
s_cselect_b32 s{t+3}, 0, 32
s_sub_u32 s{sBROW}, s{sABASE}, 32
s_lshl_b32 s{t+2}, s{sH}, 3""")
        tab8(KBASE, sBROWC, t+2); tab8(NSTEP, sNVC, t+2)
        I(f's_sub_u32 s{sBROWC}, s{sBROWC}, s{t+3}')
    I(f"""s_lshl_b32 s{sLB2}, s{sH}, 11
s_mul_i32 s{sROT}, s{sCB2}, {OPT['rot']}
s_mul_i32 s{t}, s{sRB2}, {OPT['rotb']}
s_add_u32 s{sROT}, s{sROT}, s{t}
s_mul_i32 s{t}, s{sRB2}, {2*118}
s_add_u32 s{sABASE}, s{sABASE}, s{t}""")

ACC, PK, VA1, VA2, VL16, VXR = 0, 64, 240, 243, 246, 250
HPK = 148
def p2_addr():
    I(f"""s_cmp_lt_u32 s{sWAVE}, 2
s_cselect_b32 s{t+6}, 10, 9
s_movk_i32 s{t+7}, 1024
s_cmov_b32 s{t+7}, 512
v_lshrrev_b32 v1, 5, v{VLANE}
v_lshlrev_b32 v1, s{t+6}, v1
v_bfe_u32 v0, v{VLANE}, 2, 1
v_lshl_add_u32 v1, v0, 7, v1
v_bfe_u32 v0, v{VLANE}, 3, 1
v_lshl_add_u32 v1, v0, 6, v1
v_bfe_u32 v0, v{VLANE}, 4, 1
v_lshl_add_u32 v1, v0, 5, v1
v_and_b32 v0, 3, v{VLANE}
v_lshl_add_u32 v1, v0, 3, v1
v_add_u32 v{VA1}, s{sLB2}, v1
v_add_u32 v{VA1+1}, 0x10000, v{VA1}
v_add_u32 v{VA1+2}, 0x20000, v{VA1}
v_add_u32 v{VA2}, s{t+7}, v{VA1}
v_add_u32 v{VA2+1}, s{t+7}, v{VA1+1}
v_add_u32 v{VA2+2}, s{t+7}, v{VA1+2}
v_lshlrev_b32 v{VL16}, 4, v{VLANE}""")
def b2_setup():
    p2_params(True)
    p2_addr()
    I(f"""v_and_b32 v{vT+4}, 4, v{vT}
v_and_b32 v{vT+5}, 1, v{vT}
v_add_u32 v{vT+4}, v{vT+4}, v{vT+5}
v_bfe_u32 v{vT+5}, v{VLANE}, 2, 1
v_lshl_add_u32 v{vT+4}, v{vT+5}, 1, v{vT+4}
v_lshlrev_b32 v{vT+4}, 10, v{vT+4}
v_bfe_u32 v{vT+5}, v{vT}, 1, 1
v_lshl_add_u32 v{vT+4}, v{vT+5}, 6, v{vT+4}
v_and_b32 v{vT+5}, 3, v{VLANE}
v_lshl_add_u32 v{vT+4}, v{vT+5}, 4, v{vT+4}
s_lshl_b32 s{t}, s{sCB2}, 7
v_add_u32 v{vB2}, s{t}, v{vT+4}""")

SIG_P = [13,14,15,16,17,18, 0,1,2,3,4,5, 3,4,5,3]
SIG_L = [6,7,8,9,10,11,12, 13,14,15,16,17,18, 0,1,2]
RAWL = [64 + 8*j for j in range(16)]
PKR = [64 + 8*j for j in range(6)] + [120 + 8*j for j in range(6)] + [192 + 8*j for j in range(4)]
HAW = [112, 168, 176, 184, 224]
def b2_off(step, own):
    I(f"""s_add_u32 s{t+2}, s{sROT}, {step}
s_and_b32 s{t+2}, s{t+2}, 15
s_add_u32 s{t}, s{sBROW if own else sBROWC}, s{t+2}
s_lshl_b32 s{t}, s{t}, 14
s_cmp_lt_u32 s{t+2}, s{sNV if own else sNVC}
s_cselect_b32 s{t}, s{t}, {OOB}
s_add_u32 s{t+1}, s{t}, 8192""")
def b2_dma(step, own, tag):
    sig = (SIG_P if own else SIG_L)[step]
    b2_off(step, own)
    I(f"""s_add_u32 m0, s{sLB2}, {sig*8192}
buffer_load_dwordx4 v{vB2}, {srd(SW2)}, s{t} offen lds{NTB}
s_add_u32 m0, s{sLB2}, {sig*8192 + 1024}
buffer_load_dwordx4 v{vB2}, {srd(SW2)}, s{t+1} offen lds{NTB}""", tag)
def b2_raw(step, own, d, tag):
    b2_off(step, own)
    sr = srd(SW2 if own else SWC)
    I(f"""buffer_load_dwordx4 v[{d}:{d+3}], v{vB2}, {sr}, s{t} offen{NTB}
buffer_load_dwordx4 v[{d+4}:{d+7}], v{vB2}, {sr}, s{t+1} offen{NTB}""", tag)
def b2_put(sig, d):
    I(f"""v_add_u32 v237, {sig*8192}, v231
ds_write_b128 v237, v[{d}:{d+3}]
ds_write_b128 v237, v[{d+4}:{d+7}] offset:1024""")
def tr_reads(sig, dst):
    off = sig * 8192; r = off >> 16; off &= 0xffff
    for ct in range(2):
        I(f'ds_read_b64_tr_b16 v[{dst+4*ct}:{dst+4*ct+1}], v{VA1+r} offset:{off+ct*256}')
        I(f'ds_read_b64_tr_b16 v[{dst+4*ct+2}:{dst+4*ct+3}], v{VA2+r} offset:{off+ct*256}')

def row_stats():
    k.wait_vm('SR')
    vA = 66
    for a in range(3):
        for d in range(4):
            D = vRD + 4*a + d
            I(f'v_lshlrev_b32 v72, 16, v{D}\nv_and_b32 v73, 0xffff0000, v{D}')
            if d == 0:
                I(f'v_add_f32 v{vA+2*a}, v72, v73\nv_mul_f32 v{vA+2*a+1}, v72, v72\nv_fmac_f32 v{vA+2*a+1}, v73, v73')
            else:
                I(f'v_add_f32 v{vA+2*a}, v{vA+2*a}, v72\nv_fmac_f32 v{vA+2*a+1}, v72, v72\nv_add_f32 v{vA+2*a}, v{vA+2*a}, v73\nv_fmac_f32 v{vA+2*a+1}, v73, v73')
    for step in ('row_shr:1 row_mask:0xf bank_mask:0xf bound_ctrl:0', 'row_shr:2 row_mask:0xf bank_mask:0xf bound_ctrl:0',
                 'row_shr:4 row_mask:0xf bank_mask:0xf bound_ctrl:0', 'row_shr:8 row_mask:0xf bank_mask:0xf bound_ctrl:0',
                 'row_bcast:15 row_mask:0xa bank_mask:0xf', 'row_bcast:31 row_mask:0xc bank_mask:0xf'):
        for i in range(6): I(f'v_add_f32_dpp v{vA+i}, v{vA+i}, v{vA+i} {step}')
    I(f"""s_lshl_b32 s{t}, s{sROW}, 4
s_add_u32 s{t}, s{t}, {W_RS}
s_cmp_lt_u32 s{sROW}, 2048
s_cselect_b32 s{t}, s{t}, {OOB}
v_mov_b32 v74, {OOB}
v_cmp_eq_u32 vcc, 63, v{VLANE}
v_cndmask_b32 v74, v74, 0, vcc
s_mov_b32 s{t+1}, {f32(1/512)}
s_mov_b32 s{t+2}, {f32(1e-5)}""")
    for a in range(3):
        G = 76 + 4*a
        I(f"""v_mul_f32 v{G}, s{t+1}, v{vA+2*a}
v_mul_f32 v{G+1}, s{t+1}, v{vA+2*a+1}
v_fma_f32 v{G+1}, -v{G}, v{G}, v{G+1}
v_max_f32 v{G+1}, 0, v{G+1}
v_add_f32 v{G+1}, s{t+2}, v{G+1}
v_mov_b32 v{G+2}, s{sN}
v_mov_b32 v{G+3}, s{sN+1}
buffer_store_dwordx4 v[{G}:{G+3}], v74, {srd(SWS)}, s{t} offen offset:{16*a} sc1""", 'PUB')

def slab_reads():
    for a in range(8):
        I(f'ds_read_b128 v[{vSD+4*a}:{vSD+4*a+3}], v{64 + (a & 1)}')
        if a & 1 and a < 7: I(f'v_add_u32 v64, s{SSL}, v64\nv_add_u32 v65, s{SSL}, v65')
    I('s_waitcnt lgkmcnt(0)')

def col_stats():
    vA = 90
    for a in range(8):
        for d in range(4):
            D = vSD + 4*a + d
            if a == 0:
                I(f'v_lshlrev_b32 v{vA+2*d}, 16, v{D}\nv_and_b32 v{vA+2*d+1}, 0xffff0000, v{D}')
            else:
                I(f'v_lshlrev_b32 v72, 16, v{D}\nv_and_b32 v73, 0xffff0000, v{D}\nv_add_f32 v{vA+2*d}, v{vA+2*d}, v72\nv_add_f32 v{vA+2*d+1}, v{vA+2*d+1}, v73')
    for e in range(4): I(f'v_permlane32_swap_b32 v{vA+e}, v{vA+e+4}')
    for e in range(4): I(f'v_add_f32 v{vA+e}, v{vA+e}, v{vA+e+4}')
    for e in range(2): I(f'v_permlane16_swap_b32 v{vA+e}, v{vA+e+2}')
    for e in range(2): I(f'v_add_f32 v{vA+e}, v{vA+e}, v{vA+e+2}')
    for e in range(2): I(f'v_add_f32_dpp v{vA+8+e}, v{vA+e}, v{vA+e} row_ror:8 row_mask:0xf bank_mask:0xf')
    I(f"""v_mov_b32 v{vA+10}, s{sN}
v_mov_b32 v{vA+11}, s{sN+1}
v_lshrrev_b32 v72, 4, v{VLANE}
v_lshl_add_u32 v72, v{vT+1}, 2, v72
v_lshlrev_b32 v72, 4, v72
v_and_b32 v73, 8, v{VLANE}
v_cmp_eq_u32 vcc, 0, v73
v_mov_b32 v73, {OOB}
v_cndmask_b32 v72, v73, v72, vcc
s_lshl_b32 s{t}, s{sCOL}, 14
s_lshl_b32 s{t+1}, s{sS0}, 11
s_add_u32 s{t}, s{t}, s{t+1}
s_lshl_b32 s{t+1}, s{sH}, 9
s_add_u32 s{t}, s{t}, s{t+1}
s_add_u32 s{t}, s{t}, {W_CSP}
buffer_store_dwordx4 v[{vA+8}:{vA+11}], v72, {srd(SWS)}, s{t} offen sc1""", 'PUB')

vCL = 4*2+2
vCL = 20
sVAL = t + 8
def collect_setup():
    I(f"""s_lshl_b32 s{t}, s{sH}, 9
s_lshl_b32 s{t+1}, s{sCOL}, 14
s_add_u32 s{t}, s{t}, s{t+1}
s_add_u32 s{t}, s{t}, {W_CSP}
v_and_b32 v40, 31, v{VLANE}
v_lshlrev_b32 v40, 4, v40
v_lshrrev_b32 v41, 5, v{VLANE}
v_lshl_add_u32 v40, v41, 13, v40
v_add_u32 v40, s{t}, v40
s_lshl_b32 s{t}, s{sH}, 6
v_add_u32 v42, s{t}, v{VLANE}
s_mul_i32 s{t}, s{sRB}, 192
s_lshl_b32 s{t+1}, s{sISQ}, 4
s_sub_i32 s{t}, s{t}, s{t+1}
v_add_u32 v41, s{t}, v42
s_add_u32 s{t+1}, s{t+1}, 192
v_cmp_gt_u32 vcc, s{t+1}, v42
s_mov_b64 s[{t+2}:{t+3}], vcc
v_mov_b32 v43, 2048
v_cmp_gt_u32 vcc, v43, v41
s_and_b64 s[{sVAL}:{sVAL+1}], vcc, s[{t+2}:{t+3}]
v_lshlrev_b32 v41, 4, v41
v_add_u32 v41, {W_RS}, v41
v_mov_b32 v43, {OOB}
v_cndmask_b32 v41, v43, v41, s[{sVAL}:{sVAL+1}]
v_lshlrev_b32 v44, 4, v42
v_add_u32 v44, {L_AOS}, v44
v_mov_b32 v43, {L_SCR}
v_cndmask_b32 v44, v43, v44, s[{t+2}:{t+3}]
v_lshlrev_b32 v45, 2, v42
v_add_u32 v45, {L_SM}, v45
s_lshl_b32 s{t}, s{sH}, 8
s_add_u32 s{t}, s{t}, {L_CS}
v_and_b32 v43, 31, v{VLANE}
v_lshlrev_b32 v43, 3, v43
v_add_u32 v43, s{t}, v43""")
def collect_loads(tag):
    for p in range(4):
        if p < 2: I(f'buffer_load_dwordx4 v[{vCL+4*p}:{vCL+4*p+3}], v40, {srd(SWS)}, 0 offen offset:{p*2048} sc1', tag)
        else: I(f's_movk_i32 s{t}, {p*2048}\nbuffer_load_dwordx4 v[{vCL+4*p}:{vCL+4*p+3}], v40, {srd(SWS)}, s{t} offen sc1', tag)
    I(f'buffer_load_dwordx4 v[{vCL+16}:{vCL+19}], v41, {srd(SWS)}, 0 offen sc1', tag)
def collect_check(ok):
    I(f"""v_cmp_eq_u64 vcc, s[{sN}:{sN+1}], v[{vCL+18}:{vCL+19}]
s_orn2_b64 s[{t+2}:{t+3}], vcc, s[{sVAL}:{sVAL+1}]""")
    for p in range(4):
        I(f"""v_cmp_eq_u64 vcc, s[{sN}:{sN+1}], v[{vCL+4*p+2}:{vCL+4*p+3}]
s_and_b64 s[{t+2}:{t+3}], s[{t+2}:{t+3}], vcc""")
    I(f's_cmp_eq_u64 s[{t+2}:{t+3}], -1\ns_cbranch_scc1 {ok}')
def collect_finish():
    k.wait_vm('CL')
    ok = newlbl('clok'); L = newlbl('clre')
    collect_check(ok)
    I(f's_mov_b32 s{t+4}, 0')
    k.label(L)
    sv = list(k.vm)
    I('s_sleep 4')
    collect_loads(None)
    I(f's_waitcnt vmcnt(0)\ns_add_u32 s{t+4}, s{t+4}, 1')
    collect_check(ok)
    I(f's_cmp_lt_u32 s{t+4}, 0x20000\ns_cbranch_scc1 {L}')
    k.vm = sv
    k.label(ok)
    R = vCL + 16
    I(f"""v_add_f32 v{vCL}, v{vCL}, v{vCL+4}
v_add_f32 v{vCL+1}, v{vCL+1}, v{vCL+5}
v_add_f32 v{vCL+8}, v{vCL+8}, v{vCL+12}
v_add_f32 v{vCL+9}, v{vCL+9}, v{vCL+13}
v_add_f32 v{vCL}, v{vCL}, v{vCL+8}
v_add_f32 v{vCL+1}, v{vCL+1}, v{vCL+9}
v_cndmask_b32 v{R}, 0, v{R}, s[{sVAL}:{sVAL+1}]
v_cndmask_b32 v{R+2}, 1.0, v{R+1}, s[{sVAL}:{sVAL+1}]
v_mov_b32 v{vCL+2}, v{vCL}
v_mov_b32 v{vCL+3}, v{vCL+1}
v_rsq_f32 v{R+1}, v{R+2}
s_cmp_eq_u32 s{sISQ}, 1
s_mov_b32 s{t}, {f32(-LOG2E)}
s_cmov_b32 s{t}, {f32(0.25*LOG2E)}
v_permlane32_swap_b32 v{vCL}, v{vCL+2}
v_permlane32_swap_b32 v{vCL+1}, v{vCL+3}
v_mul_f32 v{R+3}, s{t}, v{R+1}
v_add_f32 v{vCL}, v{vCL}, v{vCL+2}
v_add_f32 v{vCL+1}, v{vCL+1}, v{vCL+3}
ds_write_b128 v44, v[{R}:{R+3}]
ds_write_b32 v45, v{R}
ds_write_b32 v45, v{R+1} offset:1024
ds_write_b64 v43, v[{vCL}:{vCL+1}]
ds_write_b64 v236, v[16:17] offset:{L_NONCE - L_FULL}
s_waitcnt lgkmcnt(0)""")

def b2_touch(part):
    if part == 0:
        mk_srd(SOUT, 16, 1376*1024)
        I(f"""s_lshl_b32 s{t}, s{sSLOTID}, 2
s_add_u32 s{t}, s{t}, s{sH}
s_mul_i32 s{t}, s{t}, 43*256
v_lshlrev_b32 v48, 7, v{VLANE}
v_add_u32 v48, s{t}, v48
v_cmp_gt_u32 vcc, 43, v{VLANE}
v_mov_b32 v50, {OOB}
v_cndmask_b32 v48, v50, v48, vcc
buffer_load_dword v51, v48, {srd(SOUT)}, 0 offen""", 'TB')
    elif part == 1:
        I(f"""s_movk_i32 s{t}, 43*128
buffer_load_dword v52, v48, {srd(SOUT)}, s{t} offen""", 'TB')
    else:
        I(f"""s_lshl_b32 s{t}, s{sSLOTID}, 2
s_add_u32 s{t}, s{t}, s{sH}
s_lshl_b32 s{t}, s{t}, 12
v_and_b32 v48, 31, v{VLANE}
v_lshlrev_b32 v48, 7, v48
v_add_u32 v48, s{t}, v48""")
        mk_srd(SOUT, 8, 512*1024)
        I(f'buffer_load_dword v53, v48, {srd(SOUT)}, 0 offen', 'TB')
def chip_touch():
    mk_srd(SOUT, 16, 1376*1024)
    I(f"""s_mul_i32 s{t}, s2, 43
s_mul_i32 s{t+1}, s{sH}, 11
s_add_u32 s{t}, s{t}, s{t+1}
s_sub_u32 s{t+1}, 43, s{t+1}
s_min_u32 s{t+1}, s{t+1}, 11
v_add_u32 v48, s{t}, v{VLANE}
v_lshlrev_b32 v48, 7, v48
v_cmp_gt_u32 vcc, s{t+1}, v{VLANE}
v_mov_b32 v50, {OOB}
v_cndmask_b32 v48, v50, v48, vcc
buffer_load_dword v51, v48, {srd(SOUT)}, 0 offen""", 'TB')
    mk_srd(SOUT, 8, 512*1024)
    I(f"""s_lshl_b32 s{t}, s2, 2
s_add_u32 s{t}, s{t}, s{sH}
s_lshl_b32 s{t}, s{t}, 2
v_and_b32 v49, 3, v{VLANE}
v_add_u32 v49, s{t}, v49
v_lshlrev_b32 v49, 7, v49
buffer_load_dword v52, v49, {srd(SOUT)}, 0 offen""", 'TB')
def touch_at(i):
    if OPT['ct'] == i: chip_touch()
    for p in range(3):
        if OPT[f'tb{p}'] == i: b2_touch(p)

def landed(i):
    stamp(9 + 2*i); k.wait_vm(f'D{i}'); signal_full(i + 1); stamp(10 + 2*i); touch_at(i)
touch_at(0)
stage_dma(1, 1)
spin(L_FULL, 1); slab_reads()
stamp(1)
stage_dma(2, 2)
nonce_get(); col_stats(); landed(2)
spin(L_FULL, 2); spin(L_FREE, 1)
stage_dma(3); row_stats(); landed(3)
spin(L_FREE, 2); stage_dma(4); b2_setup(); collect_setup(); landed(4)
spin(L_FREE, 3); stage_dma(5); landed(5)
for j in range(OPT['nr5']): b2_raw(j, False, RAWL[j], 'RL')
spin(L_FREE, 4); stage_dma(6); collect_loads('CL'); landed(6)
for j in range(OPT['nr5'], OPT['nr6']): b2_raw(j, False, RAWL[j], 'RL')
spin(L_FREE, 5); stage_dma(7)
collect_finish()
NR0 = OPT['nr0']
NR0 = max(NR0, OPT['nr6'])
for j in range(OPT['nr6'], NR0): b2_raw(j, False, RAWL[j], 'RL')
landed(7); signal_full(9)
for j in range(NR0, 16): b2_raw(j, False, RAWL[j], 'RL')
for j in range(12, 16): b2_raw(j, True, PKR[j], 'RP')
I(f'v_add_u32 v231, s{sLB2}, v{VL16}')
spin(L_FREE, 6); stamp(2)
for j in range(6): b2_dma(j, True, 'PA')
spin(L_FREE, 7)
for j in range(6, 12): b2_dma(j, True, 'PB')
spin(L_FREE, 8); stamp(3)
k.wait_vm('RL')
for j in range(7): b2_put(SIG_L[j], RAWL[j])
k.wait_vm('PA', 0)
for j in range(6): tr_reads(SIG_P[j], PKR[j])
I('s_waitcnt lgkmcnt(0)')
for j in range(7, 13): b2_put(SIG_L[j], RAWL[j])
k.wait_vm('PB', 0)
for j in range(6, 12): tr_reads(SIG_P[j], PKR[j])
I('s_waitcnt lgkmcnt(0)')
for j in range(13, 16): b2_put(SIG_L[j], RAWL[j])
for j in range(12, 15): b2_put(SIG_P[j], PKR[j])
I('s_waitcnt lgkmcnt(0)')
signal_full(10)
for j in range(12, 15): tr_reads(SIG_P[j], PKR[j])
I('s_waitcnt lgkmcnt(0)')
b2_put(SIG_P[15], PKR[15])
I('s_waitcnt lgkmcnt(0)')
tr_reads(SIG_P[15], PKR[15])
I('s_waitcnt lgkmcnt(0)')
k.vm_reset()
stamp(4)

k.label('L_P2')
k.c('---- phase 2 setup')
VOO, VP = 248, 232
I(f's_lshl_b32 s{t+5}, s{sWAVE}, 3')
tab8(PC0, t+6, t+5); tab8(PCN, t+7, t+5)
I(f"""s_mul_i32 s{t}, s{sRB2}, 86
s_lshr_b32 s{t}, s{t}, 8
s_mul_i32 s{t}, s{t}, 23
s_add_u32 s{t}, s{t}, s{t+6}
v_lshrrev_b32 v1, 2, v{VLANE}
v_min_u32 v1, s{t+7}, v1
v_add_u32 v1, s{t}, v1
v_lshlrev_b32 v1, 7, v1
v_and_b32 v2, 3, v{VLANE}
v_lshl_add_u32 v1, v2, 4, v1
v_add_u32 v{VP}, {W_FL}, v1
s_lshr_b32 s{t}, s{sWAVE}, 2
s_lshl_b32 s{t}, s{t}, 5
s_lshl_b32 s{t+1}, s{sRB2}, 6
s_add_u32 s{t}, s{t}, s{t+1}
v_and_b32 v1, 31, v{VLANE}
v_add_u32 v1, s{t}, v1
v_lshlrev_b32 v1, 10, v1
v_lshrrev_b32 v2, 5, v{VLANE}
v_lshl_add_u32 v1, v2, 4, v1
s_lshl_b32 s{t}, s{sCB2}, 7
s_lshl_b32 s{t+1}, s{sH}, 5
s_add_u32 s{t}, s{t}, s{t+1}
v_add_u32 v{VOO}, s{t}, v1
v_add_u32 v{VOO+1}, {118*1024}, v{VL16}
s_mov_b32 s{t+4}, 0""")
stamp(5)
if OPT['pmask']: I('s_mov_b64 exec, 0xffff')
k.label('L_POLL')
I(f"""buffer_load_dwordx2 v[{VP+2}:{VP+3}], v{VP}, {srd(SWS)}, 0 offen sc1
s_add_u32 s{t+4}, s{t+4}, 1
s_waitcnt vmcnt(0)
v_cmp_eq_u64 vcc, s[{sN}:{sN+1}], v[{VP+2}:{VP+3}]
s_cmp_eq_u64 vcc, exec
s_cbranch_scc1 L_POLLED
s_sleep {OPT['psleep']}
s_cmp_lt_u32 s{t+4}, 0x20000
s_cbranch_scc1 L_POLL""")
k.label('L_POLLED')
I('s_mov_b64 exec, -1')
if OPT['pbar']: I('s_barrier')
k.vm_reset()
stamp(6)
def a_load(i, AW):
    d = AW[i % len(AW)]
    I(f"""s_add_u32 s{t+2}, s{sROT}, {i}
s_and_b32 s{t+2}, s{t+2}, 15
s_add_u32 s{t}, s{sABASE}, s{t+2}
s_lshl_b32 s{t}, s{t}, 10
s_cmp_lt_u32 s{t+2}, s{sNV}
s_cselect_b32 s{t}, s{t}, {OOB}
buffer_load_dwordx4 v[{d}:{d+3}], v{VL16}, {srd(SAF)}, s{t} offen{OPT_ALD}
buffer_load_dwordx4 v[{d+4}:{d+7}], v{VOO+1}, {srd(SAF)}, s{t} offen{OPT_ALD}""", f'A{i}')
def p2_stream(helper):
    AW = HAW[:OPT['naw']] if helper else [96 + 8*j for j in range(OPT['nawc'])]
    nw = len(AW)
    BD = 64
    for i in range(nw): a_load(i, AW)
    if not helper:
        L = newlbl('pw'); D = newlbl('pwd')
        I(f's_lshl_b32 s{t}, s{sH}, 2\ns_add_u32 s{t}, s{t}, {L_FULL}\nv_mov_b32 v238, s{t}\ns_mov_b32 s{t+4}, 0')
        k.label(L)
        I(f"""ds_read_b32 v239, v238
s_add_u32 s{t+4}, s{t+4}, 1
s_waitcnt lgkmcnt(0)
v_cmp_gt_u32 vcc, 10, v239
s_cmp_lt_u32 s{t+4}, 0x400000
s_cbranch_vccz {D}
s_cbranch_scc1 {L}""")
        k.label(D)
        tr_reads(SIG_L[0], BD); tr_reads(SIG_L[1], BD + 8)
    stamp(25)
    for i in range(16):
        if not helper and i + 2 < 16: tr_reads(SIG_L[i + 2], BD + 8*((i + 2) % 3))
        b = PKR[i] if helper else BD + 8*(i % 3)
        a = AW[i % nw]
        k.wait_vm(f'A{i}', None if helper else 4*min(2, 15 - i))
        for mt in range(2):
            for ct in range(2):
                r = ACC + 32*mt + 16*ct
                I(f'v_mfma_f32_32x32x16_bf16 v[{r}:{r+15}], v[{b+4*ct}:{b+4*ct+3}], v[{a+4*mt}:{a+4*mt+3}], ' + ('0' if i == 0 else f'v[{r}:{r+15}]'))
        if i + nw < 16: a_load(i + nw, AW)
        if i + nw == 16 or (nw == 16 and i == 0): I(f'buffer_load_dwordx4 v[{VXR}:{VXR+3}], v{VOO}, {srd(SX)}, 0 offen', 'XR')
        if i in (0, 3, 7, 11): stamp(26 + (i + 1)//4)
I(f's_cmp_lt_u32 s{sWAVE}, 4\ns_cbranch_scc1 L_P2C')
p2_stream(True)
I('s_branch L_P2E')
k.label('L_P2C')
k.vm_reset()
p2_stream(False)
k.label('L_P2E')
stamp(7)
k.c('---- reduction + final epilogue')
mk_srd(SOUT, 18, 2048*1024)
I(f"""s_lshl_b32 s{t}, s{sWAVE}, 11
v_add_u32 v64, s{t}, v{VL16}
v_add_u32 v65, 0x10000, v64
s_lshl_b32 s{t}, s{sWAVE}, 14
v_add_u32 v66, s{t}, v{VL16}
s_barrier""")
for d in range(8):
    for hf in range(2):
        I(f'ds_write_b128 v{64 + (d >> 2)}, v[{8*d+4*hf}:{8*d+4*hf+3}] offset:{(d & 3)*16384 + hf*1024}')
I('s_waitcnt lgkmcnt(0)\ns_barrier')
stamp(31)
R = 72
order = [2, 3, 4, 5, 6, 7, 0, 1]
for s_ in order:
    for hf in range(2): I(f'ds_read_b128 v[{R+8*s_+4*hf}:{R+8*s_+4*hf+3}], v66 offset:{s_*2048 + hf*1024}')
I(f's_mov_b32 s{t}, {f32(-LOG2E)}\ns_mov_b32 s{t+1}, {f32(-LOG2E)}\ns_mov_b32 s{t+2}, 1.0\ns_mov_b32 s{t+3}, 1.0\ns_waitcnt vmcnt(0)')
X = 140
I(f'v_permlane32_swap_b32 v{VXR}, v{VXR+2}\nv_permlane32_swap_b32 v{VXR+1}, v{VXR+3}')
for d in range(4): I(f'v_lshlrev_b32 v{X+2*d}, 16, v{VXR+d}\nv_and_b32 v{X+2*d+1}, 0xffff0000, v{VXR+d}')
F, E, S0 = R + 16, 148, R
PR = lambda r, p: f'v[{r+2*p}:{r+2*p+1}]'
for n_, s_ in enumerate(order[1:6]):
    I(f's_waitcnt lgkmcnt({12 - 2*n_})')
    for p in range(4): I(f'v_pk_add_f32 {PR(F,p)}, {PR(F,p)}, {PR(R+8*s_,p)}')
for p in range(4): I(f'v_pk_mul_f32 {PR(E,p)}, {PR(F,p)}, s[{t}:{t+1}]')
I('s_waitcnt lgkmcnt(0)')
for p in range(4): I(f'v_exp_f32 v{E+2*p}, v{E+2*p}\nv_exp_f32 v{E+2*p+1}, v{E+2*p+1}\nv_pk_add_f32 {PR(S0,p)}, {PR(S0,p)}, {PR(R+8,p)}')
for p in range(4): I(f'v_pk_add_f32 {PR(E,p)}, {PR(E,p)}, s[{t+2}:{t+3}]')
for p in range(4): I(f'v_rcp_f32 v{E+2*p}, v{E+2*p}\nv_rcp_f32 v{E+2*p+1}, v{E+2*p+1}\nv_pk_mul_f32 {PR(F,p)}, {PR(F,p)}, {PR(S0,p)}')
for p in range(4): I(f'v_pk_fma_f32 {PR(F,p)}, {PR(F,p)}, {PR(E,p)}, {PR(X,p)}')
for p in range(4): I(f'v_cvt_pk_bf16_f32 v{E+8+p}, v{F+2*p}, v{F+2*p+1}')
I(f'v_permlane32_swap_b32 v{E+8}, v{E+10}\nv_permlane32_swap_b32 v{E+9}, v{E+11}')
I(f'buffer_store_dwordx4 v[{E+8}:{E+11}], v{VOO}, {srd(SOUT)}, 0 offen{OPT_OUTST}')
if OPT['diag']:
    I('s_waitcnt vmcnt(0)')
    stamp(8)
    I(f"""s_lshl_b32 s{t}, s2, 3
s_add_u32 s{t}, s{t}, s{sWAVE}
s_lshl_b32 s{t}, s{t}, 8
s_add_u32 s{t}, s{t}, {W_DIAG}
v_lshlrev_b32 v1, 2, v{VLANE}
buffer_store_dword v{VDIAG}, v1, {srd(SWS)}, s{t} offen""")
    if OPT['diag'] == 2:
        I(f"""s_cmp_lg_u32 s2, {OPT.get('dw', 0)}
s_cbranch_scc1 L_END
s_and_b32 s{t}, s{sWAVE}, 3
s_cmp_lg_u32 s{t}, 0
s_cbranch_scc1 L_END
s_cmp_eq_u32 s{sWAVE}, 0
s_cselect_b32 s{t}, 8, 44
s_cselect_b32 s{t+1}, 9, 5
v_add_u32 v1, s{t}, v1
v_cmp_gt_u32 vcc, s{t+1}, v{VLANE}
s_and_saveexec_b64 s[{t+2}:{t+3}], vcc
global_store_dword v1, v{VDIAG}, s[20:21]""")
if OPT.get('padto'):
    k.label('L_PAD')
    I(f"""s_memrealtime s[{t}:{t+1}]
s_waitcnt lgkmcnt(0)
s_sub_u32 s{t}, s{t}, s100
s_cmp_lt_u32 s{t}, {OPT['padto']}
s_cbranch_scc1 L_PAD""")
k.label('L_END')
I('s_endpgm')

k.label('L_C')
k.ins.clear(); k.vm_reset()
I('s_waitcnt lgkmcnt(0)')
stamp(0)
NW = newlbl('nw')
I(f"""s_or_b32 s{t}, s2, s{sWAVE}
s_cmp_lg_u32 s{t}, 0
s_cbranch_scc1 {NW}
s_memrealtime s[{t+2}:{t+3}]
s_waitcnt lgkmcnt(0)
s_or_b32 s{t+2}, s{t+2}, 1
v_mov_b32 v2, s{t+2}
v_mov_b32 v3, s{t+3}
v_mov_b32 v4, 0
global_store_dwordx2 v4, v[2:3], s[20:21] sc1""")
k.label(NW)
mk_srd(SX, 4, 2048*1024); mk_srd(SWS, 22, WS_REC); mk_srd(SAF, 22, AF_BYTES)
p2_params(False)
VCF, VFU, VFR, VTM = 248, 246, 245, 247
I(f"""v_mov_b32 v{VFU}, {L_FULL}
s_lshl_b32 s{t}, s{sWAVE}, 2
v_add_u32 v{VFR}, s{t}, v{VFU}
v_mov_b32 v{VTM}, 0
ds_write_b32 v{VFR}, v{VTM}
ds_write_b32 v{VFR}, v{VTM} offset:16
s_waitcnt lgkmcnt(0)
s_barrier
s_cmp_eq_u32 s{sISQ}, 1
s_cbranch_scc1 L_CQ""")
sNEED = t + 11
def c_flag_read(): I(f'ds_read_b128 v[{VCF}:{VCF+3}], v{VFU}')
def c_check(spinl):
    I(f"""v_min_u32 v{VCF}, v{VCF}, v{VCF+1}
v_min3_u32 v{VCF}, v{VCF}, v{VCF+2}, v{VCF+3}
v_cmp_gt_u32 vcc, s{sNEED}, v{VCF}""")
def c_spin_block(spinl, back):
    k.label(spinl)
    I(f's_mov_b32 s{t+4}, 0')
    k.label(spinl + '_l')
    c_flag_read()
    I(f's_add_u32 s{t+4}, s{t+4}, 1\ns_waitcnt lgkmcnt(0)')
    c_check(None)
    if OPT['diag']: I(f's_add_u32 m0, s{sNEED}, 8\ns_nop 0\nv_writelane_b32 v{VDIAG}, s{t+4}, m0')
    I(f's_cmp_lt_u32 s{t+4}, 0x400000\ns_cbranch_vccz {back}\ns_cbranch_scc1 {spinl}_l\ns_branch {back}')

def publish_flag():
    stamp(30)
    I(f"""s_mul_i32 s{t}, s{sRB}, 23
s_add_u32 s{t}, s{t}, s{sCOL}
s_lshl_b32 s{t}, s{t}, 7
s_lshl_b32 s{t+1}, s{sWAVE}, 4
s_add_u32 s{t}, s{t}, s{t+1}
s_add_u32 s{t}, s{t}, {W_FL}
v_mov_b32 v250, {OOB}
v_cmp_eq_u32 vcc, 0, v{VLANE}
v_cndmask_b32 v250, v250, 0, vcc
v_mov_b32 v251, {L_NONCE}
ds_read_b64 v[252:253], v251
s_waitcnt vmcnt(0) lgkmcnt(0)
v_readfirstlane_b32 s{sN}, v252
v_readfirstlane_b32 s{sN+1}, v253
buffer_store_dwordx2 v[252:253], v250, {srd(SWS)}, s{t} offen sc1
s_lshl_b32 s{t}, s{sWAVE}, 2
s_add_u32 s{t}, s{t}, {L_FREE}
v_mov_b32 v250, s{t}
v_mov_b32 v251, 9
ds_write_b32 v250, v251""")
    stamp(4)
    p2_addr()
    I('s_branch L_P2')

sSL, sIT = t + 12, t + 13
sDL = t + 10
def next_slot():
    I(f"""s_add_u32 s{sSL}, s{sSL}, 1
s_mov_b32 s{sDL}, {SLOT}
s_cmp_eq_u32 s{sSL}, 3
s_cmov_b32 s{sDL}, {-2*SLOT}
s_cmov_b32 s{sSL}, 0""")
lg = []
def lg_wait(tags):
    idx = max((i for i, x in enumerate(lg) if x in tags), default=None)
    if idx is None: return
    n = min(15, len(lg) - 1 - idx)
    I(f's_waitcnt lgkmcnt({n})')
    del lg[:len(lg) - n]

k.c('---- C FFN')
XF, WF, XA, WA = 144, 192, 240, 244
I(f"""s_lshr_b32 s{t}, s{sWAVE}, 1
s_and_b32 s{t+1}, s{sWAVE}, 1
s_mul_i32 s{t+2}, s{t}, {96*128}
v_and_b32 v150, 31, v{VLANE}
v_bfe_u32 v151, v{VLANE}, 1, 3
v_lshrrev_b32 v152, 5, v{VLANE}
v_xor_b32 v151, v151, v152
v_lshlrev_b32 v150, 7, v150
v_add_u32 v150, s{t+2}, v150""")
for j in range(4):
    I(f'v_xor_b32 v153, {2*j}, v151\nv_lshl_add_u32 v{XA+j}, v153, 4, v150')
I(f"""v_bfe_u32 v150, v{VLANE}, 2, 2
v_lshl_add_u32 v150, v152, 3, v150
v_mul_u32_u24 v150, 192, v150
v_bfe_u32 v151, v{VLANE}, 4, 1
v_mul_u32_u24 v151, 12320, v151
v_add_u32 v150, v150, v151
v_and_b32 v151, 3, v{VLANE}
v_lshl_add_u32 v150, v151, 3, v150
s_mul_i32 s{t+2}, s{t+1}, 96
s_add_u32 s{t+2}, s{t+2}, 24576
v_add_u32 v{WA}, s{t+2}, v150""")
for r in range(144): I(f'v_mov_b32 v{r}, 0')
I(f's_mov_b32 s{sSL}, 0')
def ffn_reads(u):
    out = []
    def xr(a):
        d = XF + 12*u + 4*a
        return (f'ds_read_b128 v[{d}:{d+3}], v{XA+u} offset:{a*4096}', ('x', a, u))
    def wr(b, s_):
        d = WF + 12*u + 4*b
        return (f'ds_read_b64_tr_b16 v[{d+2*s_}:{d+2*s_+1}], v{WA} offset:{(16*u+4*s_)*192 + b*32}', ('w', b, s_, u))
    return [xr(0), wr(0,0), wr(0,1), wr(1,0), wr(1,1), wr(2,0), wr(2,1), xr(1), xr(2)]
def rd(x): I(x[0]); lg.append(x[1])
stamp(1)
I(f's_setprio {OPT["cprio"]}\ns_mov_b32 s{sNEED}, 1\ns_branch L_FSP0')
c_spin_block('L_FSP', 'L_FBK')
c_spin_block('L_FSP0', 'L_FGO')
k.label('L_FGO')
stamp(2)
lg.clear()
for x in ffn_reads(0): rd(x)
I(f'ds_read_b32 v{VTM}, v{VFU}'); lg.append('free')
for x in ffn_reads(1): rd(x)
entry = list(lg)
k.label('L_FLOOP')
m0_ = k.mark()
for u in range(4):
    q = ffn_reads((u + 2) & 3)
    n = 0
    for a in range(3):
        for b in range(3):
            lg_wait([('x', a, u), ('w', b, 0, u), ('w', b, 1, u)] + (['flag'] if (u, n) == (1, 7) else []))
            if (u, n) == (1, 7):
                I(f's_add_u32 s{sNEED}, s{sNEED}, 1'); c_check(None); next_slot()
            ac = (a*3 + b) * 16; x = XF + 12*u + 4*a; w = WF + 12*u + 4*b
            I(f'v_mfma_f32_32x32x16_bf16 v[{ac}:{ac+15}], v[{w}:{w+3}], v[{x}:{x+3}], v[{ac}:{ac+15}]')
            if (u, n) == (2, 0):
                for j in range(4): I(f'v_add_u32 v{XA+j}, s{sDL}, v{XA+j}')
                I(f'v_add_u32 v{WA}, s{sDL}, v{WA}\ns_cbranch_vccnz L_FSP')
                k.label('L_FBK')
            if (u, n) == (3, 0):
                lg_wait([('x', 2, 3)])
                I(f'v_add_u32 v{VTM}, -1, s{sNEED}'.replace('v_add_u32', 'v_add_u32_e64') + f'\nds_write_b32 v{VFR}, v{VTM} offset:16'); lg.append('free')
            rd(q.pop(0))
            if (u, n) == (1, 0): c_flag_read(); lg.append('flag')
            n += 1
    assert not q
assert lg == entry[len(entry)-len(lg):], (lg, entry)
I(f's_cmp_lt_u32 s{sNEED}, 9\ns_cbranch_scc1 L_FLOOP')
k.check_backedge(m0_)
stamp(3)
k.c('---- FFN epilogue')
ST, CSB, EE, OUTR = 144, 156, 188, 196
VA_ = 204
I(f"""s_lshr_b32 s{t}, s{sWAVE}, 1
s_and_b32 s{t+1}, s{sWAVE}, 1
s_mul_i32 s{t+2}, s{t}, {96*16}
s_add_u32 s{t+2}, s{t+2}, {L_AOS}
v_and_b32 v{VA_}, 31, v{VLANE}
v_lshlrev_b32 v{VA_}, 4, v{VA_}
v_add_u32 v{VA_}, s{t+2}, v{VA_}
s_mul_i32 s{t+2}, s{t+1}, {48*4}
s_add_u32 s{t+2}, s{t+2}, {L_CS}
v_lshrrev_b32 v{VA_+1}, 5, v{VLANE}
v_lshlrev_b32 v{VA_+1}, 4, v{VA_+1}
v_add_u32 v{VA_+1}, s{t+2}, v{VA_+1}
v_lshlrev_b32 v{VA_+2}, 4, v{VLANE}
s_waitcnt lgkmcnt(0)""")
for a in range(3): I(f'ds_read_b128 v[{ST+4*a}:{ST+4*a+3}], v{VA_} offset:{a*512}')
def cs_reads(b):
    d = CSB + 16*(b & 1)
    for m in range(2):
        for i2 in range(2):
            I(f'ds_read_b128 v[{d+8*m+4*i2}:{d+8*m+4*i2+3}], v{VA_+1} offset:{m*512 + b*64 + i2*32}')
cs_reads(0)
I(f"""s_mul_i32 s{t+4}, s{sRB}, 6
s_mul_i32 s{t+2}, s{t}, 3
s_add_u32 s{t+4}, s{t+4}, s{t+2}
s_mul_i32 s{t+4}, s{t+4}, 118
s_mul_i32 s{t+5}, s{sCOL}, 6
s_mul_i32 s{t+2}, s{t+1}, 3
s_add_u32 s{t+5}, s{t+5}, s{t+2}
s_add_u32 s{t+4}, s{t+4}, s{t+5}
s_add_u32 s{t+4}, s{t+4}, 32
s_lshl_b32 s{t+4}, s{t+4}, 10""")
tile = 0
pend = []
for b in range(3):
    if b < 2: cs_reads(b + 1)
    I(f's_waitcnt lgkmcnt({4 if b < 2 else 0})')
    cg_ = CSB + 16*(b & 1); cu_ = cg_ + 8
    (pend.append if OPT['defer'] else I)(f's_add_u32 s{t+6}, s{t+5}, {b}\ns_add_u32 s{t+7}, s{t+4}, {b*1024}\ns_cmp_lt_u32 s{t+6}, 86\ns_cselect_b32 s{t+7}, s{t+7}, {OOB}')
    for a in range(3):
        G = (a*3 + b) * 16; U = G + 8; s0 = ST + 4*a; o = G if OPT['defer'] else OUTR + 4*(tile & 1)
        P = lambda r, p: f'v[{r+2*p}:{r+2*p+1}]'
        for p in range(4): I(f'v_pk_fma_f32 {P(G,p)}, {P(cg_,p)}, v[{s0}:{s0+1}], {P(G,p)} op_sel_hi:[1,0,1] neg_lo:[0,1,0] neg_hi:[0,1,0]')
        for p in range(4): I(f'v_pk_mul_f32 {P(EE,p)}, {P(G,p)}, v[{s0+2}:{s0+3}] op_sel:[0,1] op_sel_hi:[1,1]')
        for p in range(4): I(f'v_pk_fma_f32 {P(U,p)}, {P(cu_,p)}, v[{s0}:{s0+1}], {P(U,p)} op_sel_hi:[1,0,1] neg_lo:[0,1,0] neg_hi:[0,1,0]')
        for e in range(8): I(f'v_exp_f32 v{EE+e}, v{EE+e}')
        for p in range(4): I(f'v_pk_mul_f32 {P(U,p)}, {P(U,p)}, {P(G,p)}')
        for p in range(4): I(f'v_pk_fma_f32 {P(EE,p)}, {P(EE,p)}, v[{s0+2}:{s0+3}], v[{s0+2}:{s0+3}] op_sel_hi:[1,0,0]')
        for e in range(8): I(f'v_rcp_f32 v{EE+e}, v{EE+e}')
        for p in range(4): I(f'v_pk_mul_f32 {P(U,p)}, {P(U,p)}, {P(EE,p)}')
        for p in range(4): I(f'v_cvt_pk_bf16_f32 v{o+p}, v{U+2*p}, v{U+2*p+1}')
        st_ = f'buffer_store_dwordx4 v[{o}:{o+3}], v{VA_+2}, {srd(SAF)}, s{t+7} offen{OPT_HST}' + (f'\ns_add_u32 s{t+7}, s{t+7}, {118*1024}' if a < 2 else '')
        (pend.append if OPT['defer'] else I)(st_)
        tile += 1
for x in pend: I(x)
publish_flag()

k.label('L_CQ')
k.ins.clear(); k.vm_reset()
k.c('---- C QKV')
QA, KA, VA = 0, 48, 100
XS, XD, WQ = 152, 192, 216
XA, WA = 240, 244
I(f"""v_and_b32 v160, 15, v{VLANE}
v_bfe_u32 v161, v{VLANE}, 1, 3
v_lshrrev_b32 v162, 4, v{VLANE}
v_xor_b32 v161, v161, v162
v_lshlrev_b32 v163, 7, v160
v_lshl_add_u32 v{XA}, v161, 4, v163
v_xor_b32 v{XA+1}, 64, v{XA}
v_bfe_u32 v163, v{VLANE}, 2, 2
v_lshl_add_u32 v163, v162, 3, v163
v_lshlrev_b32 v163, 7, v163
v_bfe_u32 v164, v{VLANE}, 3, 1
v_and_b32 v165, 1, v162
v_lshl_or_b32 v164, v165, 1, v164
v_xor_b32 v164, s{sWAVE}, v164
v_lshl_add_u32 v163, v164, 5, v163
v_and_b32 v164, 3, v{VLANE}
v_lshl_add_u32 v163, v164, 3, v163
v_add_u32 v{WA}, 26624, v163""")
for r in range(152): I(f'v_mov_b32 v{r}, 0')
I(f's_mov_b32 s{sSL}, 0')
def xreg(tau, j): return XS + 4*tau if tau < 10 else XD + 12*(j & 1) + 4*(tau - 10)
def rd_x(tau, j):
    d = xreg(tau, j); I(f'ds_read_b128 v[{d}:{d+3}], v{XA+j} offset:{tau*2048}'); lg.append(('x', tau, j))
def rd_w(m, s_, j):
    d = WQ + 12*j + 4*m + 2*s_; I(f'ds_read_b64_tr_b16 v[{d}:{d+1}], v{WA} offset:{m*8192 + (32*j+4*s_)*128}'); lg.append(('w', m, s_, j))
def sched(tau):
    ex = [('w',1,0),('w',1,1),('w',2,0),('w',2,1),('w',0,0),('w',0,1),('x',10),('x',11),('x',12)]
    r = [[], [], []]
    if 1 <= tau <= 10: r[1].append(('x', tau - 1))
    if 1 <= tau <= 9: r[2].append(ex[tau - 1])
    return r
def do_reads(lst, j):
    for x in lst:
        if x[0] == 'x': rd_x(x[1], j)
        else: rd_w(x[1], x[2], j)
stamp(1)
I(f's_setprio {OPT["cprio"]}\ns_mov_b32 s{sNEED}, 1\ns_branch L_QSP0')
c_spin_block('L_QSP', 'L_QBK')
c_spin_block('L_QSP0', 'L_QGO')
k.label('L_QGO')
stamp(2)
lg.clear()
for tau in range(13):
    for r in sched(tau): do_reads(r, 0)
    if tau == 2: I(f'ds_read_b32 v{VTM}, v{VFU}'); lg.append('free')
entry = list(lg)
k.label('L_QLOOP')
m0_ = k.mark()
for j in range(2):
    for tau in range(13):
        lg_wait([('x', tau, j)] + ([('w',1,0,j),('w',1,1,j),('w',2,0,j),('w',2,1,j)] if tau == 0 else []) + ([('w',0,0,j),('w',0,1,j)] if tau == 1 else [])
                + (['flag'] if (j, tau) == (0, 12) else []))
        if (j, tau) == (0, 12):
            I(f's_add_u32 s{sNEED}, s{sNEED}, 1'); c_check(None); next_slot()
        x = xreg(tau, j); w = WQ + 12*j
        X_ = f'v[{x}:{x+3}]'
        sc = sched(tau)
        I(f'v_mfma_f32_16x16x32_bf16 v[{KA+4*tau}:{KA+4*tau+3}], v[{w+4}:{w+7}], {X_}, v[{KA+4*tau}:{KA+4*tau+3}]')
        if (j, tau) == (1, 0):
            I(f'v_add_u32 v{XA}, s{sDL}, v{XA}\nv_add_u32 v{WA}, s{sDL}, v{WA}')
        I(f'v_mfma_f32_16x16x32_bf16 v[{VA+4*tau}:{VA+4*tau+3}], {X_}, v[{w+8}:{w+11}], v[{VA+4*tau}:{VA+4*tau+3}]')
        if (j, tau) == (1, 0):
            I(f'v_add_u32 v{XA+1}, s{sDL}, v{XA+1}\ns_cbranch_vccnz L_QSP')
            k.label('L_QBK')
        do_reads(sc[1], 1 - j)
        if tau >= 1:
            q = QA + 4*(tau - 1)
            I(f'v_mfma_f32_16x16x32_bf16 v[{q}:{q+3}], v[{w}:{w+3}], {X_}, v[{q}:{q+3}]')
        do_reads(sc[2], 1 - j)
        if (j, tau) == (0, 6): c_flag_read(); lg.append('flag')
        if (j, tau) == (1, 2):
            lg_wait([('x', 9, 1)])
            I(f'v_add_u32_e64 v{VTM}, -1, s{sNEED}\nds_write_b32 v{VFR}, v{VTM} offset:16'); lg.append('free')
assert lg == entry[len(entry)-len(lg):], (lg, entry)
I(f's_cmp_lt_u32 s{sNEED}, 9\ns_cbranch_scc1 L_QLOOP')
k.check_backedge(m0_)
stamp(3)
k.c('---- QKV epilogue (attention)')
KB, VB, QB = 152, 178, 204
AS, SMR, CSQ, CSK, CSV = 204, 212, 250, 228, 232
SEL, ONES, VAD = 234, 238, 242
sPAR, sOA, sOB, sVA_, sVB_ = sM, sM+2, sM+4, sM+6, sM+8
I(f"""s_waitcnt lgkmcnt(0)
v_and_b32 v246, 15, v{VLANE}
v_lshrrev_b32 v247, 4, v{VLANE}
v_lshlrev_b32 v{VAD}, 4, v246
v_add_u32 v{VAD}, {L_AOS}, v{VAD}
v_lshlrev_b32 v{VAD+1}, 4, v247
s_lshl_b32 s{t}, s{sWAVE}, 6
s_add_u32 s{t}, s{t}, {L_CS}
v_add_u32 v{VAD+2}, s{t}, v{VAD+1}
v_add_u32 v{VAD+1}, {L_SM}, v{VAD+1}
v_lshlrev_b32 v248, 2, v246
v_add_u32 v248, s{t}, v248
ds_read_b128 v[{CSQ}:{CSQ+3}], v{VAD+2}
ds_read_b128 v[{CSK}:{CSK+3}], v{VAD+2} offset:256
ds_read_b32 v{CSV}, v248 offset:512
v_lshlrev_b32 v{VAD+3}, 4, v{VLANE}
v_and_b32 v248, 1, v{VLANE}
v_cmp_eq_u32 s[{sPAR}:{sPAR+1}], 1, v248
v_lshl_add_u32 v249, v247, 2, v248
v_cmp_le_u32 s[{sOA}:{sOA+1}], v249, v246
v_add_u32 v249, 2, v249
v_cmp_le_u32 s[{sOB}:{sOB+1}], v249, v246
s_cmp_eq_u32 s{sRB}, 0
s_cselect_b64 s[{sVA_}:{sVA_+1}], s[{sOA}:{sOA+1}], -1
s_cselect_b64 s[{sVB_}:{sVB_+1}], s[{sOB}:{sOB+1}], -1
v_mov_b32 v246, 0x0c0c0100
v_mov_b32 v247, 0x01000c0c
v_cndmask_b32 v246, v246, v247, s[{sPAR}:{sPAR+1}]
v_mov_b32 v247, 0x0c0c0302
v_mov_b32 v248, 0x03020c0c
v_cndmask_b32 v247, v247, v248, s[{sPAR}:{sPAR+1}]
v_mov_b32 v248, 0x0c0c0c0c
v_cndmask_b32 v{SEL}, v246, v248, s[{sOA}:{sOA+1}]
v_cndmask_b32 v{SEL+1}, v247, v248, s[{sOB}:{sOB+1}]
v_cndmask_b32 v{SEL+2}, v248, v246, s[{sOA}:{sOA+1}]
v_cndmask_b32 v{SEL+3}, v248, v247, s[{sOB}:{sOB+1}]""")
for i in range(4): I(f'v_mov_b32 v{ONES+i}, 0x3f803f80')
I(f"""s_mul_i32 s{t+4}, s{sRB}, {6*118}
s_sub_u32 s{t+5}, s{sCOL}, 15
s_lshl_b32 s{t+5}, s{t+5}, 2
s_add_u32 s{t+4}, s{t+4}, s{t+5}
s_add_u32 s{t+4}, s{t+4}, s{sWAVE}
s_lshl_b32 s{t+4}, s{t+4}, 10""")
NEG = 'neg_lo:[0,1,0] neg_hi:[0,1,0]'
def st_reads(tau):
    a = AS + 4*(tau & 1)
    I(f'ds_read_b128 v[{a}:{a+3}], v{VAD} offset:{tau*256}')
def smr_reads(tau):
    m_ = SMR + 8*(tau & 1)
    I(f'ds_read_b128 v[{m_}:{m_+3}], v{VAD+1} offset:{tau*64}\nds_read_b128 v[{m_+4}:{m_+7}], v{VAD+1} offset:{1024+tau*64}')
st_reads(0); smr_reads(0)
for tau in range(13):
    a = AS + 4*(tau & 1)
    if tau < 12: smr_reads(tau + 1); st_reads(tau + 1)
    I(f's_waitcnt lgkmcnt({3 if tau < 12 else 0})')
    m_ = SMR + 8*(tau & 1)
    Kc, Vc = KA + 4*tau, VA + 4*tau
    for p in range(2): I(f'v_pk_fma_f32 v[{Vc+2*p}:{Vc+2*p+1}], v[{m_+2*p}:{m_+2*p+1}], v[{CSV}:{CSV+1}], v[{Vc+2*p}:{Vc+2*p+1}] op_sel_hi:[1,0,1] {NEG}')
    for p in range(2): I(f'v_pk_fma_f32 v[{Kc+2*p}:{Kc+2*p+1}], v[{CSK+2*p}:{CSK+2*p+1}], v[{a}:{a+1}], v[{Kc+2*p}:{Kc+2*p+1}] op_sel_hi:[1,0,1] {NEG}')
    for p in range(2): I(f'v_pk_mul_f32 v[{Vc+2*p}:{Vc+2*p+1}], v[{Vc+2*p}:{Vc+2*p+1}], v[{m_+4+2*p}:{m_+4+2*p+1}]')
    for p in range(2): I(f'v_pk_mul_f32 v[{Kc+2*p}:{Kc+2*p+1}], v[{Kc+2*p}:{Kc+2*p+1}], v[{a}:{a+1}] op_sel:[0,1] op_sel_hi:[1,1]')
    if tau >= 1:
        Qc = QA + 4*(tau - 1)
        for p in range(2): I(f'v_pk_fma_f32 v[{Qc+2*p}:{Qc+2*p+1}], v[{CSQ+2*p}:{CSQ+2*p+1}], v[{a}:{a+1}], v[{Qc+2*p}:{Qc+2*p+1}] op_sel_hi:[1,0,1] {NEG}')
    for p in range(2): I(f'v_cvt_pk_bf16_f32 v{VB+2*tau+p}, v{Vc+2*p}, v{Vc+2*p+1}')
    for p in range(2): I(f'v_cvt_pk_bf16_f32 v{KB+2*tau+p}, v{Kc+2*p}, v{Kc+2*p+1}')
    if tau >= 1:
        for p in range(2): I(f'v_cvt_pk_bf16_f32 v{Qc+p}, v{Qc+2*p}, v{Qc+2*p+1}')
        I(f'v_mov_b32 v{Qc+2}, v{a+3}')
pend = []
for g in range(3):
    ts = list(range(4*g, 4*g + 4))
    def SO(i): return 48 + 24*i
    def SP(i): return SO(i) + 4
    def PP(i): return SO(i) + 8
    def OO(i): return SO(i) + 12
    def LL(i): return SO(i) + 16
    def TT(i): return SO(i) + 20
    for i, tq in enumerate(ts):
        q = QA + 4*tq; tau = tq + 1
        I(f'v_mfma_f32_16x16x16_bf16 v[{SO(i)}:{SO(i)+3}], v[{KB+2*tau}:{KB+2*tau+1}], v[{q}:{q+1}], 0')
        I(f'v_mfma_f32_16x16x16_bf16 v[{SP(i)}:{SP(i)+3}], v[{KB+2*tau-2}:{KB+2*tau-1}], v[{q}:{q+1}], 0')
    par = f's[{sPAR}:{sPAR+1}]'
    def each(fmt):
        for i, tq in enumerate(ts): I(fmt(i, tq))
    each(lambda i, tq: f'v_cndmask_b32 v{SO(i)}, v{SO(i)}, v{SO(i)+1}, {par}\nv_cndmask_b32 v{SO(i)+2}, v{SO(i)+2}, v{SO(i)+3}, {par}\n'
                       f'v_cndmask_b32 v{SP(i)}, v{SP(i)}, v{SP(i)+1}, {par}\nv_cndmask_b32 v{SP(i)+2}, v{SP(i)+2}, v{SP(i)+3}, {par}')
    each(lambda i, tq: f'v_cndmask_b32 v{SO(i)}, v{SP(i)}, v{SO(i)}, s[{sOA}:{sOA+1}]\nv_cndmask_b32 v{SO(i)+1}, v{SP(i)+2}, v{SO(i)+2}, s[{sOB}:{sOB+1}]')
    if g == 0:
        I(f'v_mov_b32 v{TT(0)}, {f32(-1e30)}\nv_cndmask_b32 v{SO(0)}, v{TT(0)}, v{SO(0)}, s[{sVA_}:{sVA_+1}]\nv_cndmask_b32 v{SO(0)+1}, v{TT(0)}, v{SO(0)+1}, s[{sVB_}:{sVB_+1}]')
    each(lambda i, tq: f'v_max_f32 v{TT(i)}, v{SO(i)}, v{SO(i)+1}\nv_max_f32 v{TT(i)+1}, v{SO(i)}, v{SO(i)+1}')
    each(lambda i, tq: f'v_permlane32_swap_b32 v{TT(i)}, v{TT(i)+1}')
    each(lambda i, tq: f'v_max_f32 v{TT(i)+2}, v{TT(i)}, v{TT(i)+1}\nv_max_f32 v{TT(i)+3}, v{TT(i)}, v{TT(i)+1}')
    each(lambda i, tq: f'v_permlane16_swap_b32 v{TT(i)+2}, v{TT(i)+3}')
    each(lambda i, tq: f'v_max_f32 v{TT(i)}, v{TT(i)+2}, v{TT(i)+3}')
    each(lambda i, tq: f'v_mul_f32 v{TT(i)}, v{TT(i)}, v{QA+4*tq+2}')
    each(lambda i, tq: f'v_fma_f32 v{SO(i)}, v{SO(i)}, v{QA+4*tq+2}, -v{TT(i)}\nv_fma_f32 v{SO(i)+1}, v{SO(i)+1}, v{QA+4*tq+2}, -v{TT(i)}')
    each(lambda i, tq: f'v_exp_f32 v{SO(i)}, v{SO(i)}\nv_exp_f32 v{SO(i)+1}, v{SO(i)+1}')
    each(lambda i, tq: f'v_cvt_pk_bf16_f32 v{TT(i)}, v{SO(i)}, v{SO(i)+1}')
    each(lambda i, tq: '\n'.join(f'v_perm_b32 v{PP(i)+e}, v{TT(i)}, v{TT(i)}, v{SEL+e}' for e in range(4)))
    each(lambda i, tq: f'v_mfma_f32_16x16x32_bf16 v[{LL(i)}:{LL(i)+3}], v[{ONES}:{ONES+3}], v[{PP(i)}:{PP(i)+3}], 0\n'
                       f'v_mfma_f32_16x16x32_bf16 v[{OO(i)}:{OO(i)+3}], v[{VB+2*tq}:{VB+2*tq+3}], v[{PP(i)}:{PP(i)+3}], 0')
    each(lambda i, tq: f'v_rcp_f32 v{TT(i)}, v{LL(i)}')
    each(lambda i, tq: '\n'.join(f'v_pk_mul_f32 v[{OO(i)+2*p}:{OO(i)+2*p+1}], v[{OO(i)+2*p}:{OO(i)+2*p+1}], v[{TT(i)}:{TT(i)+1}] op_sel_hi:[1,0]' for p in range(2)))
    for pr in range(2):
        i0, i1 = 2*pr, 2*pr + 1; o = QA + 4*ts[i0]
        I(f'v_cvt_pk_bf16_f32 v{o}, v{OO(i0)}, v{OO(i0)+1}\nv_cvt_pk_bf16_f32 v{o+1}, v{OO(i0)+2}, v{OO(i0)+3}\n'
          f'v_cvt_pk_bf16_f32 v{o+2}, v{OO(i1)}, v{OO(i1)+1}\nv_cvt_pk_bf16_f32 v{o+3}, v{OO(i1)+2}, v{OO(i1)+3}')
    for pr in range(2):
        o = QA + 4*ts[2*pr]
        I(f'v_permlane16_swap_b32 v{o}, v{o+2}\nv_permlane16_swap_b32 v{o+1}, v{o+3}')
    for pr in range(2):
        o = QA + 4*ts[2*pr]
        (pend.append if OPT['defer'] else I)(f'buffer_store_dwordx4 v[{o}:{o+3}], v{VAD+3}, {srd(SAF)}, s{t+4} offen{OPT_HST}\ns_add_u32 s{t+4}, s{t+4}, {118*1024}')
for x in pend: I(x)
publish_flag()
k.label('L_CODE_END')
I('s_endpgm')

hdr = open('cdna_kernels/' + NAME + '.s.ref').read().split('; Override launch')[0]
txt = hdr + f"""; @launch grid=(256,1,1) block=(512,1,1) lds=163840
.amdgcn_target "amdgcn-amd-amdhsa--gfx950"
.text
.globl {NAME}_kernel
.p2align 8
.type {NAME}_kernel,@function
{NAME}_kernel:
""" + k.text() + f""".section .rodata,"a"
.p2align 6
.amdhsa_kernel {NAME}_kernel
  .amdhsa_next_free_vgpr 256
  .amdhsa_next_free_sgpr 102
  .amdhsa_accum_offset 256
  .amdhsa_group_segment_fixed_size 0
  .amdhsa_kernarg_size 80
  .amdhsa_user_sgpr_count 2
  .amdhsa_user_sgpr_kernarg_segment_ptr 1
  .amdhsa_system_sgpr_workgroup_id_x 1
.end_amdhsa_kernel
"""
open(sys.argv[1], 'w').write(txt)
print('written', sys.argv[1], 'lines', txt.count('\n'), 'nops', k.nops)
```

```python
import sys, os
from asmlib import K

NAME = "recurrent_scan__sliding_local_dilated__swiglu_ffn__prompt"
OPT = dict(diag=0, nt_x=0, nt_w=0, nt_b2=0, rot=2, rotb=4, latin=1, naw=5, defer=0, psleep=2, cbshift=0, pmask=1, outst=0, hst=0, tb0=99, tb1=99, tb2=99, ct=2, hold=0, nr0=4, nr5=0, nr6=0, nawc=5, ald=0, pbar=0, hsleep=1, cprio=0, sigat=8)
for a in sys.argv[2:]:
    k_, v_ = a.split('='); OPT[k_] = int(v_)

SLOT = 51200
MISC = 155648
L_AOS, L_SM, L_SR, L_CS, L_SCR = MISC, MISC + 4096, MISC + 5120, MISC + 6144, MISC + 7168
L_FULL = L_AOS + 4048
L_FREE = L_AOS + 4064
L_NONCE = L_AOS + 4080
AF_BYTES = 64 * 118 * 1024
W_RS, W_CSP, W_FL, W_DIAG = 0x800000, 0x810000, 0x880000, 0x900000
WS_REC = 0x1000000
OOB = 0x7f000000
LOG2E = 1.4426950408889634
import struct
def f32(x): return '0x%08x' % struct.unpack('<I', struct.pack('<f', x))[0]

SX, SWA, SWB, SWS, SAF, SW2, SSL, SOUT = 24, 28, 32, 36, 40, 44, 48, 52
sWAVE, sRB, sCOL, sISQ, sH, sRB2, sCB2, sSLOTID = 56, 57, 58, 59, 60, 61, 62, 63
sN = 64
sT = 66
sLW = 80
sKWS, sC, sKW, sX7M, sX7S, sPOS = 86, 87, 88, 89, 90, 91
sNV, sBROW, sABASE, sLB2 = 92, 93, 94, 95
sST = 96
sS0 = 3
sM = 80
VLANE, VDIAG = 254, 255
def srd(i): return f's[{i}:{i+3}]'

k = K()
OPT_OUTST = ['', ' sc1', ' nt', ' sc0 sc1'][OPT['outst']]
OPT_ALD = [' sc1', '', ' sc0 sc1', ' nt'][OPT['ald']]
OPT_HST = [' sc1', ' sc0 sc1', ' sc1 nt'][OPT['hst']]
I = k.I
lblc = [0]
def newlbl(p):
    lblc[0] += 1; return f'L_{p}_{lblc[0]}'
def stamp(i):
    if OPT.get('padat') == i:
        L = newlbl('pad')
        k.label(L)
        I(f's_memrealtime s[96:97]\ns_waitcnt lgkmcnt(0)\ns_sub_u32 s96, s96, s98\ns_cmp_lt_u32 s96, {OPT["padx"]}\ns_cbranch_scc1 {L}')
    if not OPT['diag']: return
    I(f's_memrealtime s[{sST}:{sST+1}]\ns_memtime s[{sST+2}:{sST+3}]\ns_waitcnt lgkmcnt(0)\nv_writelane_b32 v{VDIAG}, s{sST}, {i}\nv_writelane_b32 v{VDIAG}, s{sST+2}, {i+32}')

def mk_srd(d, p, rec):
    I(f's_mov_b32 s{d}, s{p}\ns_mov_b32 s{d+1}, s{p+1}\ns_mov_b32 s{d+2}, {rec}\ns_mov_b32 s{d+3}, 0x20000')


def nonce_poll():
    L = newlbl('np'); D = newlbl('npd')
    I(f's_mov_b32 s{sT}, 0')
    k.label(L)
    I(f"""s_load_dwordx2 s[{sN}:{sN+1}], s[20:21], 0 glc
s_add_u32 s{sT}, s{sT}, 1
s_waitcnt lgkmcnt(0)
s_cmp_lg_u64 s[{sN}:{sN+1}], 0
s_cbranch_scc1 {D}
s_sleep 2
s_cmp_lt_u32 s{sT}, 0x40000
s_cbranch_scc1 {L}""")
    k.label(D)

k.label('KSTART')
I(f"""s_cmp_ge_u32 s2, 256
s_cbranch_scc1 L_END
s_load_dwordx16 s[4:19], s[0:1], 0
s_load_dwordx4 s[20:23], s[0:1], 64
v_lshrrev_b32 v1, 6, v0
v_and_b32 v{VLANE}, 63, v0
v_readfirstlane_b32 s{sWAVE}, v1""")
if OPT.get('padto') or 'padat' in OPT: I('s_memrealtime s[98:99]')
if OPT['diag']: I(f'v_mov_b32 v{VDIAG}, 0')
T0 = [18,19,20,4,5,10,31,0]; T1 = [21,22,11,16,17,31,31,0]
def pk(b): return '0x%08x' % (b[0] | b[1] << 8 | b[2] << 16 | b[3] << 24)
t = sT
I(f"""s_and_b32 s{t}, s2, 7
s_lshr_b32 s{sSLOTID}, s2, 3
s_and_b32 s{t+1}, s{t}, 1
s_lshr_b32 s{t+2}, s{t}, 1
s_lshl_b32 s{sRB2}, s{t}, 2
s_lshr_b32 s{t+3}, s{sSLOTID}, 3
s_add_u32 s{sRB2}, s{sRB2}, s{t+3}
s_add_u32 s{sCB2}, s{sSLOTID}, {OPT['cbshift']}
s_and_b32 s{sCB2}, s{sCB2}, 7
s_mul_i32 s{t+3}, s{sSLOTID}, 52
s_lshr_b32 s{t+3}, s{t+3}, 8
s_mul_i32 s{t+4}, s{t+3}, 5
s_sub_u32 s{t+4}, s{sSLOTID}, s{t+4}
s_mul_i32 s{t+5}, s{t+1}, 6
s_add_u32 s{sRB}, s{t+4}, s{t+5}
s_mul_i32 s{t+5}, s{t+2}, 6
s_add_u32 s{sCOL}, s{t+5}, s{t+3}
s_lshl_b32 s{t+6}, s{t+1}, 1
s_add_u32 s{t+5}, s{t+5}, s{t+6}
s_add_u32 s{t+5}, s{t+5}, s{sSLOTID}
s_sub_u32 s{t+5}, s{t+5}, 30
s_cmp_eq_u32 s{t+1}, 0
s_mov_b32 s{t+6}, {pk(T1[:4])}
s_mov_b32 s{t+7}, {pk(T1[4:])}
s_cmov_b32 s{t+6}, {pk(T0[:4])}
s_cmov_b32 s{t+7}, {pk(T0[4:])}""")
I(f"""s_sub_u32 s{t+8}, s{sSLOTID}, 25
s_lshl_b32 s{t+8}, s{t+8}, 3
s_lshr_b64 s[{t+6}:{t+7}], s[{t+6}:{t+7}], s{t+8}
s_and_b32 s{t+6}, s{t+6}, 0xff
s_cmp_eq_u32 s{t+2}, 3
s_cselect_b32 s{t+5}, s{t+6}, s{t+5}
s_cselect_b32 s{t+7}, 25, 30
s_cmp_ge_u32 s{sSLOTID}, s{t+7}
s_cselect_b32 s{sCOL}, s{t+5}, s{sCOL}
s_cselect_b32 s{sRB}, 5, s{sRB}
s_cmp_eq_u32 s{sCOL}, 31
s_cselect_b32 s{sCOL}, 0, s{sCOL}
s_cselect_b32 s{sRB}, 11, s{sRB}
s_add_u32 s{t+5}, s{sCOL}, 1
s_cmp_ge_u32 s{sCOL}, 14
s_cselect_b32 s{sCOL}, s{t+5}, s{sCOL}
s_cmp_eq_u32 s{sCOL}, 23
s_cselect_b32 s{sCOL}, 14, s{sCOL}
s_cmp_ge_u32 s{sCOL}, 15
s_cselect_b32 s{sISQ}, 1, 0
s_and_b32 s{sH}, s{sWAVE}, 3""")
if OPT['latin']:
    I(f"""s_cmp_ge_u32 s{t+3}, 3
s_addc_u32 s{sS0}, s{t+3}, s{t+2}
s_cmp_ge_u32 s{t+4}, 3
s_addc_u32 s{sS0}, s{sS0}, s{t+4}
s_lshl_b32 s{t+1}, s{t+1}, 1
s_add_u32 s{sS0}, s{sS0}, s{t+1}
s_cmp_eq_u32 s{sRB}, 5
s_cselect_b32 s{sS0}, s{sCOL}, s{sS0}
s_and_b32 s{sS0}, s{sS0}, 7""")
else:
    I(f's_mov_b32 s{sS0}, 0')
I(f"""s_cmp_lt_u32 s{sWAVE}, 4
s_cbranch_scc1 L_C""")

vXo0, vXo1, vW, vL16, vB2 = 2, 3, 4, 7, 247
vT = 8
NTX = ' nt' if OPT['nt_x'] else ''
NTW = ' nt' if OPT['nt_w'] else ''
NTB = ' nt' if OPT['nt_b2'] else ''
k.c('---- H prologue')
I(f"""v_lshrrev_b32 v{vT}, 3, v{VLANE}
v_and_b32 v{vT+1}, 7, v{VLANE}
v_lshrrev_b32 v{vT+2}, 1, v{vT}
s_and_b32 s{t}, s{sH}, 1
s_lshl_b32 s{t+1}, s{t}, 2
v_or_b32 v{vT+3}, s{t+1}, v{vT+2}
v_xor_b32 v{vT+3}, v{vT+3}, v{vT+1}
v_lshlrev_b32 v{vT+3}, 4, v{vT+3}
s_mul_i32 s{t+2}, s{sRB}, 192
s_lshl_b32 s{t+3}, s{sISQ}, 4
s_sub_i32 s{t+2}, s{t+2}, s{t+3}
s_lshl_b32 s{t+3}, s{sH}, 3
s_add_i32 s{t+2}, s{t+2}, s{t+3}
s_add_i32 s{t+4}, s{t+2}, 32
v_add_u32 v{vXo1}, s{t+4}, v{vT}
v_lshlrev_b32 v{vXo1}, 10, v{vXo1}
v_add_u32 v{vXo1}, v{vXo1}, v{vT+3}
s_cmp_lt_i32 s{t+2}, 0
s_mov_b32 s{t+4}, -32768
s_cmov_b32 s{t+4}, 0x40000000
v_add_u32 v{vXo0}, s{t+4}, v{vXo1}
v_lshlrev_b32 v{vL16}, 4, v{VLANE}
s_cmp_eq_u32 s{sISQ}, 1
s_cbranch_scc1 L_HQ""")
I(f"""s_mul_i32 s{t+2}, s{sH}, {16*2752}
s_mul_i32 s{t+3}, s{sCOL}, 192
s_add_u32 s{t+2}, s{t+2}, s{t+3}
s_movk_i32 s{t+4}, 171
s_movk_i32 s{t+5}, 2752
s_sub_u32 s{t+6}, 2752, s{t+3}""")
for b in range(3):
    I(f"""v_add_u32 v{vT+4}, {64*b}, v{VLANE}
v_mul_u32_u24 v{vT+5}, s{t+4}, v{vT+4}
v_lshrrev_b32 v{vT+5}, 11, v{vT+5}
v_mul_u32_u24 v{vT+6}, 12, v{vT+5}
v_sub_u32 v{vT+6}, v{vT+4}, v{vT+6}
v_lshlrev_b32 v{vT+6}, 4, v{vT+6}
v_mad_u32_u24 v{vW+b}, v{vT+5}, s{t+5}, v{vT+6}
v_add_u32 v{vW+b}, s{t+2}, v{vW+b}
v_cmp_gt_u32 vcc, s{t+6}, v{vT+6}
v_mov_b32 v{vT+7}, {OOB}
v_cndmask_b32 v{vW+b}, v{vT+7}, v{vW+b}, vcc""")
I(f"""s_mul_i32 s{sLW}, s{sH}, 3072
s_add_u32 s{sLW}, s{sLW}, 24576
s_add_u32 s{sLW+1}, s{sLW}, 1024
s_add_u32 s{sLW+2}, s{sLW}, 2048
s_add_u32 s{sLW+3}, s{sLW}, 12320
s_add_u32 s{sLW+4}, s{sLW}, {12320+1024}
s_add_u32 s{sLW+5}, s{sLW}, {12320+2048}
s_mov_b32 s{sKWS}, {64*2752}
s_mov_b32 s{sC}, 0
s_mov_b32 s{sX7M}, {L_SCR}
s_mov_b32 s{sX7S}, {OOB}
s_waitcnt lgkmcnt(0)""")
mk_srd(SWA, 12, 512*2752); mk_srd(SWB, 14, 512*2752)
I('s_branch L_HJ')
k.label('L_HQ')
I(f"""v_and_b32 v{vT+4}, 1, v{vT+2}
s_lshl_b32 s{t+1}, s{t}, 1
v_or_b32 v{vT+4}, s{t+1}, v{vT+4}
v_lshlrev_b32 v{vT+4}, 1, v{vT+4}
v_xor_b32 v{vT+4}, v{vT+4}, v{vT+1}
v_lshlrev_b32 v{vT+4}, 4, v{vT+4}
s_movk_i32 s{t+5}, 3072
v_mad_u32_u24 v{vW}, v{vT}, s{t+5}, v{vT+4}
s_mul_i32 s{t+2}, s{sH}, {8*3072}
s_sub_u32 s{t+3}, s{sCOL}, 15
s_lshl_b32 s{t+3}, s{t+3}, 7
s_add_u32 s{t+2}, s{t+2}, s{t+3}
v_add_u32 v{vW}, s{t+2}, v{vW}
v_add_u32 v{vW+1}, 1024, v{vW}
v_add_u32 v{vW+2}, 2048, v{vW}
s_lshl_b32 s{sLW}, s{sH}, 10
s_add_u32 s{sLW}, s{sLW}, 26624
s_add_u32 s{sLW+1}, s{sLW}, 8192
s_add_u32 s{sLW+2}, s{sLW}, 16384
s_add_u32 s{sLW+3}, s{sLW}, 4096
s_add_u32 s{sLW+4}, s{sLW}, {4096+8192}
s_add_u32 s{sLW+5}, s{sLW}, {4096+16384}
s_mov_b32 s{sKWS}, {64*3072}
s_mov_b32 s{sC}, {32*3072}
s_lshl_b32 s{t+2}, s{sH}, 10
s_add_u32 s{t+2}, s{t+2}, {24*1024}
s_cmp_lt_u32 s{sH}, 2
s_cselect_b32 s{sX7M}, s{t+2}, {L_SCR}
s_mov_b32 s{sX7S}, {OOB}
s_cmov_b32 s{sX7S}, {5*32768}
s_waitcnt lgkmcnt(0)""")
mk_srd(SWA, 6, 512*3072); mk_srd(SWB, 6, 512*3072)
k.label('L_HJ')
mk_srd(SX, 4, 2048*1024)
I(f's_lshl_b32 s{t+10}, s{sH}, 10\ns_mov_b32 s{sKW}, 0\ns_cmp_eq_u32 s{sX7M}, {L_SCR}\ns_cselect_b32 s{t+11}, 0, 1')
sH1K, sX7R = t + 10, t + 11

sXK, sROT = t + 13, sPOS
VFL = 232
def signal_full(n):
    I(f'v_mov_b32 v237, {n}\nds_write_b32 v238, v237')
def spin(base, n):
    L = newlbl('sp'); D = newlbl('spd')
    I(f's_mov_b32 s{t+4}, 0')
    k.label(L)
    I(f"""ds_read_b128 v[{VFL}:{VFL+3}], v236 offset:{base - L_FULL}
s_add_u32 s{t+4}, s{t+4}, 1
s_waitcnt lgkmcnt(0)
v_min_u32 v{VFL}, v{VFL}, v{VFL+1}
v_min3_u32 v{VFL}, v{VFL}, v{VFL+2}, v{VFL+3}
v_cmp_gt_u32 vcc, {n}, v{VFL}
s_cmp_lt_u32 s{t+4}, 0x400000
s_cbranch_vccz {D}
s_sleep {OPT['hsleep']}
s_cbranch_scc1 {L}""")
    k.label(D)

def stage_dma(i, sig=None):
    base = (i % 3) * SLOT
    tag = f'D{i}'
    cnt = [0]
    if OPT.get('nodma') and i >= 3: return
    def after():
        cnt[0] += 1
        if sig is not None and cnt[0] == OPT['sigat']:
            stamp(9 + 2*(i-1)); k.wait_vm(f'D{i-1}'); signal_full(sig); stamp(10 + 2*(i-1))
    I(f"""s_add_u32 s{t+2}, s{sS0}, {i}
s_and_b32 s{t+2}, s{t+2}, 7
s_lshl_b32 s{sXK}, s{t+2}, 7
s_mul_i32 s{sKW}, s{t+2}, s{sKWS}""")
    for tt in range(6):
        I(f's_add_u32 m0, s{sH1K}, {base + tt*4096}')
        if tt <= 1: I(f's_nop 0\nbuffer_load_dwordx4 v{vXo0 if tt == 0 else vXo1}, {srd(SX)}, s{sXK} offen{NTX} lds', tag)
        else: I(f's_add_u32 s{t}, s{sXK}, {(tt-1)*32768}\nbuffer_load_dwordx4 v{vXo1}, {srd(SX)}, s{t} offen{NTX} lds', tag)
        after()
    I(f"""s_mul_i32 s{t}, s{sX7R}, {base}
s_add_u32 m0, s{t}, s{sX7M}
s_add_u32 s{t}, s{sX7S}, s{sXK}
buffer_load_dwordx4 v{vXo1}, {srd(SX)}, s{t} offen{NTX} lds""", tag)
    after()
    I(f's_add_u32 s{t+1}, s{sKW}, s{sC}')
    for j in range(6):
        I(f's_add_u32 m0, s{sLW+j}, {base}')
        I(f'buffer_load_dwordx4 v{vW + j%3}, {srd(SWA if j < 3 else SWB)}, s{sKW if j < 3 else t+1} offen{NTW} lds', tag)
        after()

stamp(0)
stage_dma(0)
I(f"""v_mov_b32 v236, {L_FULL}
s_lshl_b32 s{t}, s{sH}, 2
v_add_u32 v238, s{t}, v236
s_barrier""")
vRD, vSD = 20, 32
I(f"""s_mul_i32 s{t}, s{sRB}, 192
s_mul_i32 s{t+1}, s{sCOL}, 12
s_add_u32 s{t}, s{t}, s{t+1}
s_mul_i32 s{t+1}, s{sH}, 3
s_add_u32 s{t}, s{t}, s{t+1}
s_cmp_lt_u32 s{sCOL}, 16
s_cselect_b32 s{t+12}, s{t}, 0x100000
s_lshl_b32 s{t}, s{t+12}, 10""")
sROW = t + 12
for a_ in range(3):
    I(f'buffer_load_dwordx4 v[{vRD+4*a_}:{vRD+4*a_+3}], v{vL16}, {srd(SX)}, s{t} offen offset:{a_*1024}{NTX}', 'SR')
I(f'v_mov_b32 v18, 0\nglobal_load_dwordx2 v[16:17], v18, s[20:21] sc1', 'NC')
I(f"""s_getpc_b64 s[{t+2}:{t+3}]""")
k.label('L_PC')
I(f"""s_lshl_b32 s{t+4}, s{sSLOTID}, 10
v_and_b32 v{vT+4}, 7, v{VLANE}
v_lshlrev_b32 v{vT+4}, 7, v{vT+4}
v_add_u32 v{vT+4}, s{t+4}, v{vT+4}
v_min_u32 v{vT+4}, L_CODE_END-L_PC-4, v{vT+4}
global_load_dword v{vT+5}, v{vT+4}, s[{t+2}:{t+3}]""", 'CODE')
I(f"""s_lshr_b32 s{t}, s{sH}, 1
s_mul_i32 s{t}, s{t}, 12320
s_and_b32 s{t+1}, s{sH}, 1
s_lshl_b32 s{t+1}, s{t+1}, 7
s_add_u32 s{t}, s{t}, s{t+1}
s_add_u32 s{t}, s{t}, 24576
s_lshl_b32 s{t+1}, s{sH}, 13
s_add_u32 s{t+1}, s{t+1}, 26624
s_cmp_eq_u32 s{sISQ}, 1
s_cselect_b32 s{t}, s{t+1}, s{t}
s_movk_i32 s{t+1}, 192
s_cmov_b32 s{t+1}, 128
s_cselect_b32 s{t+2}, 2, 0
s_cselect_b32 s{t+3}, 64, 0
v_and_b32 v64, s{t+2}, v{vT}
v_xor_b32 v64, v64, v{vT+1}
v_lshlrev_b32 v64, 4, v64
v_mad_u32_u24 v64, v{vT}, s{t+1}, v64
v_add_u32 v64, s{t}, v64
v_xor_b32 v65, s{t+3}, v64
s_lshl_b32 s{t+1}, s{t+1}, 3
v_add_u32 v65, s{t+1}, v65
s_lshl_b32 s{t+5}, s{t+1}, 1""")
sSL2 = t + 5
I(f's_mov_b32 s{SSL}, s{sSL2}')
mk_srd(SWS, 22, WS_REC); mk_srd(SAF, 22, AF_BYTES)

def nonce_get():
    k.wait_vm('NC')
    L = newlbl('np'); D = newlbl('npd')
    I(f's_mov_b32 s{t+4}, 0')
    k.label(L)
    I(f"""v_readfirstlane_b32 s{sN}, v16
v_readfirstlane_b32 s{sN+1}, v17
s_add_u32 s{t+4}, s{t+4}, 1
s_cmp_lg_u64 s[{sN}:{sN+1}], 0
s_cbranch_scc1 {D}
s_sleep 8""")
    sv = list(k.vm)
    I(f"""global_load_dwordx2 v[16:17], v18, s[20:21] sc1
s_waitcnt vmcnt(0)
s_cmp_lt_u32 s{t+4}, 0x20000
s_cbranch_scc1 {L}""")
    k.vm = sv
    k.label(D)

def tab8(vals, dst, idx8):
    lo = sum(v << (8*i) for i, v in enumerate(vals[:4])); hi = sum(v << (8*i) for i, v in enumerate(vals[4:]))
    I(f"""s_mov_b32 s{t}, {lo}
s_mov_b32 s{t+1}, {hi}
s_lshr_b64 s[{t}:{t+1}], s[{t}:{t+1}], s{idx8}
s_and_b32 s{dst}, s{t}, 0xff""")
KBASE = [0, 16, 32, 47, 62, 76, 90, 104]
NSTEP = [16, 16, 15, 15, 14, 14, 14, 14]
PC0 = [15, 19, 0, 2, 5, 7, 9, 12]
PCN = [3, 3, 2, 2, 2, 2, 2, 2]
SWC = SSL
sBROWC, sNVC = 100, 101
def p2_params(helper):
    I(f's_lshl_b32 s{t+2}, s{sWAVE}, 3')
    tab8(KBASE, sABASE, t+2); tab8(NSTEP, sNV, t+2)
    if helper:
        mk_srd(SW2, 16, 1376*1024)
        I(f"""s_cmp_lt_u32 s{sH}, 2
s_cselect_b32 s{SWC}, s8, s16
s_cselect_b32 s{SWC+1}, s9, s17
s_mov_b32 s{SWC+2}, {1376*1024}
s_cmov_b32 s{SWC+2}, {512*1024}
s_mov_b32 s{SWC+3}, 0x20000
s_cselect_b32 s{t+3}, 0, 32
s_sub_u32 s{sBROW}, s{sABASE}, 32
s_lshl_b32 s{t+2}, s{sH}, 3""")
        tab8(KBASE, sBROWC, t+2); tab8(NSTEP, sNVC, t+2)
        I(f's_sub_u32 s{sBROWC}, s{sBROWC}, s{t+3}')
    I(f"""s_lshl_b32 s{sLB2}, s{sH}, 11
s_mul_i32 s{sROT}, s{sCB2}, {OPT['rot']}
s_mul_i32 s{t}, s{sRB2}, {OPT['rotb']}
s_add_u32 s{sROT}, s{sROT}, s{t}
s_mul_i32 s{t}, s{sRB2}, {2*118}
s_add_u32 s{sABASE}, s{sABASE}, s{t}""")

ACC, PK, VA1, VA2, VL16, VXR = 0, 64, 240, 243, 246, 250
HPK = 148
def p2_addr():
    I(f"""s_cmp_lt_u32 s{sWAVE}, 2
s_cselect_b32 s{t+6}, 10, 9
s_movk_i32 s{t+7}, 1024
s_cmov_b32 s{t+7}, 512
v_lshrrev_b32 v1, 5, v{VLANE}
v_lshlrev_b32 v1, s{t+6}, v1
v_bfe_u32 v0, v{VLANE}, 2, 1
v_lshl_add_u32 v1, v0, 7, v1
v_bfe_u32 v0, v{VLANE}, 3, 1
v_lshl_add_u32 v1, v0, 6, v1
v_bfe_u32 v0, v{VLANE}, 4, 1
v_lshl_add_u32 v1, v0, 5, v1
v_and_b32 v0, 3, v{VLANE}
v_lshl_add_u32 v1, v0, 3, v1
v_add_u32 v{VA1}, s{sLB2}, v1
v_add_u32 v{VA1+1}, 0x10000, v{VA1}
v_add_u32 v{VA1+2}, 0x20000, v{VA1}
v_add_u32 v{VA2}, s{t+7}, v{VA1}
v_add_u32 v{VA2+1}, s{t+7}, v{VA1+1}
v_add_u32 v{VA2+2}, s{t+7}, v{VA1+2}
v_lshlrev_b32 v{VL16}, 4, v{VLANE}""")
def b2_setup():
    p2_params(True)
    p2_addr()
    I(f"""v_and_b32 v{vT+4}, 4, v{vT}
v_and_b32 v{vT+5}, 1, v{vT}
v_add_u32 v{vT+4}, v{vT+4}, v{vT+5}
v_bfe_u32 v{vT+5}, v{VLANE}, 2, 1
v_lshl_add_u32 v{vT+4}, v{vT+5}, 1, v{vT+4}
v_lshlrev_b32 v{vT+4}, 10, v{vT+4}
v_bfe_u32 v{vT+5}, v{vT}, 1, 1
v_lshl_add_u32 v{vT+4}, v{vT+5}, 6, v{vT+4}
v_and_b32 v{vT+5}, 3, v{VLANE}
v_lshl_add_u32 v{vT+4}, v{vT+5}, 4, v{vT+4}
s_lshl_b32 s{t}, s{sCB2}, 7
v_add_u32 v{vB2}, s{t}, v{vT+4}""")

SIG_P = [13,14,15,16,17,18, 0,1,2,3,4,5, 3,4,5,3]
SIG_L = [6,7,8,9,10,11,12, 13,14,15,16,17,18, 0,1,2]
RAWL = [64 + 8*j for j in range(16)]
PKR = [64 + 8*j for j in range(6)] + [120 + 8*j for j in range(6)] + [192 + 8*j for j in range(4)]
HAW = [112, 168, 176, 184, 224]
def b2_off(step, own):
    I(f"""s_add_u32 s{t+2}, s{sROT}, {step}
s_and_b32 s{t+2}, s{t+2}, 15
s_add_u32 s{t}, s{sBROW if own else sBROWC}, s{t+2}
s_lshl_b32 s{t}, s{t}, 14
s_cmp_lt_u32 s{t+2}, s{sNV if own else sNVC}
s_cselect_b32 s{t}, s{t}, {OOB}
s_add_u32 s{t+1}, s{t}, 8192""")
def b2_dma(step, own, tag):
    sig = (SIG_P if own else SIG_L)[step]
    b2_off(step, own)
    I(f"""s_add_u32 m0, s{sLB2}, {sig*8192}
buffer_load_dwordx4 v{vB2}, {srd(SW2)}, s{t} offen{NTB} lds
s_add_u32 m0, s{sLB2}, {sig*8192 + 1024}
buffer_load_dwordx4 v{vB2}, {srd(SW2)}, s{t+1} offen{NTB} lds""", tag)
def b2_raw(step, own, d, tag):
    b2_off(step, own)
    sr = srd(SW2 if own else SWC)
    I(f"""buffer_load_dwordx4 v[{d}:{d+3}], v{vB2}, {sr}, s{t} offen{NTB}
buffer_load_dwordx4 v[{d+4}:{d+7}], v{vB2}, {sr}, s{t+1} offen{NTB}""", tag)
def b2_put(sig, d):
    I(f"""v_add_u32 v237, {sig*8192}, v231
ds_write_b128 v237, v[{d}:{d+3}]
ds_write_b128 v237, v[{d+4}:{d+7}] offset:1024""")
def tr_reads(sig, dst):
    off = sig * 8192; r = off >> 16; off &= 0xffff
    for ct in range(2):
        I(f'ds_read_b64_tr_b16 v[{dst+4*ct}:{dst+4*ct+1}], v{VA1+r} offset:{off+ct*256}')
        I(f'ds_read_b64_tr_b16 v[{dst+4*ct+2}:{dst+4*ct+3}], v{VA2+r} offset:{off+ct*256}')

def row_stats():
    k.wait_vm('SR')
    vA = 66
    for a in range(3):
        for d in range(4):
            D = vRD + 4*a + d
            I(f'v_lshlrev_b32 v72, 16, v{D}\nv_and_b32 v73, 0xffff0000, v{D}')
            if d == 0:
                I(f'v_add_f32 v{vA+2*a}, v72, v73\nv_mul_f32 v{vA+2*a+1}, v72, v72\nv_fmac_f32 v{vA+2*a+1}, v73, v73')
            else:
                I(f'v_add_f32 v{vA+2*a}, v{vA+2*a}, v72\nv_fmac_f32 v{vA+2*a+1}, v72, v72\nv_add_f32 v{vA+2*a}, v{vA+2*a}, v73\nv_fmac_f32 v{vA+2*a+1}, v73, v73')
    for step in ('row_shr:1 row_mask:0xf bank_mask:0xf bound_ctrl:0', 'row_shr:2 row_mask:0xf bank_mask:0xf bound_ctrl:0',
                 'row_shr:4 row_mask:0xf bank_mask:0xf bound_ctrl:0', 'row_shr:8 row_mask:0xf bank_mask:0xf bound_ctrl:0',
                 'row_bcast:15 row_mask:0xa bank_mask:0xf', 'row_bcast:31 row_mask:0xc bank_mask:0xf'):
        for i in range(6): I(f'v_add_f32_dpp v{vA+i}, v{vA+i}, v{vA+i} {step}')
    I(f"""s_lshl_b32 s{t}, s{sROW}, 4
s_add_u32 s{t}, s{t}, {W_RS}
s_cmp_lt_u32 s{sROW}, 2048
s_cselect_b32 s{t}, s{t}, {OOB}
v_mov_b32 v74, {OOB}
v_cmp_eq_u32 vcc, 63, v{VLANE}
v_cndmask_b32 v74, v74, 0, vcc
s_mov_b32 s{t+1}, {f32(1/512)}
s_mov_b32 s{t+2}, {f32(1e-5)}""")
    for a in range(3):
        G = 76 + 4*a
        I(f"""v_mul_f32 v{G}, s{t+1}, v{vA+2*a}
v_mul_f32 v{G+1}, s{t+1}, v{vA+2*a+1}
v_fma_f32 v{G+1}, -v{G}, v{G}, v{G+1}
v_max_f32 v{G+1}, 0, v{G+1}
v_add_f32 v{G+1}, s{t+2}, v{G+1}
v_mov_b32 v{G+2}, s{sN}
v_mov_b32 v{G+3}, s{sN+1}
buffer_store_dwordx4 v[{G}:{G+3}], v74, {srd(SWS)}, s{t} offen offset:{16*a} sc1""", 'PUB')

def slab_reads():
    for a in range(8):
        I(f'ds_read_b128 v[{vSD+4*a}:{vSD+4*a+3}], v{64 + (a & 1)}')
        if a & 1 and a < 7: I(f'v_add_u32 v64, s{SSL}, v64\nv_add_u32 v65, s{SSL}, v65')
    I('s_waitcnt lgkmcnt(0)')

def col_stats():
    vA = 90
    for a in range(8):
        for d in range(4):
            D = vSD + 4*a + d
            if a == 0:
                I(f'v_lshlrev_b32 v{vA+2*d}, 16, v{D}\nv_and_b32 v{vA+2*d+1}, 0xffff0000, v{D}')
            else:
                I(f'v_lshlrev_b32 v72, 16, v{D}\nv_and_b32 v73, 0xffff0000, v{D}\nv_add_f32 v{vA+2*d}, v{vA+2*d}, v72\nv_add_f32 v{vA+2*d+1}, v{vA+2*d+1}, v73')
    for e in range(4): I(f'v_permlane32_swap_b32 v{vA+e}, v{vA+e+4}')
    for e in range(4): I(f'v_add_f32 v{vA+e}, v{vA+e}, v{vA+e+4}')
    for e in range(2): I(f'v_permlane16_swap_b32 v{vA+e}, v{vA+e+2}')
    for e in range(2): I(f'v_add_f32 v{vA+e}, v{vA+e}, v{vA+e+2}')
    for e in range(2): I(f'v_add_f32_dpp v{vA+8+e}, v{vA+e}, v{vA+e} row_ror:8 row_mask:0xf bank_mask:0xf')
    I(f"""v_mov_b32 v{vA+10}, s{sN}
v_mov_b32 v{vA+11}, s{sN+1}
v_lshrrev_b32 v72, 4, v{VLANE}
v_lshl_add_u32 v72, v{vT+1}, 2, v72
v_lshlrev_b32 v72, 4, v72
v_and_b32 v73, 8, v{VLANE}
v_cmp_eq_u32 vcc, 0, v73
v_mov_b32 v73, {OOB}
v_cndmask_b32 v72, v73, v72, vcc
s_lshl_b32 s{t}, s{sCOL}, 14
s_lshl_b32 s{t+1}, s{sS0}, 11
s_add_u32 s{t}, s{t}, s{t+1}
s_lshl_b32 s{t+1}, s{sH}, 9
s_add_u32 s{t}, s{t}, s{t+1}
s_add_u32 s{t}, s{t}, {W_CSP}
buffer_store_dwordx4 v[{vA+8}:{vA+11}], v72, {srd(SWS)}, s{t} offen sc1""", 'PUB')

vCL = 4*2+2
vCL = 20
sVAL = t + 8
def collect_setup():
    I(f"""s_lshl_b32 s{t}, s{sH}, 9
s_lshl_b32 s{t+1}, s{sCOL}, 14
s_add_u32 s{t}, s{t}, s{t+1}
s_add_u32 s{t}, s{t}, {W_CSP}
v_and_b32 v40, 31, v{VLANE}
v_lshlrev_b32 v40, 4, v40
v_lshrrev_b32 v41, 5, v{VLANE}
v_lshl_add_u32 v40, v41, 13, v40
v_add_u32 v40, s{t}, v40
s_lshl_b32 s{t}, s{sH}, 6
v_add_u32 v42, s{t}, v{VLANE}
s_mul_i32 s{t}, s{sRB}, 192
s_lshl_b32 s{t+1}, s{sISQ}, 4
s_sub_i32 s{t}, s{t}, s{t+1}
v_add_u32 v41, s{t}, v42
s_add_u32 s{t+1}, s{t+1}, 192
v_cmp_gt_u32 vcc, s{t+1}, v42
s_mov_b64 s[{t+2}:{t+3}], vcc
v_mov_b32 v43, 2048
v_cmp_gt_u32 vcc, v43, v41
s_and_b64 s[{sVAL}:{sVAL+1}], vcc, s[{t+2}:{t+3}]
v_lshlrev_b32 v41, 4, v41
v_add_u32 v41, {W_RS}, v41
v_mov_b32 v43, {OOB}
v_cndmask_b32 v41, v43, v41, s[{sVAL}:{sVAL+1}]
v_lshlrev_b32 v44, 4, v42
v_add_u32 v44, {L_AOS}, v44
v_mov_b32 v43, {L_SCR}
v_cndmask_b32 v44, v43, v44, s[{t+2}:{t+3}]
v_lshlrev_b32 v45, 2, v42
v_add_u32 v45, {L_SM}, v45
s_lshl_b32 s{t}, s{sH}, 8
s_add_u32 s{t}, s{t}, {L_CS}
v_and_b32 v43, 31, v{VLANE}
v_lshlrev_b32 v43, 3, v43
v_add_u32 v43, s{t}, v43""")
def collect_loads(tag):
    for p in range(4):
        if p < 2: I(f'buffer_load_dwordx4 v[{vCL+4*p}:{vCL+4*p+3}], v40, {srd(SWS)}, 0 offen offset:{p*2048} sc1', tag)
        else: I(f's_movk_i32 s{t}, {p*2048}\nbuffer_load_dwordx4 v[{vCL+4*p}:{vCL+4*p+3}], v40, {srd(SWS)}, s{t} offen sc1', tag)
    I(f'buffer_load_dwordx4 v[{vCL+16}:{vCL+19}], v41, {srd(SWS)}, 0 offen sc1', tag)
def collect_check(ok):
    I(f"""v_cmp_eq_u64 vcc, s[{sN}:{sN+1}], v[{vCL+18}:{vCL+19}]
s_orn2_b64 s[{t+2}:{t+3}], vcc, s[{sVAL}:{sVAL+1}]""")
    for p in range(4):
        I(f"""v_cmp_eq_u64 vcc, s[{sN}:{sN+1}], v[{vCL+4*p+2}:{vCL+4*p+3}]
s_and_b64 s[{t+2}:{t+3}], s[{t+2}:{t+3}], vcc""")
    I(f's_cmp_eq_u64 s[{t+2}:{t+3}], -1\ns_cbranch_scc1 {ok}')
def collect_finish():
    k.wait_vm('CL')
    ok = newlbl('clok'); L = newlbl('clre')
    collect_check(ok)
    I(f's_mov_b32 s{t+4}, 0')
    k.label(L)
    sv = list(k.vm)
    I('s_sleep 4')
    collect_loads(None)
    I(f's_waitcnt vmcnt(0)\ns_add_u32 s{t+4}, s{t+4}, 1')
    collect_check(ok)
    I(f's_cmp_lt_u32 s{t+4}, 0x20000\ns_cbranch_scc1 {L}')
    k.vm = sv
    k.label(ok)
    R = vCL + 16
    I(f"""v_add_f32 v{vCL}, v{vCL}, v{vCL+4}
v_add_f32 v{vCL+1}, v{vCL+1}, v{vCL+5}
v_add_f32 v{vCL+8}, v{vCL+8}, v{vCL+12}
v_add_f32 v{vCL+9}, v{vCL+9}, v{vCL+13}
v_add_f32 v{vCL}, v{vCL}, v{vCL+8}
v_add_f32 v{vCL+1}, v{vCL+1}, v{vCL+9}
v_cndmask_b32 v{R}, 0, v{R}, s[{sVAL}:{sVAL+1}]
v_cndmask_b32 v{R+2}, 1.0, v{R+1}, s[{sVAL}:{sVAL+1}]
v_mov_b32 v{vCL+2}, v{vCL}
v_mov_b32 v{vCL+3}, v{vCL+1}
v_rsq_f32 v{R+1}, v{R+2}
s_cmp_eq_u32 s{sISQ}, 1
s_mov_b32 s{t}, {f32(-LOG2E)}
s_cmov_b32 s{t}, {f32(0.25*LOG2E)}
v_permlane32_swap_b32 v{vCL}, v{vCL+2}
v_permlane32_swap_b32 v{vCL+1}, v{vCL+3}
v_mul_f32 v{R+3}, s{t}, v{R+1}
v_add_f32 v{vCL}, v{vCL}, v{vCL+2}
v_add_f32 v{vCL+1}, v{vCL+1}, v{vCL+3}
ds_write_b128 v44, v[{R}:{R+3}]
ds_write_b32 v45, v{R}
ds_write_b32 v45, v{R+1} offset:1024
ds_write_b64 v43, v[{vCL}:{vCL+1}]
ds_write_b64 v236, v[16:17] offset:{L_NONCE - L_FULL}
s_waitcnt lgkmcnt(0)""")

def b2_touch(part):
    if part == 0:
        mk_srd(SOUT, 16, 1376*1024)
        I(f"""s_lshl_b32 s{t}, s{sSLOTID}, 2
s_add_u32 s{t}, s{t}, s{sH}
s_mul_i32 s{t}, s{t}, 43*256
v_lshlrev_b32 v48, 7, v{VLANE}
v_add_u32 v48, s{t}, v48
v_cmp_gt_u32 vcc, 43, v{VLANE}
v_mov_b32 v50, {OOB}
v_cndmask_b32 v48, v50, v48, vcc
buffer_load_dword v51, v48, {srd(SOUT)}, 0 offen""", 'TB')
    elif part == 1:
        I(f"""s_movk_i32 s{t}, 43*128
buffer_load_dword v52, v48, {srd(SOUT)}, s{t} offen""", 'TB')
    else:
        I(f"""s_lshl_b32 s{t}, s{sSLOTID}, 2
s_add_u32 s{t}, s{t}, s{sH}
s_lshl_b32 s{t}, s{t}, 12
v_and_b32 v48, 31, v{VLANE}
v_lshlrev_b32 v48, 7, v48
v_add_u32 v48, s{t}, v48""")
        mk_srd(SOUT, 8, 512*1024)
        I(f'buffer_load_dword v53, v48, {srd(SOUT)}, 0 offen', 'TB')
def chip_touch():
    mk_srd(SOUT, 16, 1376*1024)
    I(f"""s_mul_i32 s{t}, s2, 43
s_mul_i32 s{t+1}, s{sH}, 11
s_add_u32 s{t}, s{t}, s{t+1}
s_sub_u32 s{t+1}, 43, s{t+1}
s_min_u32 s{t+1}, s{t+1}, 11
v_add_u32 v48, s{t}, v{VLANE}
v_lshlrev_b32 v48, 7, v48
v_cmp_gt_u32 vcc, s{t+1}, v{VLANE}
v_mov_b32 v50, {OOB}
v_cndmask_b32 v48, v50, v48, vcc
buffer_load_dword v51, v48, {srd(SOUT)}, 0 offen""", 'TB')
    mk_srd(SOUT, 8, 512*1024)
    I(f"""s_lshl_b32 s{t}, s2, 2
s_add_u32 s{t}, s{t}, s{sH}
s_lshl_b32 s{t}, s{t}, 2
v_and_b32 v49, 3, v{VLANE}
v_add_u32 v49, s{t}, v49
v_lshlrev_b32 v49, 7, v49
buffer_load_dword v52, v49, {srd(SOUT)}, 0 offen""", 'TB')
def touch_at(i):
    if OPT['ct'] == i: chip_touch()
    for p in range(3):
        if OPT[f'tb{p}'] == i: b2_touch(p)

def landed(i):
    stamp(9 + 2*i); k.wait_vm(f'D{i}'); signal_full(i + 1); stamp(10 + 2*i); touch_at(i)
touch_at(0)
stage_dma(1, 1)
spin(L_FULL, 1); slab_reads()
stamp(1)
stage_dma(2, 2)
nonce_get(); col_stats(); landed(2)
spin(L_FULL, 2); spin(L_FREE, 1)
stage_dma(3); row_stats(); landed(3)
spin(L_FREE, 2); stage_dma(4); b2_setup(); collect_setup(); landed(4)
spin(L_FREE, 3); stage_dma(5); landed(5)
for j in range(OPT['nr5']): b2_raw(j, False, RAWL[j], 'RL')
spin(L_FREE, 4); stage_dma(6); collect_loads('CL'); landed(6)
for j in range(OPT['nr5'], OPT['nr6']): b2_raw(j, False, RAWL[j], 'RL')
spin(L_FREE, 5); stage_dma(7)
collect_finish()
NR0 = OPT['nr0']
NR0 = max(NR0, OPT['nr6'])
for j in range(OPT['nr6'], NR0): b2_raw(j, False, RAWL[j], 'RL')
landed(7); signal_full(9)
for j in range(NR0, 16): b2_raw(j, False, RAWL[j], 'RL')
for j in range(12, 16): b2_raw(j, True, PKR[j], 'RP')
I(f'v_add_u32 v231, s{sLB2}, v{VL16}')
spin(L_FREE, 6); stamp(2)
for j in range(6): b2_dma(j, True, 'PA')
spin(L_FREE, 7)
for j in range(6, 12): b2_dma(j, True, 'PB')
spin(L_FREE, 8); stamp(3)
k.wait_vm('RL')
for j in range(7): b2_put(SIG_L[j], RAWL[j])
k.wait_vm('PA', 0)
for j in range(6): tr_reads(SIG_P[j], PKR[j])
I('s_waitcnt lgkmcnt(0)')
for j in range(7, 13): b2_put(SIG_L[j], RAWL[j])
k.wait_vm('PB', 0)
for j in range(6, 12): tr_reads(SIG_P[j], PKR[j])
I('s_waitcnt lgkmcnt(0)')
for j in range(13, 16): b2_put(SIG_L[j], RAWL[j])
for j in range(12, 15): b2_put(SIG_P[j], PKR[j])
I('s_waitcnt lgkmcnt(0)')
signal_full(10)
for j in range(12, 15): tr_reads(SIG_P[j], PKR[j])
I('s_waitcnt lgkmcnt(0)')
b2_put(SIG_P[15], PKR[15])
I('s_waitcnt lgkmcnt(0)')
tr_reads(SIG_P[15], PKR[15])
I('s_waitcnt lgkmcnt(0)')
k.vm_reset()
stamp(4)

k.label('L_P2')
k.c('---- phase 2 setup')
VOO, VP = 248, 232
I(f's_lshl_b32 s{t+5}, s{sWAVE}, 3')
tab8(PC0, t+6, t+5); tab8(PCN, t+7, t+5)
I(f"""s_mul_i32 s{t}, s{sRB2}, 86
s_lshr_b32 s{t}, s{t}, 8
s_mul_i32 s{t}, s{t}, 23
s_add_u32 s{t}, s{t}, s{t+6}
v_lshrrev_b32 v1, 2, v{VLANE}
v_min_u32 v1, s{t+7}, v1
v_add_u32 v1, s{t}, v1
v_lshlrev_b32 v1, 7, v1
v_and_b32 v2, 3, v{VLANE}
v_lshl_add_u32 v1, v2, 4, v1
v_add_u32 v{VP}, {W_FL}, v1
s_lshr_b32 s{t}, s{sWAVE}, 2
s_lshl_b32 s{t}, s{t}, 5
s_lshl_b32 s{t+1}, s{sRB2}, 6
s_add_u32 s{t}, s{t}, s{t+1}
v_and_b32 v1, 31, v{VLANE}
v_add_u32 v1, s{t}, v1
v_lshlrev_b32 v1, 10, v1
v_lshrrev_b32 v2, 5, v{VLANE}
v_lshl_add_u32 v1, v2, 4, v1
s_lshl_b32 s{t}, s{sCB2}, 7
s_lshl_b32 s{t+1}, s{sH}, 5
s_add_u32 s{t}, s{t}, s{t+1}
v_add_u32 v{VOO}, s{t}, v1
v_add_u32 v{VOO+1}, {118*1024}, v{VL16}
s_mov_b32 s{t+4}, 0""")
stamp(5)
if OPT['pmask']: I('s_mov_b64 exec, 0xffff')
k.label('L_POLL')
I(f"""buffer_load_dwordx2 v[{VP+2}:{VP+3}], v{VP}, {srd(SWS)}, 0 offen sc1
s_add_u32 s{t+4}, s{t+4}, 1
s_waitcnt vmcnt(0)
v_cmp_eq_u64 vcc, s[{sN}:{sN+1}], v[{VP+2}:{VP+3}]
s_cmp_eq_u64 vcc, exec
s_cbranch_scc1 L_POLLED
s_sleep {OPT['psleep']}
s_cmp_lt_u32 s{t+4}, 0x20000
s_cbranch_scc1 L_POLL""")
k.label('L_POLLED')
I('s_mov_b64 exec, -1')
if OPT['pbar']: I('s_barrier')
k.vm_reset()
stamp(6)
def a_load(i, AW):
    d = AW[i % len(AW)]
    I(f"""s_add_u32 s{t+2}, s{sROT}, {i}
s_and_b32 s{t+2}, s{t+2}, 15
s_add_u32 s{t}, s{sABASE}, s{t+2}
s_lshl_b32 s{t}, s{t}, 10
s_cmp_lt_u32 s{t+2}, s{sNV}
s_cselect_b32 s{t}, s{t}, {OOB}
buffer_load_dwordx4 v[{d}:{d+3}], v{VL16}, {srd(SAF)}, s{t} offen{OPT_ALD}
buffer_load_dwordx4 v[{d+4}:{d+7}], v{VOO+1}, {srd(SAF)}, s{t} offen{OPT_ALD}""", f'A{i}')
def p2_stream(helper):
    AW = HAW[:OPT['naw']] if helper else [96 + 8*j for j in range(OPT['nawc'])]
    nw = len(AW)
    BD = 64
    for i in range(nw): a_load(i, AW)
    if not helper:
        L = newlbl('pw'); D = newlbl('pwd')
        I(f's_lshl_b32 s{t}, s{sH}, 2\ns_add_u32 s{t}, s{t}, {L_FULL}\nv_mov_b32 v238, s{t}\ns_mov_b32 s{t+4}, 0')
        k.label(L)
        I(f"""ds_read_b32 v239, v238
s_add_u32 s{t+4}, s{t+4}, 1
s_waitcnt lgkmcnt(0)
v_cmp_gt_u32 vcc, 10, v239
s_cmp_lt_u32 s{t+4}, 0x400000
s_cbranch_vccz {D}
s_cbranch_scc1 {L}""")
        k.label(D)
        tr_reads(SIG_L[0], BD); tr_reads(SIG_L[1], BD + 8)
    stamp(25)
    for i in range(16):
        if not helper and i + 2 < 16: tr_reads(SIG_L[i + 2], BD + 8*((i + 2) % 3))
        b = PKR[i] if helper else BD + 8*(i % 3)
        a = AW[i % nw]
        k.wait_vm(f'A{i}', None if helper else 4*min(2, 15 - i))
        for mt in range(2):
            for ct in range(2):
                r = ACC + 32*mt + 16*ct
                I(f'v_mfma_f32_32x32x16_bf16 v[{r}:{r+15}], v[{b+4*ct}:{b+4*ct+3}], v[{a+4*mt}:{a+4*mt+3}], ' + ('0' if i == 0 else f'v[{r}:{r+15}]'))
        if i + nw < 16: a_load(i + nw, AW)
        if i + nw == 16 or (nw == 16 and i == 0): I(f'buffer_load_dwordx4 v[{VXR}:{VXR+3}], v{VOO}, {srd(SX)}, 0 offen', 'XR')
        if i in (0, 3, 7, 11): stamp(26 + (i + 1)//4)
I(f's_cmp_lt_u32 s{sWAVE}, 4\ns_cbranch_scc1 L_P2C')
p2_stream(True)
I('s_branch L_P2E')
k.label('L_P2C')
k.vm_reset()
p2_stream(False)
k.label('L_P2E')
stamp(7)
k.c('---- reduction + final epilogue')
mk_srd(SOUT, 18, 2048*1024)
I(f"""s_lshl_b32 s{t}, s{sWAVE}, 11
v_add_u32 v64, s{t}, v{VL16}
v_add_u32 v65, 0x10000, v64
s_lshl_b32 s{t}, s{sWAVE}, 14
v_add_u32 v66, s{t}, v{VL16}
s_barrier""")
for d in range(8):
    for hf in range(2):
        I(f'ds_write_b128 v{64 + (d >> 2)}, v[{8*d+4*hf}:{8*d+4*hf+3}] offset:{(d & 3)*16384 + hf*1024}')
I('s_waitcnt lgkmcnt(0)\ns_barrier')
stamp(31)
R = 72
order = [2, 3, 4, 5, 6, 7, 0, 1]
for s_ in order:
    for hf in range(2): I(f'ds_read_b128 v[{R+8*s_+4*hf}:{R+8*s_+4*hf+3}], v66 offset:{s_*2048 + hf*1024}')
I(f's_mov_b32 s{t}, {f32(-LOG2E)}\ns_mov_b32 s{t+1}, {f32(-LOG2E)}\ns_mov_b32 s{t+2}, 1.0\ns_mov_b32 s{t+3}, 1.0\ns_waitcnt vmcnt(0)')
X = 140
I(f'v_permlane32_swap_b32 v{VXR}, v{VXR+2}\nv_permlane32_swap_b32 v{VXR+1}, v{VXR+3}')
for d in range(4): I(f'v_lshlrev_b32 v{X+2*d}, 16, v{VXR+d}\nv_and_b32 v{X+2*d+1}, 0xffff0000, v{VXR+d}')
F, E, S0 = R + 16, 148, R
PR = lambda r, p: f'v[{r+2*p}:{r+2*p+1}]'
for n_, s_ in enumerate(order[1:6]):
    I(f's_waitcnt lgkmcnt({12 - 2*n_})')
    for p in range(4): I(f'v_pk_add_f32 {PR(F,p)}, {PR(F,p)}, {PR(R+8*s_,p)}')
for p in range(4): I(f'v_pk_mul_f32 {PR(E,p)}, {PR(F,p)}, s[{t}:{t+1}]')
I('s_waitcnt lgkmcnt(0)')
for p in range(4): I(f'v_exp_f32 v{E+2*p}, v{E+2*p}\nv_exp_f32 v{E+2*p+1}, v{E+2*p+1}\nv_pk_add_f32 {PR(S0,p)}, {PR(S0,p)}, {PR(R+8,p)}')
for p in range(4): I(f'v_pk_add_f32 {PR(E,p)}, {PR(E,p)}, s[{t+2}:{t+3}]')
for p in range(4): I(f'v_rcp_f32 v{E+2*p}, v{E+2*p}\nv_rcp_f32 v{E+2*p+1}, v{E+2*p+1}\nv_pk_mul_f32 {PR(F,p)}, {PR(F,p)}, {PR(S0,p)}')
for p in range(4): I(f'v_pk_fma_f32 {PR(F,p)}, {PR(F,p)}, {PR(E,p)}, {PR(X,p)}')
for p in range(4): I(f'v_cvt_pk_bf16_f32 v{E+8+p}, v{F+2*p}, v{F+2*p+1}')
I(f'v_permlane32_swap_b32 v{E+8}, v{E+10}\nv_permlane32_swap_b32 v{E+9}, v{E+11}')
I(f'buffer_store_dwordx4 v[{E+8}:{E+11}], v{VOO}, {srd(SOUT)}, 0 offen{OPT_OUTST}')
if OPT['diag']:
    I('s_waitcnt vmcnt(0)')
    stamp(8)
    I(f"""s_lshl_b32 s{t}, s2, 3
s_add_u32 s{t}, s{t}, s{sWAVE}
s_lshl_b32 s{t}, s{t}, 8
s_add_u32 s{t}, s{t}, {W_DIAG}
v_lshlrev_b32 v1, 2, v{VLANE}
buffer_store_dword v{VDIAG}, v1, {srd(SWS)}, s{t} offen""")
    if OPT['diag'] == 2:
        I(f"""s_cmp_lg_u32 s2, {OPT.get('dw', 0)}
s_cbranch_scc1 L_END
s_and_b32 s{t}, s{sWAVE}, 3
s_cmp_lg_u32 s{t}, 0
s_cbranch_scc1 L_END
s_cmp_eq_u32 s{sWAVE}, 0
s_cselect_b32 s{t}, 8, 44
s_cselect_b32 s{t+1}, 9, 5
v_add_u32 v1, s{t}, v1
v_cmp_gt_u32 vcc, s{t+1}, v{VLANE}
s_and_saveexec_b64 s[{t+2}:{t+3}], vcc
global_store_dword v1, v{VDIAG}, s[20:21]""")
if OPT.get('padto'):
    k.label('L_PAD')
    I(f"""s_memrealtime s[{t}:{t+1}]
s_waitcnt lgkmcnt(0)
s_sub_u32 s{t}, s{t}, s98
s_cmp_lt_u32 s{t}, {OPT['padto']}
s_cbranch_scc1 L_PAD""")
k.label('L_END')
I('s_endpgm')

k.label('L_C')
k.ins.clear(); k.vm_reset()
I('s_waitcnt lgkmcnt(0)')
stamp(0)
NW = newlbl('nw')
I(f"""s_or_b32 s{t}, s2, s{sWAVE}
s_cmp_lg_u32 s{t}, 0
s_cbranch_scc1 {NW}
s_memrealtime s[{t+2}:{t+3}]
s_waitcnt lgkmcnt(0)
s_or_b32 s{t+2}, s{t+2}, 1
v_mov_b32 v2, s{t+2}
v_mov_b32 v3, s{t+3}
v_mov_b32 v4, 0
global_store_dwordx2 v4, v[2:3], s[20:21] sc1""")
k.label(NW)
mk_srd(SX, 4, 2048*1024); mk_srd(SWS, 22, WS_REC); mk_srd(SAF, 22, AF_BYTES)
p2_params(False)
VCF, VFU, VFR, VTM = 248, 246, 245, 247
I(f"""v_mov_b32 v{VFU}, {L_FULL}
s_lshl_b32 s{t}, s{sWAVE}, 2
v_add_u32 v{VFR}, s{t}, v{VFU}
v_mov_b32 v{VTM}, 0
ds_write_b32 v{VFR}, v{VTM}
ds_write_b32 v{VFR}, v{VTM} offset:16
s_waitcnt lgkmcnt(0)
s_barrier
s_cmp_eq_u32 s{sISQ}, 1
s_cbranch_scc1 L_CQ""")
sNEED = t + 11
def c_flag_read(): I(f'ds_read_b128 v[{VCF}:{VCF+3}], v{VFU}')
def c_check(spinl):
    I(f"""v_min_u32 v{VCF}, v{VCF}, v{VCF+1}
v_min3_u32 v{VCF}, v{VCF}, v{VCF+2}, v{VCF+3}
v_cmp_gt_u32 vcc, s{sNEED}, v{VCF}""")
def c_spin_block(spinl, back):
    k.label(spinl)
    I(f's_mov_b32 s{t+4}, 0')
    k.label(spinl + '_l')
    c_flag_read()
    I(f's_add_u32 s{t+4}, s{t+4}, 1\ns_waitcnt lgkmcnt(0)')
    c_check(None)
    if OPT['diag']: I(f's_add_u32 m0, s{sNEED}, 8\ns_nop 0\nv_writelane_b32 v{VDIAG}, s{t+4}, m0')
    I(f's_cmp_lt_u32 s{t+4}, 0x400000\ns_cbranch_vccz {back}\ns_cbranch_scc1 {spinl}_l\ns_branch {back}')

def publish_flag():
    stamp(30)
    I(f"""s_mul_i32 s{t}, s{sRB}, 23
s_add_u32 s{t}, s{t}, s{sCOL}
s_lshl_b32 s{t}, s{t}, 7
s_lshl_b32 s{t+1}, s{sWAVE}, 4
s_add_u32 s{t}, s{t}, s{t+1}
s_add_u32 s{t}, s{t}, {W_FL}
v_mov_b32 v250, {OOB}
v_cmp_eq_u32 vcc, 0, v{VLANE}
v_cndmask_b32 v250, v250, 0, vcc
v_mov_b32 v251, {L_NONCE}
ds_read_b64 v[252:253], v251
s_waitcnt vmcnt(0) lgkmcnt(0)
v_readfirstlane_b32 s{sN}, v252
v_readfirstlane_b32 s{sN+1}, v253
buffer_store_dwordx2 v[252:253], v250, {srd(SWS)}, s{t} offen sc1
s_lshl_b32 s{t}, s{sWAVE}, 2
s_add_u32 s{t}, s{t}, {L_FREE}
v_mov_b32 v250, s{t}
v_mov_b32 v251, 9
ds_write_b32 v250, v251""")
    stamp(4)
    p2_addr()
    I('s_branch L_P2')

sSL, sIT = t + 12, t + 13
sDL = t + 10
def next_slot():
    I(f"""s_add_u32 s{sSL}, s{sSL}, 1
s_mov_b32 s{sDL}, {SLOT}
s_cmp_eq_u32 s{sSL}, 3
s_cmov_b32 s{sDL}, {-2*SLOT}
s_cmov_b32 s{sSL}, 0""")
lg = []
def lg_wait(tags):
    idx = max((i for i, x in enumerate(lg) if x in tags), default=None)
    if idx is None: return
    n = min(15, len(lg) - 1 - idx)
    I(f's_waitcnt lgkmcnt({n})')
    del lg[:len(lg) - n]

k.c('---- C FFN')
XF, WF, XA, WA = 144, 192, 240, 244
I(f"""s_lshr_b32 s{t}, s{sWAVE}, 1
s_and_b32 s{t+1}, s{sWAVE}, 1
s_mul_i32 s{t+2}, s{t}, {96*128}
v_and_b32 v150, 31, v{VLANE}
v_bfe_u32 v151, v{VLANE}, 1, 3
v_lshrrev_b32 v152, 5, v{VLANE}
v_xor_b32 v151, v151, v152
v_lshlrev_b32 v150, 7, v150
v_add_u32 v150, s{t+2}, v150""")
for j in range(4):
    I(f'v_xor_b32 v153, {2*j}, v151\nv_lshl_add_u32 v{XA+j}, v153, 4, v150')
I(f"""v_bfe_u32 v150, v{VLANE}, 2, 2
v_lshl_add_u32 v150, v152, 3, v150
v_mul_u32_u24 v150, 192, v150
v_bfe_u32 v151, v{VLANE}, 4, 1
v_mul_u32_u24 v151, 12320, v151
v_add_u32 v150, v150, v151
v_and_b32 v151, 3, v{VLANE}
v_lshl_add_u32 v150, v151, 3, v150
s_mul_i32 s{t+2}, s{t+1}, 96
s_add_u32 s{t+2}, s{t+2}, 24576
v_add_u32 v{WA}, s{t+2}, v150""")
for r in range(144): I(f'v_mov_b32 v{r}, 0')
I(f's_mov_b32 s{sSL}, 0')
def ffn_reads(u):
    out = []
    def xr(a):
        d = XF + 12*u + 4*a
        return (f'ds_read_b128 v[{d}:{d+3}], v{XA+u} offset:{a*4096}', ('x', a, u))
    def wr(b, s_):
        d = WF + 12*u + 4*b
        return (f'ds_read_b64_tr_b16 v[{d+2*s_}:{d+2*s_+1}], v{WA} offset:{(16*u+4*s_)*192 + b*32}', ('w', b, s_, u))
    return [xr(0), wr(0,0), wr(0,1), wr(1,0), wr(1,1), wr(2,0), wr(2,1), xr(1), xr(2)]
def rd(x): I(x[0]); lg.append(x[1])
stamp(1)
I(f's_setprio {OPT["cprio"]}\ns_mov_b32 s{sNEED}, 1\ns_branch L_FSP0')
c_spin_block('L_FSP', 'L_FBK')
c_spin_block('L_FSP0', 'L_FGO')
k.label('L_FGO')
stamp(2)
lg.clear()
for x in ffn_reads(0): rd(x)
I(f'ds_read_b32 v{VTM}, v{VFU}'); lg.append('free')
for x in ffn_reads(1): rd(x)
entry = list(lg)
k.label('L_FLOOP')
m0_ = k.mark()
for u in range(4):
    q = ffn_reads((u + 2) & 3)
    n = 0
    for a in range(3):
        for b in range(3):
            lg_wait([('x', a, u), ('w', b, 0, u), ('w', b, 1, u)] + (['flag'] if (u, n) == (1, 7) else []))
            if (u, n) == (1, 7):
                I(f's_add_u32 s{sNEED}, s{sNEED}, 1'); c_check(None); next_slot()
            ac = (a*3 + b) * 16; x = XF + 12*u + 4*a; w = WF + 12*u + 4*b
            I(f'v_mfma_f32_32x32x16_bf16 v[{ac}:{ac+15}], v[{w}:{w+3}], v[{x}:{x+3}], v[{ac}:{ac+15}]')
            if (u, n) == (2, 0):
                for j in range(4): I(f'v_add_u32 v{XA+j}, s{sDL}, v{XA+j}')
                I(f'v_add_u32 v{WA}, s{sDL}, v{WA}\ns_cbranch_vccnz L_FSP')
                k.label('L_FBK')
            if (u, n) == (3, 0):
                lg_wait([('x', 2, 3)])
                I(f'v_add_u32 v{VTM}, -1, s{sNEED}'.replace('v_add_u32', 'v_add_u32_e64') + f'\nds_write_b32 v{VFR}, v{VTM} offset:16'); lg.append('free')
            rd(q.pop(0))
            if (u, n) == (1, 0): c_flag_read(); lg.append('flag')
            n += 1
    assert not q
assert lg == entry[len(entry)-len(lg):], (lg, entry)
I(f's_cmp_lt_u32 s{sNEED}, 9\ns_cbranch_scc1 L_FLOOP')
k.check_backedge(m0_)
stamp(3)
k.c('---- FFN epilogue')
ST, CSB, EE, OUTR = 144, 156, 188, 196
VA_ = 204
I(f"""s_lshr_b32 s{t}, s{sWAVE}, 1
s_and_b32 s{t+1}, s{sWAVE}, 1
s_mul_i32 s{t+2}, s{t}, {96*16}
s_add_u32 s{t+2}, s{t+2}, {L_AOS}
v_and_b32 v{VA_}, 31, v{VLANE}
v_lshlrev_b32 v{VA_}, 4, v{VA_}
v_add_u32 v{VA_}, s{t+2}, v{VA_}
s_mul_i32 s{t+2}, s{t+1}, {48*4}
s_add_u32 s{t+2}, s{t+2}, {L_CS}
v_lshrrev_b32 v{VA_+1}, 5, v{VLANE}
v_lshlrev_b32 v{VA_+1}, 4, v{VA_+1}
v_add_u32 v{VA_+1}, s{t+2}, v{VA_+1}
v_lshlrev_b32 v{VA_+2}, 4, v{VLANE}
s_waitcnt lgkmcnt(0)""")
for a in range(3): I(f'ds_read_b128 v[{ST+4*a}:{ST+4*a+3}], v{VA_} offset:{a*512}')
def cs_reads(b):
    d = CSB + 16*(b & 1)
    for m in range(2):
        for i2 in range(2):
            I(f'ds_read_b128 v[{d+8*m+4*i2}:{d+8*m+4*i2+3}], v{VA_+1} offset:{m*512 + b*64 + i2*32}')
cs_reads(0)
I(f"""s_mul_i32 s{t+4}, s{sRB}, 6
s_mul_i32 s{t+2}, s{t}, 3
s_add_u32 s{t+4}, s{t+4}, s{t+2}
s_mul_i32 s{t+4}, s{t+4}, 118
s_mul_i32 s{t+5}, s{sCOL}, 6
s_mul_i32 s{t+2}, s{t+1}, 3
s_add_u32 s{t+5}, s{t+5}, s{t+2}
s_add_u32 s{t+4}, s{t+4}, s{t+5}
s_add_u32 s{t+4}, s{t+4}, 32
s_lshl_b32 s{t+4}, s{t+4}, 10""")
tile = 0
pend = []
for b in range(3):
    if b < 2: cs_reads(b + 1)
    I(f's_waitcnt lgkmcnt({4 if b < 2 else 0})')
    cg_ = CSB + 16*(b & 1); cu_ = cg_ + 8
    (pend.append if OPT['defer'] else I)(f's_add_u32 s{t+6}, s{t+5}, {b}\ns_add_u32 s{t+7}, s{t+4}, {b*1024}\ns_cmp_lt_u32 s{t+6}, 86\ns_cselect_b32 s{t+7}, s{t+7}, {OOB}')
    for a in range(3):
        G = (a*3 + b) * 16; U = G + 8; s0 = ST + 4*a; o = G if OPT['defer'] else OUTR + 4*(tile & 1)
        P = lambda r, p: f'v[{r+2*p}:{r+2*p+1}]'
        for p in range(4): I(f'v_pk_fma_f32 {P(G,p)}, {P(cg_,p)}, v[{s0}:{s0+1}], {P(G,p)} op_sel_hi:[1,0,1] neg_lo:[0,1,0] neg_hi:[0,1,0]')
        for p in range(4): I(f'v_pk_mul_f32 {P(EE,p)}, {P(G,p)}, v[{s0+2}:{s0+3}] op_sel:[0,1] op_sel_hi:[1,1]')
        for p in range(4): I(f'v_pk_fma_f32 {P(U,p)}, {P(cu_,p)}, v[{s0}:{s0+1}], {P(U,p)} op_sel_hi:[1,0,1] neg_lo:[0,1,0] neg_hi:[0,1,0]')
        for e in range(8): I(f'v_exp_f32 v{EE+e}, v{EE+e}')
        for p in range(4): I(f'v_pk_mul_f32 {P(U,p)}, {P(U,p)}, {P(G,p)}')
        for p in range(4): I(f'v_pk_fma_f32 {P(EE,p)}, {P(EE,p)}, v[{s0+2}:{s0+3}], v[{s0+2}:{s0+3}] op_sel_hi:[1,0,0]')
        for e in range(8): I(f'v_rcp_f32 v{EE+e}, v{EE+e}')
        for p in range(4): I(f'v_pk_mul_f32 {P(U,p)}, {P(U,p)}, {P(EE,p)}')
        for p in range(4): I(f'v_cvt_pk_bf16_f32 v{o+p}, v{U+2*p}, v{U+2*p+1}')
        st_ = f'buffer_store_dwordx4 v[{o}:{o+3}], v{VA_+2}, {srd(SAF)}, s{t+7} offen{OPT_HST}' + (f'\ns_add_u32 s{t+7}, s{t+7}, {118*1024}' if a < 2 else '')
        (pend.append if OPT['defer'] else I)(st_)
        tile += 1
for x in pend: I(x)
publish_flag()

k.label('L_CQ')
k.ins.clear(); k.vm_reset()
k.c('---- C QKV')
QA, KA, VA = 0, 48, 100
XS, XD, WQ = 152, 192, 216
XA, WA = 240, 244
I(f"""v_and_b32 v160, 15, v{VLANE}
v_bfe_u32 v161, v{VLANE}, 1, 3
v_lshrrev_b32 v162, 4, v{VLANE}
v_xor_b32 v161, v161, v162
v_lshlrev_b32 v163, 7, v160
v_lshl_add_u32 v{XA}, v161, 4, v163
v_xor_b32 v{XA+1}, 64, v{XA}
v_bfe_u32 v163, v{VLANE}, 2, 2
v_lshl_add_u32 v163, v162, 3, v163
v_lshlrev_b32 v163, 7, v163
v_bfe_u32 v164, v{VLANE}, 3, 1
v_and_b32 v165, 1, v162
v_lshl_or_b32 v164, v165, 1, v164
v_xor_b32 v164, s{sWAVE}, v164
v_lshl_add_u32 v163, v164, 5, v163
v_and_b32 v164, 3, v{VLANE}
v_lshl_add_u32 v163, v164, 3, v163
v_add_u32 v{WA}, 26624, v163""")
for r in range(152): I(f'v_mov_b32 v{r}, 0')
I(f's_mov_b32 s{sSL}, 0')
def xreg(tau, j): return XS + 4*tau if tau < 10 else XD + 12*(j & 1) + 4*(tau - 10)
def rd_x(tau, j):
    d = xreg(tau, j); I(f'ds_read_b128 v[{d}:{d+3}], v{XA+j} offset:{tau*2048}'); lg.append(('x', tau, j))
def rd_w(m, s_, j):
    d = WQ + 12*j + 4*m + 2*s_; I(f'ds_read_b64_tr_b16 v[{d}:{d+1}], v{WA} offset:{m*8192 + (32*j+4*s_)*128}'); lg.append(('w', m, s_, j))
def sched(tau):
    ex = [('w',1,0),('w',1,1),('w',2,0),('w',2,1),('w',0,0),('w',0,1),('x',10),('x',11),('x',12)]
    r = [[], [], []]
    if 1 <= tau <= 10: r[1].append(('x', tau - 1))
    if 1 <= tau <= 9: r[2].append(ex[tau - 1])
    return r
def do_reads(lst, j):
    for x in lst:
        if x[0] == 'x': rd_x(x[1], j)
        else: rd_w(x[1], x[2], j)
stamp(1)
I(f's_setprio {OPT["cprio"]}\ns_mov_b32 s{sNEED}, 1\ns_branch L_QSP0')
c_spin_block('L_QSP', 'L_QBK')
c_spin_block('L_QSP0', 'L_QGO')
k.label('L_QGO')
stamp(2)
lg.clear()
for tau in range(13):
    for r in sched(tau): do_reads(r, 0)
    if tau == 2: I(f'ds_read_b32 v{VTM}, v{VFU}'); lg.append('free')
entry = list(lg)
k.label('L_QLOOP')
m0_ = k.mark()
for j in range(2):
    for tau in range(13):
        lg_wait([('x', tau, j)] + ([('w',1,0,j),('w',1,1,j),('w',2,0,j),('w',2,1,j)] if tau == 0 else []) + ([('w',0,0,j),('w',0,1,j)] if tau == 1 else [])
                + (['flag'] if (j, tau) == (0, 12) else []))
        if (j, tau) == (0, 12):
            I(f's_add_u32 s{sNEED}, s{sNEED}, 1'); c_check(None); next_slot()
        x = xreg(tau, j); w = WQ + 12*j
        X_ = f'v[{x}:{x+3}]'
        sc = sched(tau)
        I(f'v_mfma_f32_16x16x32_bf16 v[{KA+4*tau}:{KA+4*tau+3}], v[{w+4}:{w+7}], {X_}, v[{KA+4*tau}:{KA+4*tau+3}]')
        if (j, tau) == (1, 0):
            I(f'v_add_u32 v{XA}, s{sDL}, v{XA}\nv_add_u32 v{WA}, s{sDL}, v{WA}')
        I(f'v_mfma_f32_16x16x32_bf16 v[{VA+4*tau}:{VA+4*tau+3}], {X_}, v[{w+8}:{w+11}], v[{VA+4*tau}:{VA+4*tau+3}]')
        if (j, tau) == (1, 0):
            I(f'v_add_u32 v{XA+1}, s{sDL}, v{XA+1}\ns_cbranch_vccnz L_QSP')
            k.label('L_QBK')
        do_reads(sc[1], 1 - j)
        if tau >= 1:
            q = QA + 4*(tau - 1)
            I(f'v_mfma_f32_16x16x32_bf16 v[{q}:{q+3}], v[{w}:{w+3}], {X_}, v[{q}:{q+3}]')
        do_reads(sc[2], 1 - j)
        if (j, tau) == (0, 6): c_flag_read(); lg.append('flag')
        if (j, tau) == (1, 2):
            lg_wait([('x', 9, 1)])
            I(f'v_add_u32_e64 v{VTM}, -1, s{sNEED}\nds_write_b32 v{VFR}, v{VTM} offset:16'); lg.append('free')
assert lg == entry[len(entry)-len(lg):], (lg, entry)
I(f's_cmp_lt_u32 s{sNEED}, 9\ns_cbranch_scc1 L_QLOOP')
k.check_backedge(m0_)
stamp(3)
k.c('---- QKV epilogue (attention)')
KB, VB, QB = 152, 178, 204
AS, SMR, CSQ, CSK, CSV = 204, 212, 250, 228, 232
SEL, ONES, VAD = 234, 238, 242
sPAR, sOA, sOB, sVA_, sVB_ = sM, sM+2, sM+4, sM+6, sM+8
I(f"""s_waitcnt lgkmcnt(0)
v_and_b32 v246, 15, v{VLANE}
v_lshrrev_b32 v247, 4, v{VLANE}
v_lshlrev_b32 v{VAD}, 4, v246
v_add_u32 v{VAD}, {L_AOS}, v{VAD}
v_lshlrev_b32 v{VAD+1}, 4, v247
s_lshl_b32 s{t}, s{sWAVE}, 6
s_add_u32 s{t}, s{t}, {L_CS}
v_add_u32 v{VAD+2}, s{t}, v{VAD+1}
v_add_u32 v{VAD+1}, {L_SM}, v{VAD+1}
v_lshlrev_b32 v248, 2, v246
v_add_u32 v248, s{t}, v248
ds_read_b128 v[{CSQ}:{CSQ+3}], v{VAD+2}
ds_read_b128 v[{CSK}:{CSK+3}], v{VAD+2} offset:256
ds_read_b32 v{CSV}, v248 offset:512
v_lshlrev_b32 v{VAD+3}, 4, v{VLANE}
v_and_b32 v248, 1, v{VLANE}
v_cmp_eq_u32 s[{sPAR}:{sPAR+1}], 1, v248
v_lshl_add_u32 v249, v247, 2, v248
v_cmp_le_u32 s[{sOA}:{sOA+1}], v249, v246
v_add_u32 v249, 2, v249
v_cmp_le_u32 s[{sOB}:{sOB+1}], v249, v246
s_cmp_eq_u32 s{sRB}, 0
s_cselect_b64 s[{sVA_}:{sVA_+1}], s[{sOA}:{sOA+1}], -1
s_cselect_b64 s[{sVB_}:{sVB_+1}], s[{sOB}:{sOB+1}], -1
v_mov_b32 v246, 0x0c0c0100
v_mov_b32 v247, 0x01000c0c
v_cndmask_b32 v246, v246, v247, s[{sPAR}:{sPAR+1}]
v_mov_b32 v247, 0x0c0c0302
v_mov_b32 v248, 0x03020c0c
v_cndmask_b32 v247, v247, v248, s[{sPAR}:{sPAR+1}]
v_mov_b32 v248, 0x0c0c0c0c
v_cndmask_b32 v{SEL}, v246, v248, s[{sOA}:{sOA+1}]
v_cndmask_b32 v{SEL+1}, v247, v248, s[{sOB}:{sOB+1}]
v_cndmask_b32 v{SEL+2}, v248, v246, s[{sOA}:{sOA+1}]
v_cndmask_b32 v{SEL+3}, v248, v247, s[{sOB}:{sOB+1}]""")
for i in range(4): I(f'v_mov_b32 v{ONES+i}, 0x3f803f80')
I(f"""s_mul_i32 s{t+4}, s{sRB}, {6*118}
s_sub_u32 s{t+5}, s{sCOL}, 15
s_lshl_b32 s{t+5}, s{t+5}, 2
s_add_u32 s{t+4}, s{t+4}, s{t+5}
s_add_u32 s{t+4}, s{t+4}, s{sWAVE}
s_lshl_b32 s{t+4}, s{t+4}, 10""")
NEG = 'neg_lo:[0,1,0] neg_hi:[0,1,0]'
def st_reads(tau):
    a = AS + 4*(tau & 1)
    I(f'ds_read_b128 v[{a}:{a+3}], v{VAD} offset:{tau*256}')
def smr_reads(tau):
    m_ = SMR + 8*(tau & 1)
    I(f'ds_read_b128 v[{m_}:{m_+3}], v{VAD+1} offset:{tau*64}\nds_read_b128 v[{m_+4}:{m_+7}], v{VAD+1} offset:{1024+tau*64}')
st_reads(0); smr_reads(0)
for tau in range(13):
    a = AS + 4*(tau & 1)
    if tau < 12: smr_reads(tau + 1); st_reads(tau + 1)
    I(f's_waitcnt lgkmcnt({3 if tau < 12 else 0})')
    m_ = SMR + 8*(tau & 1)
    Kc, Vc = KA + 4*tau, VA + 4*tau
    for p in range(2): I(f'v_pk_fma_f32 v[{Vc+2*p}:{Vc+2*p+1}], v[{m_+2*p}:{m_+2*p+1}], v[{CSV}:{CSV+1}], v[{Vc+2*p}:{Vc+2*p+1}] op_sel_hi:[1,0,1] {NEG}')
    for p in range(2): I(f'v_pk_fma_f32 v[{Kc+2*p}:{Kc+2*p+1}], v[{CSK+2*p}:{CSK+2*p+1}], v[{a}:{a+1}], v[{Kc+2*p}:{Kc+2*p+1}] op_sel_hi:[1,0,1] {NEG}')
    for p in range(2): I(f'v_pk_mul_f32 v[{Vc+2*p}:{Vc+2*p+1}], v[{Vc+2*p}:{Vc+2*p+1}], v[{m_+4+2*p}:{m_+4+2*p+1}]')
    for p in range(2): I(f'v_pk_mul_f32 v[{Kc+2*p}:{Kc+2*p+1}], v[{Kc+2*p}:{Kc+2*p+1}], v[{a}:{a+1}] op_sel:[0,1] op_sel_hi:[1,1]')
    if tau >= 1:
        Qc = QA + 4*(tau - 1)
        for p in range(2): I(f'v_pk_fma_f32 v[{Qc+2*p}:{Qc+2*p+1}], v[{CSQ+2*p}:{CSQ+2*p+1}], v[{a}:{a+1}], v[{Qc+2*p}:{Qc+2*p+1}] op_sel_hi:[1,0,1] {NEG}')
    for p in range(2): I(f'v_cvt_pk_bf16_f32 v{VB+2*tau+p}, v{Vc+2*p}, v{Vc+2*p+1}')
    for p in range(2): I(f'v_cvt_pk_bf16_f32 v{KB+2*tau+p}, v{Kc+2*p}, v{Kc+2*p+1}')
    if tau >= 1:
        for p in range(2): I(f'v_cvt_pk_bf16_f32 v{Qc+p}, v{Qc+2*p}, v{Qc+2*p+1}')
        I(f'v_mov_b32 v{Qc+2}, v{a+3}')
pend = []
for g in range(3):
    ts = list(range(4*g, 4*g + 4))
    def SO(i): return 48 + 24*i
    def SP(i): return SO(i) + 4
    def PP(i): return SO(i) + 8
    def OO(i): return SO(i) + 12
    def LL(i): return SO(i) + 16
    def TT(i): return SO(i) + 20
    for i, tq in enumerate(ts):
        q = QA + 4*tq; tau = tq + 1
        I(f'v_mfma_f32_16x16x16_bf16 v[{SO(i)}:{SO(i)+3}], v[{KB+2*tau}:{KB+2*tau+1}], v[{q}:{q+1}], 0')
        I(f'v_mfma_f32_16x16x16_bf16 v[{SP(i)}:{SP(i)+3}], v[{KB+2*tau-2}:{KB+2*tau-1}], v[{q}:{q+1}], 0')
    par = f's[{sPAR}:{sPAR+1}]'
    def each(fmt):
        for i, tq in enumerate(ts): I(fmt(i, tq))
    each(lambda i, tq: f'v_cndmask_b32 v{SO(i)}, v{SO(i)}, v{SO(i)+1}, {par}\nv_cndmask_b32 v{SO(i)+2}, v{SO(i)+2}, v{SO(i)+3}, {par}\n'
                       f'v_cndmask_b32 v{SP(i)}, v{SP(i)}, v{SP(i)+1}, {par}\nv_cndmask_b32 v{SP(i)+2}, v{SP(i)+2}, v{SP(i)+3}, {par}')
    each(lambda i, tq: f'v_cndmask_b32 v{SO(i)}, v{SP(i)}, v{SO(i)}, s[{sOA}:{sOA+1}]\nv_cndmask_b32 v{SO(i)+1}, v{SP(i)+2}, v{SO(i)+2}, s[{sOB}:{sOB+1}]')
    if g == 0:
        I(f'v_mov_b32 v{TT(0)}, {f32(-1e30)}\nv_cndmask_b32 v{SO(0)}, v{TT(0)}, v{SO(0)}, s[{sVA_}:{sVA_+1}]\nv_cndmask_b32 v{SO(0)+1}, v{TT(0)}, v{SO(0)+1}, s[{sVB_}:{sVB_+1}]')
    each(lambda i, tq: f'v_max_f32 v{TT(i)}, v{SO(i)}, v{SO(i)+1}\nv_max_f32 v{TT(i)+1}, v{SO(i)}, v{SO(i)+1}')
    each(lambda i, tq: f'v_permlane32_swap_b32 v{TT(i)}, v{TT(i)+1}')
    each(lambda i, tq: f'v_max_f32 v{TT(i)+2}, v{TT(i)}, v{TT(i)+1}\nv_max_f32 v{TT(i)+3}, v{TT(i)}, v{TT(i)+1}')
    each(lambda i, tq: f'v_permlane16_swap_b32 v{TT(i)+2}, v{TT(i)+3}')
    each(lambda i, tq: f'v_max_f32 v{TT(i)}, v{TT(i)+2}, v{TT(i)+3}')
    each(lambda i, tq: f'v_mul_f32 v{TT(i)}, v{TT(i)}, v{QA+4*tq+2}')
    each(lambda i, tq: f'v_fma_f32 v{SO(i)}, v{SO(i)}, v{QA+4*tq+2}, -v{TT(i)}\nv_fma_f32 v{SO(i)+1}, v{SO(i)+1}, v{QA+4*tq+2}, -v{TT(i)}')
    each(lambda i, tq: f'v_exp_f32 v{SO(i)}, v{SO(i)}\nv_exp_f32 v{SO(i)+1}, v{SO(i)+1}')
    each(lambda i, tq: f'v_cvt_pk_bf16_f32 v{TT(i)}, v{SO(i)}, v{SO(i)+1}')
    each(lambda i, tq: '\n'.join(f'v_perm_b32 v{PP(i)+e}, v{TT(i)}, v{TT(i)}, v{SEL+e}' for e in range(4)))
    each(lambda i, tq: f'v_mfma_f32_16x16x32_bf16 v[{LL(i)}:{LL(i)+3}], v[{ONES}:{ONES+3}], v[{PP(i)}:{PP(i)+3}], 0\n'
                       f'v_mfma_f32_16x16x32_bf16 v[{OO(i)}:{OO(i)+3}], v[{VB+2*tq}:{VB+2*tq+3}], v[{PP(i)}:{PP(i)+3}], 0')
    each(lambda i, tq: f'v_rcp_f32 v{TT(i)}, v{LL(i)}')
    each(lambda i, tq: '\n'.join(f'v_pk_mul_f32 v[{OO(i)+2*p}:{OO(i)+2*p+1}], v[{OO(i)+2*p}:{OO(i)+2*p+1}], v[{TT(i)}:{TT(i)+1}] op_sel_hi:[1,0]' for p in range(2)))
    for pr in range(2):
        i0, i1 = 2*pr, 2*pr + 1; o = QA + 4*ts[i0]
        I(f'v_cvt_pk_bf16_f32 v{o}, v{OO(i0)}, v{OO(i0)+1}\nv_cvt_pk_bf16_f32 v{o+1}, v{OO(i0)+2}, v{OO(i0)+3}\n'
          f'v_cvt_pk_bf16_f32 v{o+2}, v{OO(i1)}, v{OO(i1)+1}\nv_cvt_pk_bf16_f32 v{o+3}, v{OO(i1)+2}, v{OO(i1)+3}')
    for pr in range(2):
        o = QA + 4*ts[2*pr]
        I(f'v_permlane16_swap_b32 v{o}, v{o+2}\nv_permlane16_swap_b32 v{o+1}, v{o+3}')
    for pr in range(2):
        o = QA + 4*ts[2*pr]
        (pend.append if OPT['defer'] else I)(f'buffer_store_dwordx4 v[{o}:{o+3}], v{VAD+3}, {srd(SAF)}, s{t+4} offen{OPT_HST}\ns_add_u32 s{t+4}, s{t+4}, {118*1024}')
for x in pend: I(x)
publish_flag()
k.label('L_CODE_END')
I('s_endpgm')

hdr = open('cdna_kernels/' + NAME + '.s.ref').read().split('; Override launch')[0]
txt = hdr + f"""; @launch grid=(256,1,1) block=(512,1,1) lds=163840
.amdgcn_target "amdgcn-amd-amdhsa--gfx950"
.text
.globl {NAME}_kernel
.p2align 8
.type {NAME}_kernel,@function
{NAME}_kernel:
""" + k.text() + f""".section .rodata,"a"
.p2align 6
.amdhsa_kernel {NAME}_kernel
  .amdhsa_next_free_vgpr 256
  .amdhsa_next_free_sgpr 102
  .amdhsa_accum_offset 256
  .amdhsa_group_segment_fixed_size 0
  .amdhsa_kernarg_size 80
  .amdhsa_user_sgpr_count 2
  .amdhsa_user_sgpr_kernarg_segment_ptr 1
  .amdhsa_system_sgpr_workgroup_id_x 1
.end_amdhsa_kernel
"""
open(sys.argv[1], 'w').write(txt)
print('written', sys.argv[1], 'lines', txt.count('\n'), 'nops', k.nops)
```

```python
import re
REG = re.compile(r'(?<![\w.])([vsa])(?:\[(\d+):(\d+)\]|(\d+))(?![\w])')
TRANS = ('v_exp_f32', 'v_log_f32', 'v_rcp_f32', 'v_rsq_f32', 'v_sqrt_f32', 'v_sin_f32', 'v_cos_f32')

def regs_of(op):
    out = set()
    for m in REG.finditer(op):
        k = m.group(1)
        if m.group(4) is not None: out.add((k, int(m.group(4))))
        else:
            for i in range(int(m.group(2)), int(m.group(3)) + 1): out.add((k, i))
    o = op.strip()
    if re.search(r'\bvcc\b', o): out |= {('s', 'vcc')}
    if re.search(r'\bvcc_lo\b|\bvcc_hi\b', o): out |= {('s', 'vcc')}
    if re.search(r'\bm0\b', o): out |= {('s', 'm0')}
    if re.search(r'\bexec(_lo|_hi)?\b', o): out |= {('s', 'exec')}
    return out

class Ins:
    def __init__(self, text):
        self.text = text
        t = text.split(';')[0].strip()
        parts = t.split(None, 1)
        self.mn = mn = parts[0]
        rest = parts[1] if len(parts) > 1 else ''
        ops = [o.strip() for o in re.split(r',(?![^\[]*\])', rest)] if rest else []
        self.ops = ops
        self.dst, self.src = set(), set()
        self.ws = 1
        self.cls = 'other'
        self.srcC = set(); self.srcAB = set(); self.data = set()
        if mn == 's_nop':
            self.ws = int(ops[0], 0) + 1; self.cls = 'nop'; return
        if mn.startswith('v_mfma'):
            self.cls = 'mfma'
            self.passes = 8 if '32x32' in mn else 4
            self.dst = regs_of(ops[0]); self.srcAB = regs_of(ops[1]) | regs_of(ops[2]); self.srcC = regs_of(ops[3].split()[0])
            self.src = self.srcAB | self.srcC
        elif mn.startswith('v_'):
            self.cls = 'valu'
            self.trans = mn.replace('_e32', '').replace('_e64', '') in TRANS
            self.dpp = any(x in t for x in ('row_', 'quad_perm', 'wave_'))
            self.perml = mn.startswith('v_permlane')
            self.rdlane = mn.startswith(('v_readfirstlane', 'v_readlane'))
            self.dst = regs_of(ops[0])
            for o in ops[1:]: self.src |= regs_of(o)
            if self.perml: self.dst |= regs_of(ops[1]); self.src |= regs_of(ops[0])
            if mn.startswith(('v_fmac', 'v_dot2c')) or self.dpp: self.src |= regs_of(ops[0])
            if mn.startswith('v_cndmask') and len(ops) == 3: self.src |= {('s', 'vcc')}
            if mn.startswith(('v_add_co', 'v_sub_co', 'v_addc_co')): self.dst |= regs_of(ops[1])
        elif mn.startswith(('buffer_', 'global_')):
            self.cls = 'vmem'
            self.lds = bool(re.search(r'\blds\b', t)) or 'load_lds' in mn
            isload = '_load' in mn
            self.wide_store = False
            if isload and not self.lds:
                self.dst = regs_of(ops[0])
                for o in ops[1:]: self.src |= regs_of(o)
            else:
                for o in ops: self.src |= regs_of(o)
                if '_store' in mn:
                    self.data = regs_of(ops[0] if mn.startswith('buffer_') else ops[1])
                    self.wide_store = mn.endswith(('x3', 'x4'))
            if self.lds: self.src |= {('s', 'm0')}
        elif mn.startswith('ds_'):
            self.cls = 'ds'
            if mn.startswith('ds_read'):
                self.dst = regs_of(ops[0])
                for o in ops[1:]: self.src |= regs_of(o)
            else:
                for o in ops: self.src |= regs_of(o)
        elif mn.startswith('s_'):
            self.cls = 'salu'
            nodst = ('s_cmp', 's_waitcnt', 's_barrier', 's_branch', 's_cbranch', 's_sleep', 's_setprio', 's_endpgm', 's_bitcmp')
            if not mn.startswith(nodst) and ops:
                self.dst = regs_of(ops[0])
                for o in ops[1:]: self.src |= regs_of(o)
            else:
                for o in ops: self.src |= regs_of(o)

def need(p, c):
    n = 0
    vd = {r for r in p.dst if r[0] in 'va'}
    sd = {r for r in p.dst if r[0] == 's'}
    if p.cls == 'valu':
        if c.cls == 'mfma' and vd & c.src: n = max(n, 2)
        if c.cls == 'valu':
            if p.trans and not c.trans and vd & c.src: n = max(n, 1)
            if (c.perml or c.dpp) and vd & c.src: n = max(n, 2)
            if c.rdlane and vd & c.src: n = max(n, 1)
            if sd & c.src: n = max(n, 4 if c.rdlane else 2)
        if c.cls == 'vmem' and sd & c.src: n = max(n, 5)
        if c.cls == 'salu' and sd & c.src: n = max(n, 1)
    if p.cls == 'mfma':
        big = 12 if p.passes == 8 else 8
        if c.cls == 'valu':
            if vd & (c.src | c.dst): n = max(n, big)
            if p.srcC & c.dst: n = max(n, 7 if p.passes == 8 else 3)
        if c.cls in ('vmem', 'ds') and vd & (c.src | c.dst): n = max(n, big)
        if c.cls == 'mfma':
            if vd & c.srcAB: n = max(n, big)
            if vd & c.srcC and not (vd == c.srcC and p.passes == c.passes): n = max(n, 10 if p.passes == 8 else 6)
            if vd & c.dst and not (vd & c.srcC): n = max(n, big)
    if p.cls == 'salu' and ('s', 'm0') in p.dst and c.cls == 'vmem' and c.lds: n = max(n, 1)
    if p.cls == 'vmem' and p.wide_store and p.data & c.dst: n = max(n, 2)
    return n

class K:
    def __init__(self):
        self.out = []
        self.ins = []
        self.vm = []
        self.nops = 0
        self.pv = []
        self.pl = []
        self.problems = []
    def raw(self, t): self.out.append(t)
    def c(self, t): self.out.append('  ; ' + t)
    def label(self, name): self.out.append(name + ':'); self.ins.append(None)
    def _pad(self, ins, hist):
        dist = 0; req = 0
        for p in reversed(hist):
            if p is None: continue
            req = max(req, need(p, ins) - dist)
            dist += p.ws
            if dist > 20: break
        return req
    def I(self, text, tag=None):
        for line in text.strip().split('\n'):
            line = line.strip()
            if not line or line.startswith(';'):
                if line: self.out.append('  ' + line)
                continue
            ins = Ins(line)
            req = self._pad(ins, self.ins)
            while req > 0:
                k = min(req, 16); n = Ins(f's_nop {k-1}'); self.ins.append(n); self.out.append(f'  s_nop {k-1}'); self.nops += k; req -= k
            self._score(ins)
            self.ins.append(ins); self.out.append('  ' + line)
            if ins.cls == 'vmem': self.vm.append(tag)
    def _score(self, ins):
        if ins.mn == 's_waitcnt':
            m = re.search(r'vmcnt\((\d+)\)', ins.text)
            if m: n = int(m.group(1)); self.pv = self.pv[len(self.pv) - n:] if n < len(self.pv) else self.pv; self.pv = [] if n == 0 else self.pv
            m = re.search(r'lgkmcnt\((\d+)\)', ins.text)
            if m: n = int(m.group(1)); self.pl = self.pl[len(self.pl) - n:] if n < len(self.pl) else self.pl; self.pl = [] if n == 0 else self.pl
            return
        touched = {r for r in (ins.src | ins.dst) if r[0] == 'v'}
        for kind, pend in (('vmem', self.pv), ('lds', self.pl)):
            for d in pend:
                if d & touched:
                    self.problems.append(f'line {len(self.out)}: "{ins.text}" touches registers of an outstanding {kind} load {sorted(x[1] for x in d & touched)}')
        if ins.cls == 'vmem': self.pv.append({r for r in ins.dst if r[0] == 'v'})
        if ins.cls == 'ds': self.pl.append({r for r in ins.dst if r[0] == 'v'})
    def snap(self): return (list(self.vm), list(self.pv), list(self.pl))
    def restore(self, s): self.vm, self.pv, self.pl = list(s[0]), list(s[1]), list(s[2])
    def fresh(self): self.ins.clear(); self.vm = []; self.pv = []; self.pl = []
    def mark(self): return len(self.ins)
    def check_backedge(self, start):
        body = [i for i in self.ins[start:] if i is not None]
        hist = list(body)
        for k, ins in enumerate(body[:24]):
            r = self._pad(ins, hist)
            assert r <= 0, f'back-edge hazard before "{ins.text}" needs {r}'
            hist.append(ins)
    def barrier_hist(self):
        pass
    def vm_reset(self): self.vm = []
    def wait_vm(self, tag, lgkm=None):
        idx = max((i for i, t in enumerate(self.vm) if t == tag), default=None)
        if idx is None:
            if lgkm is not None: self.I(f's_waitcnt lgkmcnt({lgkm})')
            return
        n = sum(1 for x in self.vm[idx + 1:] if x != 'MAYBE')
        assert n <= 63, n
        self.vm = self.vm[idx + 1:]
        self.I(f's_waitcnt vmcnt({n})' + (f' lgkmcnt({lgkm})' if lgkm is not None else ''))
    def throttle(self, n):
        if n is None or n >= 60: return
        self.I(f's_waitcnt vmcnt({n})')
        if len(self.vm) > n: self.vm = self.vm[len(self.vm) - n:] if n else []
    def text(self): return '\n'.join(self.out) + '\n'
```

```python
import sys, os
from asmlib import K

NAME = "recurrent_scan__sliding_local_dilated__swiglu_ffn__prompt"
OPT = dict(diag=0, nt_x=0, nt_w=0, nt_b2=0, rot=2, rotb=4, latin=1, naw=5, defer=0, psleep=2, cbshift=0, pmask=1, outst=0, hst=0, tb0=99, tb1=99, tb2=99, ct=2, sct=0, thr=99, thr_from=3, thrb=99, thrd=99, pace=0, pacen=1, cfin=7, hold=0, nr0=0, nr5=0, nr6=0, nawc=5, ald=0, pbar=0, hsleep=1, cprio=0, sigat=8)
for a in sys.argv[2:]:
    k_, v_ = a.split('='); OPT[k_] = int(v_)

SLOT = 51200
MISC = 155648
L_AOS, L_SM, L_SR, L_CS, L_SCR = MISC, MISC + 4096, MISC + 5120, MISC + 6144, MISC + 7168
L_FULL = L_AOS + 4048
L_FREE = L_AOS + 4064
L_NONCE = L_AOS + 4080
AF_BYTES = 64 * 118 * 1024
W_RS, W_CSP, W_FL, W_DIAG = 0x800000, 0x810000, 0x880000, 0x900000
W_PF, W_PK = 0x890000, 0xa00000
WS_REC = 0x1000000
OOB = 0x7f000000
LOG2E = 1.4426950408889634
import struct
def f32(x): return '0x%08x' % struct.unpack('<I', struct.pack('<f', x))[0]

SX, SWA, SWB, SWS, SAF, SW2, SSL, SOUT = 24, 28, 32, 36, 40, 44, 48, 52
sWAVE, sRB, sCOL, sISQ, sH, sRB2, sCB2, sSLOTID = 56, 57, 58, 59, 60, 61, 62, 63
sN = 64
sT = 66
sLW = 80
sKWS, sC, sKW, sX7M, sX7S, sPOS = 86, 87, 88, 89, 90, 91
sNV, sBROW, sABASE, sLB2 = 92, 93, 94, 95
sST = 96
sSTR = 78
sPKI = 73
sS0 = 3
sM = 80
VLANE, VDIAG = 254, 255
def srd(i): return f's[{i}:{i+3}]'

k = K()
OPT_OUTST = ['', ' sc1', ' nt', ' sc0 sc1'][OPT['outst']]
OPT_ALD = [' sc1', '', ' sc0 sc1', ' nt'][OPT['ald']]
OPT_HST = [' sc1', ' sc0 sc1', ' sc1 nt'][OPT['hst']]
I = k.I
lblc = [0]
def newlbl(p):
    lblc[0] += 1; return f'L_{p}_{lblc[0]}'
def stamp(i):
    if OPT.get('padat') == i:
        L = newlbl('pad')
        k.label(L)
        I(f's_memrealtime s[96:97]\ns_waitcnt lgkmcnt(0)\ns_sub_u32 s96, s96, s98\ns_cmp_lt_u32 s96, {OPT["padx"]}\ns_cbranch_scc1 {L}')
    if not OPT['diag']: return
    I(f's_memrealtime s[{sST}:{sST+1}]\ns_memtime s[{sST+2}:{sST+3}]\ns_waitcnt lgkmcnt(0)\nv_writelane_b32 v{VDIAG}, s{sST}, {i}\nv_writelane_b32 v{VDIAG}, s{sST+2}, {i+32}' if i < 29 else f's_memrealtime s[{sST}:{sST+1}]\ns_waitcnt lgkmcnt(0)\nv_writelane_b32 v{VDIAG}, s{sST}, {i}')

def mk_srd(d, p, rec):
    I(f's_mov_b32 s{d}, s{p}\ns_mov_b32 s{d+1}, s{p+1}\ns_mov_b32 s{d+2}, {rec}\ns_mov_b32 s{d+3}, 0x20000')


def nonce_poll():
    L = newlbl('np'); D = newlbl('npd')
    I(f's_mov_b32 s{sT}, 0')
    k.label(L)
    I(f"""s_load_dwordx2 s[{sN}:{sN+1}], s[20:21], 0 glc
s_add_u32 s{sT}, s{sT}, 1
s_waitcnt lgkmcnt(0)
s_cmp_lg_u64 s[{sN}:{sN+1}], 0
s_cbranch_scc1 {D}
s_sleep 2
s_cmp_lt_u32 s{sT}, 0x40000
s_cbranch_scc1 {L}""")
    k.label(D)

k.label('KSTART')
if OPT['diag']: I('s_memrealtime s[100:101]')
I(f"""s_cmp_ge_u32 s2, 256
s_cbranch_scc1 L_END
s_load_dwordx16 s[4:19], s[0:1], 0
s_load_dwordx4 s[20:23], s[0:1], 64
s_getpc_b64 s[{sT+2}:{sT+3}]""")
k.label('L_PC')
I(f"""s_and_b32 s{sT+4}, s2, 0xf8
v_lshrrev_b32 v1, 6, v0
v_and_b32 v{VLANE}, 63, v0
v_add_u32 v2, s{sT+4}, v1
v_lshlrev_b32 v2, 7, v2
v_min_u32 v2, L_CODE_END-L_PC-4, v2
global_load_dword v253, v2, s[{sT+2}:{sT+3}]
v_readfirstlane_b32 s{sWAVE}, v1
v_xor_b32 v1, 4, v1
v_lshlrev_b32 v1, 2, v1
v_add_u32 v1, {L_FULL}, v1
v_mov_b32 v2, 0
ds_write_b32 v1, v2""", 'CODE')
if OPT.get('padto') or 'padat' in OPT: I('s_memrealtime s[98:99]')
if OPT['diag']: I(f'v_mov_b32 v{VDIAG}, 0')
T0 = [18,19,20,4,5,10,31,0]; T1 = [21,22,11,16,17,31,31,0]
def pk(b): return '0x%08x' % (b[0] | b[1] << 8 | b[2] << 16 | b[3] << 24)
t = sT
I(f"""s_and_b32 s{t}, s2, 7
s_lshr_b32 s{sSLOTID}, s2, 3
s_and_b32 s{t+1}, s{t}, 1
s_lshr_b32 s{t+2}, s{t}, 1
s_lshl_b32 s{sRB2}, s{t}, 2
s_lshr_b32 s{t+3}, s{sSLOTID}, 3
s_add_u32 s{sRB2}, s{sRB2}, s{t+3}
s_add_u32 s{sCB2}, s{sSLOTID}, {OPT['cbshift']}
s_and_b32 s{sCB2}, s{sCB2}, 7
s_mul_i32 s{t+3}, s{sSLOTID}, 52
s_lshr_b32 s{t+3}, s{t+3}, 8
s_mul_i32 s{t+4}, s{t+3}, 5
s_sub_u32 s{t+4}, s{sSLOTID}, s{t+4}
s_mul_i32 s{t+5}, s{t+1}, 6
s_add_u32 s{sRB}, s{t+4}, s{t+5}
s_mul_i32 s{t+5}, s{t+2}, 6
s_add_u32 s{sCOL}, s{t+5}, s{t+3}
s_lshl_b32 s{t+6}, s{t+1}, 1
s_add_u32 s{t+5}, s{t+5}, s{t+6}
s_add_u32 s{t+5}, s{t+5}, s{sSLOTID}
s_sub_u32 s{t+5}, s{t+5}, 30
s_cmp_eq_u32 s{t+1}, 0
s_mov_b32 s{t+6}, {pk(T1[:4])}
s_mov_b32 s{t+7}, {pk(T1[4:])}
s_cmov_b32 s{t+6}, {pk(T0[:4])}
s_cmov_b32 s{t+7}, {pk(T0[4:])}""")
I(f"""s_sub_u32 s{t+8}, s{sSLOTID}, 25
s_lshl_b32 s{t+8}, s{t+8}, 3
s_lshr_b64 s[{t+6}:{t+7}], s[{t+6}:{t+7}], s{t+8}
s_and_b32 s{t+6}, s{t+6}, 0xff
s_cmp_eq_u32 s{t+2}, 3
s_cselect_b32 s{t+5}, s{t+6}, s{t+5}
s_cselect_b32 s{t+7}, 25, 30
s_cmp_ge_u32 s{sSLOTID}, s{t+7}
s_cselect_b32 s{sCOL}, s{t+5}, s{sCOL}
s_cselect_b32 s{sRB}, 5, s{sRB}
s_cmp_eq_u32 s{sCOL}, 31
s_cselect_b32 s{sCOL}, 0, s{sCOL}
s_cselect_b32 s{sRB}, 11, s{sRB}
s_add_u32 s{t+5}, s{sCOL}, 1
s_cmp_ge_u32 s{sCOL}, 14
s_cselect_b32 s{sCOL}, s{t+5}, s{sCOL}
s_cmp_eq_u32 s{sCOL}, 23
s_cselect_b32 s{sCOL}, 14, s{sCOL}
s_cmp_ge_u32 s{sCOL}, 15
s_cselect_b32 s{sISQ}, 1, 0
s_and_b32 s{sH}, s{sWAVE}, 3""")
if OPT['latin']:
    I(f"""s_cmp_ge_u32 s{t+3}, 3
s_addc_u32 s{sS0}, s{t+3}, s{t+2}
s_cmp_ge_u32 s{t+4}, 3
s_addc_u32 s{sS0}, s{sS0}, s{t+4}
s_lshl_b32 s{t+1}, s{t+1}, 1
s_add_u32 s{sS0}, s{sS0}, s{t+1}
s_cmp_eq_u32 s{sRB}, 5
s_cselect_b32 s{sS0}, s{sCOL}, s{sS0}
s_and_b32 s{sS0}, s{sS0}, 7""")
else:
    I(f's_mov_b32 s{sS0}, 0')
I(f"""s_cmp_lt_u32 s{sWAVE}, 4
s_cbranch_scc0 L_H
s_memrealtime s[{t+2}:{t+3}]
s_or_b32 s{t}, s2, s{sWAVE}
s_cmp_lg_u32 s{t}, 0
s_waitcnt lgkmcnt(0)
s_cbranch_scc1 L_NW
s_or_b32 s{t+2}, s{t+2}, 1
v_mov_b32 v2, s{t+2}
v_mov_b32 v3, s{t+3}
v_mov_b32 v4, 0
global_store_dwordx2 v4, v[2:3], s[20:21] sc1""")
k.label('L_NW')
sROW = t + 9
vRD = 200
mk_srd(SX, 4, 2048*1024)
I(f"""s_mul_i32 s{t}, s{sRB}, 192
s_mul_i32 s{t+1}, s{sCOL}, 12
s_add_u32 s{t}, s{t}, s{t+1}
s_mul_i32 s{t+1}, s{sH}, 3
s_add_u32 s{t}, s{t}, s{t+1}
s_cmp_lt_u32 s{sCOL}, 16
s_cselect_b32 s{sROW}, s{t}, 0x100000
s_lshl_b32 s{t}, s{sROW}, 10
v_lshlrev_b32 v7, 4, v{VLANE}""")
for a_ in range(3):
    I(f'buffer_load_dwordx4 v[{vRD+4*a_}:{vRD+4*a_+3}], v7, {srd(SX)}, s{t} offen offset:{a_*1024}')
I("""s_barrier
s_branch L_C""")
k.fresh()
k.label('L_H')

vXo0, vXo1, vW, vL16, vB2 = 2, 3, 4, 7, 247
vT = 8
NTX = ' nt' if OPT['nt_x'] else ''
NTW = ' nt' if OPT['nt_w'] else ''
NTB = ' nt' if OPT['nt_b2'] else ''
k.c('---- H prologue')
I(f"""v_lshrrev_b32 v{vT}, 3, v{VLANE}
v_and_b32 v{vT+1}, 7, v{VLANE}
v_lshrrev_b32 v{vT+2}, 1, v{vT}
s_and_b32 s{t}, s{sH}, 1
s_lshl_b32 s{t+1}, s{t}, 2
v_or_b32 v{vT+3}, s{t+1}, v{vT+2}
v_xor_b32 v{vT+3}, v{vT+3}, v{vT+1}
v_lshlrev_b32 v{vT+3}, 4, v{vT+3}
s_mul_i32 s{t+2}, s{sRB}, 192
s_lshl_b32 s{t+3}, s{sISQ}, 4
s_sub_i32 s{t+2}, s{t+2}, s{t+3}
s_lshl_b32 s{t+3}, s{sH}, 3
s_add_i32 s{t+2}, s{t+2}, s{t+3}
s_add_i32 s{t+4}, s{t+2}, 32
v_add_u32 v{vXo1}, s{t+4}, v{vT}
v_lshlrev_b32 v{vXo1}, 10, v{vXo1}
v_add_u32 v{vXo1}, v{vXo1}, v{vT+3}
s_cmp_lt_i32 s{t+2}, 0
s_mov_b32 s{t+4}, -32768
s_cmov_b32 s{t+4}, 0x40000000
v_add_u32 v{vXo0}, s{t+4}, v{vXo1}
v_lshlrev_b32 v{vL16}, 4, v{VLANE}
s_cmp_eq_u32 s{sISQ}, 1
s_cbranch_scc1 L_HQ""")
I(f"""s_mul_i32 s{t+2}, s{sH}, {16*2752}
s_mul_i32 s{t+3}, s{sCOL}, 192
s_add_u32 s{t+2}, s{t+2}, s{t+3}
s_movk_i32 s{t+4}, 171
s_movk_i32 s{t+5}, 2752
s_sub_u32 s{t+6}, 2752, s{t+3}""")
for b in range(3):
    I(f"""v_add_u32 v{vT+4}, {64*b}, v{VLANE}
v_mul_u32_u24 v{vT+5}, s{t+4}, v{vT+4}
v_lshrrev_b32 v{vT+5}, 11, v{vT+5}
v_mul_u32_u24 v{vT+6}, 12, v{vT+5}
v_sub_u32 v{vT+6}, v{vT+4}, v{vT+6}
v_lshlrev_b32 v{vT+6}, 4, v{vT+6}
v_mad_u32_u24 v{vW+b}, v{vT+5}, s{t+5}, v{vT+6}
v_add_u32 v{vW+b}, s{t+2}, v{vW+b}
v_cmp_gt_u32 vcc, s{t+6}, v{vT+6}
v_mov_b32 v{vT+7}, {OOB}
v_cndmask_b32 v{vW+b}, v{vT+7}, v{vW+b}, vcc""")
I(f"""s_mul_i32 s{sLW}, s{sH}, 3072
s_add_u32 s{sLW}, s{sLW}, 24576
s_add_u32 s{sLW+1}, s{sLW}, 1024
s_add_u32 s{sLW+2}, s{sLW}, 2048
s_add_u32 s{sLW+3}, s{sLW}, 12320
s_add_u32 s{sLW+4}, s{sLW}, {12320+1024}
s_add_u32 s{sLW+5}, s{sLW}, {12320+2048}
s_mov_b32 s{sKWS}, {64*2752}
s_mov_b32 s{sC}, 0
s_mov_b32 s{sX7M}, {L_SCR}
s_mov_b32 s{sX7S}, {OOB}
s_waitcnt lgkmcnt(0)""")
mk_srd(SWA, 12, 512*2752); mk_srd(SWB, 14, 512*2752)
I('s_branch L_HJ')
k.label('L_HQ')
I(f"""v_and_b32 v{vT+4}, 1, v{vT+2}
s_lshl_b32 s{t+1}, s{t}, 1
v_or_b32 v{vT+4}, s{t+1}, v{vT+4}
v_lshlrev_b32 v{vT+4}, 1, v{vT+4}
v_xor_b32 v{vT+4}, v{vT+4}, v{vT+1}
v_lshlrev_b32 v{vT+4}, 4, v{vT+4}
s_movk_i32 s{t+5}, 3072
v_mad_u32_u24 v{vW}, v{vT}, s{t+5}, v{vT+4}
s_mul_i32 s{t+2}, s{sH}, {8*3072}
s_sub_u32 s{t+3}, s{sCOL}, 15
s_lshl_b32 s{t+3}, s{t+3}, 7
s_add_u32 s{t+2}, s{t+2}, s{t+3}
v_add_u32 v{vW}, s{t+2}, v{vW}
v_add_u32 v{vW+1}, 1024, v{vW}
v_add_u32 v{vW+2}, 2048, v{vW}
s_lshl_b32 s{sLW}, s{sH}, 10
s_add_u32 s{sLW}, s{sLW}, 26624
s_add_u32 s{sLW+1}, s{sLW}, 8192
s_add_u32 s{sLW+2}, s{sLW}, 16384
s_add_u32 s{sLW+3}, s{sLW}, 4096
s_add_u32 s{sLW+4}, s{sLW}, {4096+8192}
s_add_u32 s{sLW+5}, s{sLW}, {4096+16384}
s_mov_b32 s{sKWS}, {64*3072}
s_mov_b32 s{sC}, {32*3072}
s_lshl_b32 s{t+2}, s{sH}, 10
s_add_u32 s{t+2}, s{t+2}, {24*1024}
s_cmp_lt_u32 s{sH}, 2
s_cselect_b32 s{sX7M}, s{t+2}, {L_SCR}
s_mov_b32 s{sX7S}, {OOB}
s_cmov_b32 s{sX7S}, {5*32768}
s_waitcnt lgkmcnt(0)""")
mk_srd(SWA, 6, 512*3072); mk_srd(SWB, 6, 512*3072)
k.label('L_HJ')
mk_srd(SX, 4, 2048*1024)
I(f's_lshl_b32 s{t+10}, s{sH}, 10\ns_mov_b32 s{sKW}, 0\ns_cmp_eq_u32 s{sX7M}, {L_SCR}\ns_cselect_b32 s{t+11}, 0, 1')
sH1K, sX7R = t + 10, t + 11

sXK, sROT = t + 13, sPOS
VFL = 232
def signal_full(n):
    I(f'v_mov_b32 v237, {n}\nds_write_b32 v238, v237')
def spin(base, n):
    L = newlbl('sp'); D = newlbl('spd')
    I(f's_mov_b32 s{t+4}, 0')
    k.label(L)
    I(f"""ds_read_b128 v[{VFL}:{VFL+3}], v236 offset:{base - L_FULL}
s_add_u32 s{t+4}, s{t+4}, 1
s_waitcnt lgkmcnt(0)
v_min_u32 v{VFL}, v{VFL}, v{VFL+1}
v_min3_u32 v{VFL}, v{VFL}, v{VFL+2}, v{VFL+3}
v_cmp_gt_u32 vcc, {n}, v{VFL}
s_cmp_lt_u32 s{t+4}, 0x400000
s_cbranch_vccz {D}
s_sleep {OPT['hsleep']}
s_cbranch_scc1 {L}""")
    k.label(D)

def stage_dma(i, sig=None):
    base = (i % 3) * SLOT
    tag = f'D{i}'
    cnt = [0]
    if OPT.get('nodma') == 1 and i >= 3: return
    if OPT.get('nodma') == 3 and i >= 3:
        n0 = len(k.out); OPT['nodma'] = 0; stage_dma(i, sig); OPT['nodma'] = 3
        import re as _re
        for j_ in range(n0, len(k.out)):
            k.out[j_] = _re.sub(r'buffer_load_dwordx4 (v\d+), (.*) offen lds', lambda m_: f'buffer_load_dwordx4 v[{128 + 4*(j_ % 16)}:{131 + 4*(j_ % 16)}], {m_.group(1)}, {m_.group(2)} offen', k.out[j_])
        return
    def after():
        cnt[0] += 1
        if i >= OPT['thr_from'] and cnt[0] < 13:
            k.throttle(OPT['thr'])
            if OPT['pace'] and cnt[0] % OPT['pacen'] == 0: I(f's_sleep {OPT["pace"]}')
        if sig is not None and cnt[0] == OPT['sigat']:
            stamp(9 + 2*(i-1)); k.wait_vm(f'D{i-1}'); signal_full(sig); stamp(10 + 2*(i-1))
    I(f"""s_add_u32 s{t+2}, s{sS0}, {i}
s_and_b32 s{t+2}, s{t+2}, 7
s_lshl_b32 s{sXK}, s{t+2}, 7
s_mul_i32 s{sKW}, s{t+2}, s{sKWS}""")
    for tt in range(6):
        I(f's_add_u32 m0, s{sH1K}, {base + tt*4096}')
        if tt <= 1: I(f's_nop 0\nbuffer_load_dwordx4 v{vXo0 if tt == 0 else vXo1}, {srd(SX)}, s{sXK} offen{NTX} lds', tag)
        else: I(f's_add_u32 s{t}, s{sXK}, {(tt-1)*32768}\nbuffer_load_dwordx4 v{vXo1}, {srd(SX)}, s{t} offen{NTX} lds', tag)
        after()
    I(f"""s_mul_i32 s{t}, s{sX7R}, {base}
s_add_u32 m0, s{t}, s{sX7M}
s_add_u32 s{t}, s{sX7S}, s{sXK}
buffer_load_dwordx4 v{vXo1}, {srd(SX)}, s{t} offen{NTX} lds""", tag)
    after()
    I(f's_add_u32 s{t+1}, s{sKW}, s{sC}')
    for j in range(6):
        I(f's_add_u32 m0, s{sLW+j}, {base}')
        I(f'buffer_load_dwordx4 v{vW + j%3}, {srd(SWA if j < 3 else SWB)}, s{sKW if j < 3 else t+1} offen{NTW} lds', tag)
        after()

if OPT['diag']: I(f'v_writelane_b32 v{VDIAG}, s100, 62')
stamp(0)
stage_dma(0)
stamp(61)
I('s_barrier')
I(f"""v_mov_b32 v236, {L_FULL}
s_lshl_b32 s{t}, s{sH}, 2
v_add_u32 v238, s{t}, v236""")
vSD = 32
I(f'v_mov_b32 v18, 0\nglobal_load_dwordx2 v[16:17], v18, s[20:21] sc1', 'NC')
I(f"""s_lshr_b32 s{t}, s{sH}, 1
s_mul_i32 s{t}, s{t}, 12320
s_and_b32 s{t+1}, s{sH}, 1
s_lshl_b32 s{t+1}, s{t+1}, 7
s_add_u32 s{t}, s{t}, s{t+1}
s_add_u32 s{t}, s{t}, 24576
s_lshl_b32 s{t+1}, s{sH}, 13
s_add_u32 s{t+1}, s{t+1}, 26624
s_cmp_eq_u32 s{sISQ}, 1
s_cselect_b32 s{t}, s{t+1}, s{t}
s_movk_i32 s{t+1}, 192
s_cmov_b32 s{t+1}, 128
s_cselect_b32 s{t+2}, 2, 0
s_cselect_b32 s{t+3}, 64, 0
v_and_b32 v64, s{t+2}, v{vT}
v_xor_b32 v64, v64, v{vT+1}
v_lshlrev_b32 v64, 4, v64
v_mad_u32_u24 v64, v{vT}, s{t+1}, v64
v_add_u32 v64, s{t}, v64
v_xor_b32 v65, s{t+3}, v64
s_lshl_b32 s{t+1}, s{t+1}, 3
v_add_u32 v65, s{t+1}, v65
s_lshl_b32 s{t+5}, s{t+1}, 1""")
sSL2 = t + 5
I(f's_mov_b32 s{sSTR}, s{sSL2}')
mk_srd(SWS, 22, WS_REC); mk_srd(SAF, 22, AF_BYTES)

def nonce_get():
    k.wait_vm('NC')
    L = newlbl('np'); D = newlbl('npd')
    I(f's_mov_b32 s{t+4}, 0')
    k.label(L)
    I(f"""v_readfirstlane_b32 s{sN}, v16
v_readfirstlane_b32 s{sN+1}, v17
s_add_u32 s{t+4}, s{t+4}, 1
s_cmp_lg_u64 s[{sN}:{sN+1}], 0
s_cbranch_scc1 {D}
s_sleep 8""")
    sv = k.snap()
    I(f"""global_load_dwordx2 v[16:17], v18, s[20:21] sc1
s_waitcnt vmcnt(0)
s_cmp_lt_u32 s{t+4}, 0x20000
s_cbranch_scc1 {L}""")
    k.restore(sv)
    k.label(D)

def tab8(vals, dst, idx8):
    lo = sum(v << (8*i) for i, v in enumerate(vals[:4])); hi = sum(v << (8*i) for i, v in enumerate(vals[4:]))
    I(f"""s_mov_b32 s{t}, {lo}
s_mov_b32 s{t+1}, {hi}
s_lshr_b64 s[{t}:{t+1}], s[{t}:{t+1}], s{idx8}
s_and_b32 s{dst}, s{t}, 0xff""")
KBASE = [0, 16, 32, 47, 62, 76, 90, 104]
NSTEP = [16, 16, 15, 15, 14, 14, 14, 14]
PC0 = [15, 19, 0, 2, 5, 7, 9, 12]
PCN = [3, 3, 2, 2, 2, 2, 2, 2]
SWC = SSL
sBROWC, sNVC = 100, 101
def p2_params(helper):
    I(f's_lshl_b32 s{t+2}, s{sWAVE}, 3')
    tab8(KBASE, sABASE, t+2); tab8(NSTEP, sNV, t+2)
    if helper:
        I(f"""s_lshl_b32 s{t+3}, s{sCB2}, 7
s_add_u32 s{t+3}, s{t+3}, {W_PK >> 11}
s_add_u32 s{sBROW}, s{sABASE}, s{t+3}
s_lshl_b32 s{t+2}, s{sH}, 3""")
        tab8(KBASE, sBROWC, t+2); tab8(NSTEP, sNVC, t+2)
        I(f's_add_u32 s{sBROWC}, s{sBROWC}, s{t+3}')
    I(f"""s_lshl_b32 s{sLB2}, s{sH}, 11
s_mul_i32 s{sROT}, s{sCB2}, {OPT['rot']}
s_mul_i32 s{t}, s{sRB2}, {OPT['rotb']}
s_add_u32 s{sROT}, s{sROT}, s{t}
s_mul_i32 s{t}, s{sRB2}, {2*118}
s_add_u32 s{sABASE}, s{sABASE}, s{t}""")

ACC, PK, VA1, VA2, VL16, VXR = 0, 64, 240, 243, 246, 250
HPK = 148
def p2_addr():
    I(f"""s_cmp_lt_u32 s{sWAVE}, 2
s_cselect_b32 s{t+6}, 10, 9
s_movk_i32 s{t+7}, 1024
s_cmov_b32 s{t+7}, 512
v_lshrrev_b32 v1, 5, v{VLANE}
v_lshlrev_b32 v1, s{t+6}, v1
v_bfe_u32 v0, v{VLANE}, 2, 1
v_lshl_add_u32 v1, v0, 7, v1
v_bfe_u32 v0, v{VLANE}, 3, 1
v_lshl_add_u32 v1, v0, 6, v1
v_bfe_u32 v0, v{VLANE}, 4, 1
v_lshl_add_u32 v1, v0, 5, v1
v_and_b32 v0, 3, v{VLANE}
v_lshl_add_u32 v1, v0, 3, v1
v_add_u32 v{VA1}, s{sLB2}, v1
v_add_u32 v{VA1+1}, 0x10000, v{VA1}
v_add_u32 v{VA1+2}, 0x20000, v{VA1}
v_add_u32 v{VA2}, s{t+7}, v{VA1}
v_add_u32 v{VA2+1}, s{t+7}, v{VA1+1}
v_add_u32 v{VA2+2}, s{t+7}, v{VA1+2}
v_lshlrev_b32 v{VL16}, 4, v{VLANE}""")
def b2_setup():
    p2_params(True)
    p2_addr()
    I(f"""v_and_b32 v{vT+4}, 4, v{vT}
v_and_b32 v{vT+5}, 1, v{vT}
v_add_u32 v{vT+4}, v{vT+4}, v{vT+5}
v_bfe_u32 v{vT+5}, v{VLANE}, 2, 1
v_lshl_add_u32 v{vT+4}, v{vT+5}, 1, v{vT+4}
v_lshlrev_b32 v{vT+4}, 10, v{vT+4}
v_bfe_u32 v{vT+5}, v{vT}, 1, 1
v_lshl_add_u32 v{vT+4}, v{vT+5}, 6, v{vT+4}
v_and_b32 v{vT+5}, 3, v{VLANE}
v_lshl_add_u32 v{vB2}, v{vT+5}, 4, v{vT+4}""")

SIG_P = [13,14,15,16,17,18, 0,1,2,3,4,5, 3,4,5,3]
SIG_L = [6,7,8,9,10,11,12, 13,14,15,16,17,18, 0,1,2]
RAWL = [64 + 8*j for j in range(16)]
PKR = [64 + 8*j for j in range(6)] + [120 + 8*j for j in range(6)] + [192 + 8*j for j in range(4)]
HAW = [112, 168, 176, 184, 224]
def b2_off(step, own):
    I(f"""s_add_u32 s{t+2}, s{sROT}, {step}
s_and_b32 s{t+2}, s{t+2}, 15
s_add_u32 s{t}, s{sBROW if own else sBROWC}, s{t+2}
s_lshl_b32 s{t}, s{t}, 11
s_cmp_lt_u32 s{t+2}, s{sNV if own else sNVC}
s_cselect_b32 s{t}, s{t}, {OOB}""")
def b2_dma(step, own, tag):
    sig = (SIG_P if own else SIG_L)[step]
    b2_off(step, own)
    k.throttle(OPT['thrd'])
    I(f"""s_add_u32 m0, s{sLB2}, {sig*8192}
buffer_load_dwordx4 v{VL16}, {srd(SWS)}, s{t} offen sc1 lds
buffer_load_dwordx4 v{VL16}, {srd(SWS)}, s{t} offen offset:1024 sc1 lds""", tag)
def b2_raw(step, own, d, tag):
    b2_off(step, own)
    k.throttle(OPT['thrb'])
    I(f"""buffer_load_dwordx4 v[{d}:{d+3}], v{VL16}, {srd(SWS)}, s{t} offen sc1
buffer_load_dwordx4 v[{d+4}:{d+7}], v{VL16}, {srd(SWS)}, s{t} offen offset:1024 sc1""", tag)
def b2_put(sig, d):
    I(f"""v_add_u32 v237, {sig*8192}, v231
ds_write_b128 v237, v[{d}:{d+3}]
ds_write_b128 v237, v[{d+4}:{d+7}] offset:1024""")
def tr_reads(sig, dst):
    off = sig * 8192; r = off >> 16; off &= 0xffff
    for ct in range(2):
        I(f'ds_read_b64_tr_b16 v[{dst+4*ct}:{dst+4*ct+1}], v{VA1+r} offset:{off+ct*256}')
        I(f'ds_read_b64_tr_b16 v[{dst+4*ct+2}:{dst+4*ct+3}], v{VA2+r} offset:{off+ct*256}')

L_RST = L_AOS + 208*16
def row_stats():
    vA = 212
    I(f's_mov_b32 s{t}, 0x3f803f80\ns_waitcnt vmcnt(0)')
    for d in range(4):
        for a in range(3):
            D = vRD + 4*a + d
            I(f'v_dot2_f32_bf16 v{vA+2*a}, v{D}, s{t}, ' + ('0' if d == 0 else f'v{vA+2*a}'))
            I(f'v_dot2_f32_bf16 v{vA+2*a+1}, v{D}, v{D}, ' + ('0' if d == 0 else f'v{vA+2*a+1}'))
    I('s_nop 2')
    for step in ('row_shr:1 row_mask:0xf bank_mask:0xf bound_ctrl:0', 'row_shr:2 row_mask:0xf bank_mask:0xf bound_ctrl:0',
                 'row_shr:4 row_mask:0xf bank_mask:0xf bound_ctrl:0', 'row_shr:8 row_mask:0xf bank_mask:0xf bound_ctrl:0',
                 'row_bcast:15 row_mask:0xa bank_mask:0xf', 'row_bcast:31 row_mask:0xc bank_mask:0xf'):
        for i in range(6): I(f'v_add_f32_dpp v{vA+i}, v{vA+i}, v{vA+i} {step}')
    I(f"""s_mul_i32 s{t}, s{sWAVE}, 24
s_add_u32 s{t}, s{t}, {L_RST}
v_mov_b32 v218, {L_SCR}
v_mov_b32 v219, s{t}
v_cmp_eq_u32 vcc, 63, v{VLANE}
v_cndmask_b32 v218, v218, v219, vcc
s_mov_b32 s{t+1}, {f32(1/512)}
s_mov_b32 s{t+2}, {f32(1e-5)}""")
    for a in range(3):
        G = vA + 2*a
        I(f"""v_mul_f32 v{G}, s{t+1}, v{G}
v_mul_f32 v{G+1}, s{t+1}, v{G+1}
v_fma_f32 v{G+1}, -v{G}, v{G}, v{G+1}
v_max_f32 v{G+1}, 0, v{G+1}
v_add_f32 v{G+1}, s{t+2}, v{G+1}
ds_write_b64 v218, v[{G}:{G+1}] offset:{8*a}""")
def row_publish():
    I(f"""s_mul_i32 s{t}, s{sH}, 24
s_add_u32 s{t}, s{t}, {L_RST}
v_min_u32 v72, 2, v{VLANE}
v_lshl_add_u32 v73, v72, 3, s{t}
ds_read_b64 v[76:77], v73
s_mul_i32 s{t}, s{sRB}, 192
s_mul_i32 s{t+1}, s{sCOL}, 12
s_add_u32 s{t}, s{t}, s{t+1}
s_mul_i32 s{t+1}, s{sH}, 3
s_add_u32 s{t}, s{t}, s{t+1}
s_lshl_b32 s{t}, s{t}, 4
s_add_u32 s{t}, s{t}, {W_RS}
s_cmp_lt_u32 s{sCOL}, 16
s_cselect_b32 s{t}, s{t}, {OOB}
v_lshlrev_b32 v72, 4, v72
v_mov_b32 v78, s{sN}
v_mov_b32 v79, s{sN+1}
s_waitcnt lgkmcnt(0)
buffer_store_dwordx4 v[76:79], v72, {srd(SWS)}, s{t} offen sc1""", 'PUB')

def slab_reads():
    for a in range(8):
        I(f'ds_read_b128 v[{vSD+4*a}:{vSD+4*a+3}], v{64 + (a & 1)}')
        if a & 1 and a < 7: I(f'v_add_u32 v64, s{sSTR}, v64\nv_add_u32 v65, s{sSTR}, v65')
    I('s_waitcnt lgkmcnt(0)')

def col_stats():
    vA = 90
    for a in range(8):
        for d in range(4):
            D = vSD + 4*a + d
            if a == 0:
                I(f'v_lshlrev_b32 v{vA+2*d}, 16, v{D}\nv_and_b32 v{vA+2*d+1}, 0xffff0000, v{D}')
            else:
                I(f'v_lshlrev_b32 v72, 16, v{D}\nv_and_b32 v73, 0xffff0000, v{D}\nv_add_f32 v{vA+2*d}, v{vA+2*d}, v72\nv_add_f32 v{vA+2*d+1}, v{vA+2*d+1}, v73')
    for e in range(4): I(f'v_permlane32_swap_b32 v{vA+e}, v{vA+e+4}')
    for e in range(4): I(f'v_add_f32 v{vA+e}, v{vA+e}, v{vA+e+4}')
    for e in range(2): I(f'v_permlane16_swap_b32 v{vA+e}, v{vA+e+2}')
    for e in range(2): I(f'v_add_f32 v{vA+e}, v{vA+e}, v{vA+e+2}')
    for e in range(2): I(f'v_add_f32_dpp v{vA+8+e}, v{vA+e}, v{vA+e} row_ror:8 row_mask:0xf bank_mask:0xf')
def col_publish():
    vA = 90
    I(f"""v_mov_b32 v{vA+10}, s{sN}
v_mov_b32 v{vA+11}, s{sN+1}
v_lshrrev_b32 v72, 4, v{VLANE}
v_lshl_add_u32 v72, v{vT+1}, 2, v72
v_lshlrev_b32 v72, 4, v72
v_and_b32 v73, 8, v{VLANE}
v_cmp_eq_u32 vcc, 0, v73
v_mov_b32 v73, {OOB}
v_cndmask_b32 v72, v73, v72, vcc
s_lshl_b32 s{t}, s{sCOL}, 14
s_lshl_b32 s{t+1}, s{sS0}, 11
s_add_u32 s{t}, s{t}, s{t+1}
s_lshl_b32 s{t+1}, s{sH}, 9
s_add_u32 s{t}, s{t}, s{t+1}
s_add_u32 s{t}, s{t}, {W_CSP}
buffer_store_dwordx4 v[{vA+8}:{vA+11}], v72, {srd(SWS)}, s{t} offen sc1""", 'PUB')

vCL = 4*2+2
vCL = 20
sVAL = t + 8
def collect_setup():
    I(f"""s_lshl_b32 s{t}, s{sH}, 9
s_lshl_b32 s{t+1}, s{sCOL}, 14
s_add_u32 s{t}, s{t}, s{t+1}
s_add_u32 s{t}, s{t}, {W_CSP}
v_and_b32 v200, 31, v{VLANE}
v_lshlrev_b32 v200, 4, v200
v_lshrrev_b32 v201, 5, v{VLANE}
v_lshl_add_u32 v200, v201, 13, v200
v_add_u32 v200, s{t}, v200
s_lshl_b32 s{t}, s{sH}, 6
v_add_u32 v202, s{t}, v{VLANE}
s_mul_i32 s{t}, s{sRB}, 192
s_lshl_b32 s{t+1}, s{sISQ}, 4
s_sub_i32 s{t}, s{t}, s{t+1}
v_add_u32 v201, s{t}, v202
s_add_u32 s{t+1}, s{t+1}, 192
v_cmp_gt_u32 vcc, s{t+1}, v202
s_mov_b64 s[{t+2}:{t+3}], vcc
v_mov_b32 v203, 2048
v_cmp_gt_u32 vcc, v203, v201
s_and_b64 s[{sVAL}:{sVAL+1}], vcc, s[{t+2}:{t+3}]
v_lshlrev_b32 v201, 4, v201
v_add_u32 v201, {W_RS}, v201
v_mov_b32 v203, {OOB}
v_cndmask_b32 v201, v203, v201, s[{sVAL}:{sVAL+1}]
v_lshlrev_b32 v204, 4, v202
v_add_u32 v204, {L_AOS}, v204
v_mov_b32 v203, {L_SCR}
v_cndmask_b32 v204, v203, v204, s[{t+2}:{t+3}]
v_lshlrev_b32 v205, 2, v202
v_add_u32 v205, {L_SM}, v205
s_lshl_b32 s{t}, s{sH}, 8
s_add_u32 s{t}, s{t}, {L_CS}
v_and_b32 v203, 31, v{VLANE}
v_lshlrev_b32 v203, 3, v203
v_add_u32 v203, s{t}, v203
v_and_b32 v206, 15, v{VLANE}
v_mov_b32 v207, s{sBROW}
v_mov_b32 v208, s{sBROWC}
v_mov_b32 v209, s{sNV}
v_mov_b32 v210, s{sNVC}
v_cmp_gt_u32 vcc, 32, v{VLANE}
v_cndmask_b32 v207, v208, v207, vcc
v_cndmask_b32 v209, v210, v209, vcc
v_add_u32 v209, -1, v209
v_min_u32 v206, v206, v209
v_add_u32 v206, v206, v207
v_subrev_u32 v206, {W_PK >> 11}, v206
v_lshlrev_b32 v206, 4, v206
v_add_u32 v206, {W_PF}, v206""")
def collect_loads(tag):
    for p in range(4):
        if p < 2: I(f'buffer_load_dwordx4 v[{vCL+4*p}:{vCL+4*p+3}], v200, {srd(SWS)}, 0 offen offset:{p*2048} sc1', tag)
        else: I(f's_movk_i32 s{t}, {p*2048}\nbuffer_load_dwordx4 v[{vCL+4*p}:{vCL+4*p+3}], v200, {srd(SWS)}, s{t} offen sc1', tag)
    I(f'buffer_load_dwordx4 v[{vCL+16}:{vCL+19}], v201, {srd(SWS)}, 0 offen sc1', tag)
    I(f'buffer_load_dwordx2 v[{vCL+20}:{vCL+21}], v206, {srd(SWS)}, 0 offen sc1', tag)
def collect_check(ok):
    I(f"""v_cmp_eq_u64 vcc, s[{sN}:{sN+1}], v[{vCL+18}:{vCL+19}]
s_orn2_b64 s[{t+2}:{t+3}], vcc, s[{sVAL}:{sVAL+1}]
v_cmp_eq_u64 vcc, s[{sN}:{sN+1}], v[{vCL+20}:{vCL+21}]
s_and_b64 s[{t+2}:{t+3}], s[{t+2}:{t+3}], vcc""")
    for p in range(4):
        I(f"""v_cmp_eq_u64 vcc, s[{sN}:{sN+1}], v[{vCL+4*p+2}:{vCL+4*p+3}]
s_and_b64 s[{t+2}:{t+3}], s[{t+2}:{t+3}], vcc""")
    I(f's_cmp_eq_u64 s[{t+2}:{t+3}], -1\ns_cbranch_scc1 {ok}')
def collect_finish():
    k.wait_vm('CL')
    ok = newlbl('clok'); L = newlbl('clre')
    collect_check(ok)
    I(f's_mov_b32 s{t+4}, 0')
    k.label(L)
    sv = k.snap()
    I('s_sleep 4')
    collect_loads(None)
    I(f's_waitcnt vmcnt(0)\ns_add_u32 s{t+4}, s{t+4}, 1')
    collect_check(ok)
    I(f's_cmp_lt_u32 s{t+4}, 0x20000\ns_cbranch_scc1 {L}')
    k.restore(sv)
    k.label(ok)
    R = vCL + 16
    I(f"""v_add_f32 v{vCL}, v{vCL}, v{vCL+4}
v_add_f32 v{vCL+1}, v{vCL+1}, v{vCL+5}
v_add_f32 v{vCL+8}, v{vCL+8}, v{vCL+12}
v_add_f32 v{vCL+9}, v{vCL+9}, v{vCL+13}
v_add_f32 v{vCL}, v{vCL}, v{vCL+8}
v_add_f32 v{vCL+1}, v{vCL+1}, v{vCL+9}
v_cndmask_b32 v{R}, 0, v{R}, s[{sVAL}:{sVAL+1}]
v_cndmask_b32 v{R+2}, 1.0, v{R+1}, s[{sVAL}:{sVAL+1}]
v_mov_b32 v{vCL+2}, v{vCL}
v_mov_b32 v{vCL+3}, v{vCL+1}
v_rsq_f32 v{R+1}, v{R+2}
s_cmp_eq_u32 s{sISQ}, 1
s_mov_b32 s{t}, {f32(-LOG2E)}
s_cmov_b32 s{t}, {f32(0.25*LOG2E)}
v_permlane32_swap_b32 v{vCL}, v{vCL+2}
v_permlane32_swap_b32 v{vCL+1}, v{vCL+3}
v_mul_f32 v{R+3}, s{t}, v{R+1}
v_add_f32 v{vCL}, v{vCL}, v{vCL+2}
v_add_f32 v{vCL+1}, v{vCL+1}, v{vCL+3}
ds_write_b128 v204, v[{R}:{R+3}]
ds_write_b32 v205, v{R}
ds_write_b32 v205, v{R+1} offset:1024
ds_write_b64 v203, v[{vCL}:{vCL+1}]
ds_write_b64 v236, v[16:17] offset:{L_NONCE - L_FULL}
s_waitcnt lgkmcnt(0)""")

def b2_touch(part):
    if part == 0:
        mk_srd(SOUT, 16, 1376*1024)
        I(f"""s_lshl_b32 s{t}, s{sSLOTID}, 2
s_add_u32 s{t}, s{t}, s{sH}
s_mul_i32 s{t}, s{t}, 43*256
v_lshlrev_b32 v48, 7, v{VLANE}
v_add_u32 v48, s{t}, v48
v_cmp_gt_u32 vcc, 43, v{VLANE}
v_mov_b32 v50, {OOB}
v_cndmask_b32 v48, v50, v48, vcc
buffer_load_dword v51, v48, {srd(SOUT)}, 0 offen""", 'TB')
    elif part == 1:
        I(f"""s_movk_i32 s{t}, 43*128
buffer_load_dword v52, v48, {srd(SOUT)}, s{t} offen""", 'TB')
    else:
        I(f"""s_lshl_b32 s{t}, s{sSLOTID}, 2
s_add_u32 s{t}, s{t}, s{sH}
s_lshl_b32 s{t}, s{t}, 12
v_and_b32 v48, 31, v{VLANE}
v_lshlrev_b32 v48, 7, v48
v_add_u32 v48, s{t}, v48""")
        mk_srd(SOUT, 8, 512*1024)
        I(f'buffer_load_dword v53, v48, {srd(SOUT)}, 0 offen', 'TB')
def pack_load():
    I(f"""s_and_b32 s{t}, s2, 7
s_lshr_b32 s{t+1}, s{sSLOTID}, 1
s_lshl_b32 s{t+1}, s{t+1}, 3
s_add_u32 s{t}, s{t}, s{t+1}
s_and_b32 s{t+1}, s{sSLOTID}, 1
s_lshl_b32 s{t+1}, s{t+1}, 2
s_add_u32 s{t+1}, s{t+1}, s{sH}
s_lshl_b32 s{t+2}, s{t+1}, 7
s_add_u32 s{sPKI}, s{t+2}, s{t}
s_cmp_lt_u32 s{t}, 32
s_cselect_b32 s{SOUT}, s8, s16
s_cselect_b32 s{SOUT+1}, s9, s17
s_mov_b32 s{SOUT+2}, {1376*1024}
s_cmov_b32 s{SOUT+2}, {512*1024}
s_mov_b32 s{SOUT+3}, 0x20000
s_cselect_b32 s{t+3}, 0, 32
s_sub_u32 s{t}, s{t}, s{t+3}
s_lshl_b32 s{t}, s{t}, 14
s_add_u32 s{t}, s{t}, s{t+2}
s_add_u32 s{t+1}, s{t}, 8192
buffer_load_dwordx4 v[104:107], v{vB2}, {srd(SOUT)}, s{t} offen
buffer_load_dwordx4 v[108:111], v{vB2}, {srd(SOUT)}, s{t+1} offen""", 'PKL')
def pack_store():
    k.wait_vm('PKL')
    I(f"""s_lshl_b32 s{t}, s{sPKI}, 11
s_add_u32 s{t}, s{t}, {W_PK}
buffer_store_dwordx4 v[104:107], v{vL16}, {srd(SWS)}, s{t} offen sc1
buffer_store_dwordx4 v[108:111], v{vL16}, {srd(SWS)}, s{t} offen offset:1024 sc1""", 'PKS')
def pack_flag():
    k.wait_vm('PKS')
    I(f"""s_lshl_b32 s{t}, s{sPKI}, 4
s_add_u32 s{t}, s{t}, {W_PF}
v_mov_b32 v104, s{sN}
v_mov_b32 v105, s{sN+1}
v_mov_b32 v106, 0
buffer_store_dwordx2 v[104:105], v106, {srd(SWS)}, s{t} offen sc1""", 'PUB')
def touch_at(i):
    if OPT['ct'] == i: pack_load()
    if OPT['ct'] + 1 == i: pack_store()
    if OPT['ct'] + 2 == i: pack_flag()
    for p in range(3):
        if OPT[f'tb{p}'] == i: b2_touch(p)

def landed(i):
    stamp(9 + 2*i); k.wait_vm(f'D{i}'); signal_full(i + 1); stamp(10 + 2*i); touch_at(i)
SLS = t + 7
b2_setup(); collect_setup()
touch_at(0)
stage_dma(1, 1)
spin(L_FULL, 1); slab_reads()
stamp(1)
stage_dma(2, 2)
col_stats(); landed(2); nonce_get(); col_publish()
spin(L_FULL, 2); spin(L_FREE, 1)
stage_dma(3); row_publish(); landed(3)
spin(L_FREE, 2); stage_dma(4); landed(4)
spin(L_FREE, 3); stage_dma(5); landed(5)
for j in range(OPT['nr5']): b2_raw(j, False, RAWL[j], 'RL')
spin(L_FREE, 4); stage_dma(6); collect_loads('CL'); landed(6)
for j in range(OPT['nr5'], OPT['nr6']): b2_raw(j, False, RAWL[j], 'RL')
spin(L_FREE, 5); stage_dma(7)
if OPT['cfin'] == 7: landed(7)
collect_finish()
NR0 = OPT['nr0']
NR0 = max(NR0, OPT['nr6'])
for j in range(OPT['nr6'], NR0): b2_raw(j, False, RAWL[j], 'RL')
if OPT['cfin'] != 7: landed(7)
signal_full(9)
for j in range(NR0, 16): b2_raw(j, False, RAWL[j], 'RL')
for j in range(12, 16): b2_raw(j, True, PKR[j], 'RP')
I(f'v_add_u32 v231, s{sLB2}, v{VL16}')
spin(L_FREE, 6); stamp(2)
for j in range(6): b2_dma(j, True, 'PA')
spin(L_FREE, 7)
for j in range(6, 12): b2_dma(j, True, 'PB')
spin(L_FREE, 8); stamp(3)
k.wait_vm('RL')
for j in range(7): b2_put(SIG_L[j], RAWL[j])
k.wait_vm('PA', 0)
for j in range(6): tr_reads(SIG_P[j], PKR[j])
I('s_waitcnt lgkmcnt(0)')
for j in range(7, 13): b2_put(SIG_L[j], RAWL[j])
k.wait_vm('PB', 0)
for j in range(6, 12): tr_reads(SIG_P[j], PKR[j])
I('s_waitcnt lgkmcnt(0)')
for j in range(13, 16): b2_put(SIG_L[j], RAWL[j])
for j in range(12, 15): b2_put(SIG_P[j], PKR[j])
I('s_waitcnt lgkmcnt(0)')
signal_full(10)
for j in range(12, 15): tr_reads(SIG_P[j], PKR[j])
I('s_waitcnt lgkmcnt(0)')
b2_put(SIG_P[15], PKR[15])
I('s_waitcnt lgkmcnt(0)')
tr_reads(SIG_P[15], PKR[15])
I('s_waitcnt lgkmcnt(0)')
k.vm_reset()
stamp(4)

k.label('L_P2')
k.c('---- phase 2 setup')
VOO, VP = 248, 232
I(f's_lshl_b32 s{t+5}, s{sWAVE}, 3')
tab8(PC0, t+6, t+5); tab8(PCN, t+7, t+5)
I(f"""s_mul_i32 s{t}, s{sRB2}, 86
s_lshr_b32 s{t}, s{t}, 8
s_mul_i32 s{t}, s{t}, 23
s_add_u32 s{t}, s{t}, s{t+6}
v_lshrrev_b32 v1, 2, v{VLANE}
v_min_u32 v1, s{t+7}, v1
v_add_u32 v1, s{t}, v1
v_lshlrev_b32 v1, 7, v1
v_and_b32 v2, 3, v{VLANE}
v_lshl_add_u32 v1, v2, 4, v1
v_add_u32 v{VP}, {W_FL}, v1
s_lshr_b32 s{t}, s{sWAVE}, 2
s_lshl_b32 s{t}, s{t}, 5
s_lshl_b32 s{t+1}, s{sRB2}, 6
s_add_u32 s{t}, s{t}, s{t+1}
v_and_b32 v1, 31, v{VLANE}
v_add_u32 v1, s{t}, v1
v_lshlrev_b32 v1, 10, v1
v_lshrrev_b32 v2, 5, v{VLANE}
v_lshl_add_u32 v1, v2, 4, v1
s_lshl_b32 s{t}, s{sCB2}, 7
s_lshl_b32 s{t+1}, s{sH}, 5
s_add_u32 s{t}, s{t}, s{t+1}
v_add_u32 v{VOO}, s{t}, v1
v_add_u32 v{VOO+1}, {118*1024}, v{VL16}
s_mov_b32 s{t+4}, 0""")
stamp(5)
if OPT['pmask']: I('s_mov_b64 exec, 0xffff')
k.label('L_POLL')
I(f"""buffer_load_dwordx2 v[{VP+2}:{VP+3}], v{VP}, {srd(SWS)}, 0 offen sc1
s_add_u32 s{t+4}, s{t+4}, 1
s_waitcnt vmcnt(0)
v_cmp_eq_u64 vcc, s[{sN}:{sN+1}], v[{VP+2}:{VP+3}]
s_cmp_eq_u64 vcc, exec
s_cbranch_scc1 L_POLLED
s_sleep {OPT['psleep']}
s_cmp_lt_u32 s{t+4}, 0x20000
s_cbranch_scc1 L_POLL""")
k.label('L_POLLED')
I('s_mov_b64 exec, -1')
if OPT['pbar']: I('s_barrier')
k.vm_reset()
stamp(6)
def a_load(i, AW):
    d = AW[i % len(AW)]
    I(f"""s_add_u32 s{t+2}, s{sROT}, {i}
s_and_b32 s{t+2}, s{t+2}, 15
s_add_u32 s{t}, s{sABASE}, s{t+2}
s_lshl_b32 s{t}, s{t}, 10
s_cmp_lt_u32 s{t+2}, s{sNV}
s_cselect_b32 s{t}, s{t}, {OOB}
buffer_load_dwordx4 v[{d}:{d+3}], v{VL16}, {srd(SAF)}, s{t} offen{OPT_ALD}
buffer_load_dwordx4 v[{d+4}:{d+7}], v{VOO+1}, {srd(SAF)}, s{t} offen{OPT_ALD}""", f'A{i}')
def p2_stream(helper):
    AW = HAW[:OPT['naw']] if helper else [96 + 8*j for j in range(OPT['nawc'])]
    nw = len(AW)
    BD = 64
    for i in range(nw): a_load(i, AW)
    if not helper:
        L = newlbl('pw'); D = newlbl('pwd')
        I(f's_lshl_b32 s{t}, s{sH}, 2\ns_add_u32 s{t}, s{t}, {L_FULL}\nv_mov_b32 v238, s{t}\ns_mov_b32 s{t+4}, 0')
        k.label(L)
        I(f"""ds_read_b32 v239, v238
s_add_u32 s{t+4}, s{t+4}, 1
s_waitcnt lgkmcnt(0)
v_cmp_gt_u32 vcc, 10, v239
s_cmp_lt_u32 s{t+4}, 0x400000
s_cbranch_vccz {D}
s_cbranch_scc1 {L}""")
        k.label(D)
        tr_reads(SIG_L[0], BD); tr_reads(SIG_L[1], BD + 8)
    stamp(25)
    for i in range(16):
        if not helper and i + 2 < 16: tr_reads(SIG_L[i + 2], BD + 8*((i + 2) % 3))
        b = PKR[i] if helper else BD + 8*(i % 3)
        a = AW[i % nw]
        k.wait_vm(f'A{i}', None if helper else 4*min(2, 15 - i))
        for mt in range(2):
            for ct in range(2):
                r = ACC + 32*mt + 16*ct
                I(f'v_mfma_f32_32x32x16_bf16 v[{r}:{r+15}], v[{b+4*ct}:{b+4*ct+3}], v[{a+4*mt}:{a+4*mt+3}], ' + ('0' if i == 0 else f'v[{r}:{r+15}]'))
        if i + nw < 16: a_load(i + nw, AW)
        if i + nw == 16 or (nw == 16 and i == 0): I(f'buffer_load_dwordx4 v[{VXR}:{VXR+3}], v{VOO}, {srd(SX)}, 0 offen', 'XR')
        if i in (0, 3, 7, 11): stamp(26 + (i + 1)//4)
I(f's_cmp_lt_u32 s{sWAVE}, 4\ns_cbranch_scc1 L_P2C')
p2_stream(True)
I('s_branch L_P2E')
k.label('L_P2C')
k.vm_reset(); k.pv = []; k.pl = []
p2_stream(False)
k.label('L_P2E')
stamp(7)
k.c('---- reduction + final epilogue')
mk_srd(SOUT, 18, 2048*1024)
I(f"""s_lshl_b32 s{t}, s{sWAVE}, 11
v_add_u32 v64, s{t}, v{VL16}
v_add_u32 v65, 0x10000, v64
s_lshl_b32 s{t}, s{sWAVE}, 14
v_add_u32 v66, s{t}, v{VL16}
s_barrier""")
for d in range(8):
    for hf in range(2):
        I(f'ds_write_b128 v{64 + (d >> 2)}, v[{8*d+4*hf}:{8*d+4*hf+3}] offset:{(d & 3)*16384 + hf*1024}')
I('s_waitcnt lgkmcnt(0)\ns_barrier')
stamp(31)
R = 72
order = [2, 3, 4, 5, 6, 7, 0, 1]
for s_ in order:
    for hf in range(2): I(f'ds_read_b128 v[{R+8*s_+4*hf}:{R+8*s_+4*hf+3}], v66 offset:{s_*2048 + hf*1024}')
I(f's_mov_b32 s{t}, {f32(-LOG2E)}\ns_mov_b32 s{t+1}, {f32(-LOG2E)}\ns_mov_b32 s{t+2}, 1.0\ns_mov_b32 s{t+3}, 1.0\ns_waitcnt vmcnt(0)')
X = 140
I(f'v_permlane32_swap_b32 v{VXR}, v{VXR+2}\nv_permlane32_swap_b32 v{VXR+1}, v{VXR+3}')
for d in range(4): I(f'v_lshlrev_b32 v{X+2*d}, 16, v{VXR+d}\nv_and_b32 v{X+2*d+1}, 0xffff0000, v{VXR+d}')
F, E, S0 = R + 16, 148, R
PR = lambda r, p: f'v[{r+2*p}:{r+2*p+1}]'
for n_, s_ in enumerate(order[1:6]):
    I(f's_waitcnt lgkmcnt({12 - 2*n_})')
    for p in range(4): I(f'v_pk_add_f32 {PR(F,p)}, {PR(F,p)}, {PR(R+8*s_,p)}')
for p in range(4): I(f'v_pk_mul_f32 {PR(E,p)}, {PR(F,p)}, s[{t}:{t+1}]')
I('s_waitcnt lgkmcnt(0)')
for p in range(4): I(f'v_exp_f32 v{E+2*p}, v{E+2*p}\nv_exp_f32 v{E+2*p+1}, v{E+2*p+1}\nv_pk_add_f32 {PR(S0,p)}, {PR(S0,p)}, {PR(R+8,p)}')
for p in range(4): I(f'v_pk_add_f32 {PR(E,p)}, {PR(E,p)}, s[{t+2}:{t+3}]')
for p in range(4): I(f'v_rcp_f32 v{E+2*p}, v{E+2*p}\nv_rcp_f32 v{E+2*p+1}, v{E+2*p+1}\nv_pk_mul_f32 {PR(F,p)}, {PR(F,p)}, {PR(S0,p)}')
for p in range(4): I(f'v_pk_fma_f32 {PR(F,p)}, {PR(F,p)}, {PR(E,p)}, {PR(X,p)}')
for p in range(4): I(f'v_cvt_pk_bf16_f32 v{E+8+p}, v{F+2*p}, v{F+2*p+1}')
I(f'v_permlane32_swap_b32 v{E+8}, v{E+10}\nv_permlane32_swap_b32 v{E+9}, v{E+11}')
I(f'buffer_store_dwordx4 v[{E+8}:{E+11}], v{VOO}, {srd(SOUT)}, 0 offen{OPT_OUTST}')
if OPT['diag']:
    I('s_waitcnt vmcnt(0)')
    stamp(8)
    I(f"""s_lshl_b32 s{t}, s2, 3
s_add_u32 s{t}, s{t}, s{sWAVE}
s_lshl_b32 s{t}, s{t}, 8
s_add_u32 s{t}, s{t}, {W_DIAG}
v_lshlrev_b32 v1, 2, v{VLANE}
buffer_store_dword v{VDIAG}, v1, {srd(SWS)}, s{t} offen""")
    if OPT['diag'] == 2:
        I(f"""s_cmp_lg_u32 s2, {OPT.get('dw', 0)}
s_cbranch_scc1 L_END
s_and_b32 s{t}, s{sWAVE}, 3
s_cmp_lg_u32 s{t}, 0
s_cbranch_scc1 L_END
s_cmp_eq_u32 s{sWAVE}, 0
s_cselect_b32 s{t}, 8, 44
s_cselect_b32 s{t+1}, 9, 5
v_add_u32 v1, s{t}, v1
v_cmp_gt_u32 vcc, s{t+1}, v{VLANE}
s_and_saveexec_b64 s[{t+2}:{t+3}], vcc
global_store_dword v1, v{VDIAG}, s[20:21]""")
if OPT.get('padto'):
    k.label('L_PAD')
    I(f"""s_memrealtime s[{t}:{t+1}]
s_waitcnt lgkmcnt(0)
s_sub_u32 s{t}, s{t}, s98
s_cmp_lt_u32 s{t}, {OPT['padto']}
s_cbranch_scc1 L_PAD""")
k.label('L_END')
I('s_endpgm')

k.label('L_C')
k.fresh()
I('s_waitcnt lgkmcnt(0)')
if OPT['diag']: I(f'v_writelane_b32 v{VDIAG}, s100, 62')
stamp(0)
if OPT['sct']:
    I(f"""s_lshl_b32 s{t}, s2, 2
s_add_u32 s{t}, s{t}, s{sWAVE}
s_mul_i32 s{t+1}, s{t}, 1376
s_and_b32 s{t+1}, s{t+1}, -64
s_add_u32 s{t+2}, s16, s{t+1}
s_addc_u32 s{t+3}, s17, 0
s_lshl_b32 s{t+1}, s{t}, 9
s_add_u32 s{t+4}, s8, s{t+1}
s_addc_u32 s{t+5}, s9, 0""")
    for i in range(22): I(f's_load_dword s{t+6}, s[{t+2}:{t+3}], {64*i}')
    for i in range(8): I(f's_load_dword s{t+6}, s[{t+4}:{t+5}], {64*i}')
mk_srd(SWS, 22, WS_REC); mk_srd(SAF, 22, AF_BYTES)
p2_params(False)
for r in range(152): I(f'v_mov_b32 v{r}, 0')
row_stats()
VCF, VFU, VFR, VTM = 248, 246, 245, 247
I(f"""v_mov_b32 v{VFU}, {L_FULL}
s_lshl_b32 s{t}, s{sWAVE}, 2
v_add_u32 v{VFR}, s{t}, v{VFU}
s_cmp_eq_u32 s{sISQ}, 1
s_cbranch_scc1 L_CQ""")
sNEED = t + 11
def c_flag_read(): I(f'ds_read_b128 v[{VCF}:{VCF+3}], v{VFU}')
def c_check(spinl):
    I(f"""v_min_u32 v{VCF}, v{VCF}, v{VCF+1}
v_min3_u32 v{VCF}, v{VCF}, v{VCF+2}, v{VCF+3}
v_cmp_gt_u32 vcc, s{sNEED}, v{VCF}""")
def c_spin_block(spinl, back):
    k.label(spinl)
    I(f's_mov_b32 s{t+4}, 0')
    k.label(spinl + '_l')
    c_flag_read()
    I(f's_add_u32 s{t+4}, s{t+4}, 1\ns_waitcnt lgkmcnt(0)')
    c_check(None)
    if OPT['diag']: I(f's_add_u32 m0, s{sNEED}, 8\ns_nop 0\nv_writelane_b32 v{VDIAG}, s{t+4}, m0')
    I(f's_cmp_lt_u32 s{t+4}, 0x400000\ns_cbranch_vccz {back}\ns_cbranch_scc1 {spinl}_l\ns_branch {back}')

def publish_flag():
    stamp(30)
    I(f"""s_mul_i32 s{t}, s{sRB}, 23
s_add_u32 s{t}, s{t}, s{sCOL}
s_lshl_b32 s{t}, s{t}, 7
s_lshl_b32 s{t+1}, s{sWAVE}, 4
s_add_u32 s{t}, s{t}, s{t+1}
s_add_u32 s{t}, s{t}, {W_FL}
v_mov_b32 v250, {OOB}
v_cmp_eq_u32 vcc, 0, v{VLANE}
v_cndmask_b32 v250, v250, 0, vcc
v_mov_b32 v251, {L_NONCE}
ds_read_b64 v[252:253], v251
s_waitcnt vmcnt(0) lgkmcnt(0)
v_readfirstlane_b32 s{sN}, v252
v_readfirstlane_b32 s{sN+1}, v253
buffer_store_dwordx2 v[252:253], v250, {srd(SWS)}, s{t} offen sc1""")
    stamp(4)
    p2_addr()
    I('s_branch L_P2')

sSL, sIT = t + 12, t + 13
sDL = t + 10
def next_slot():
    I(f"""s_add_u32 s{sSL}, s{sSL}, 1
s_mov_b32 s{sDL}, {SLOT}
s_cmp_eq_u32 s{sSL}, 3
s_cmov_b32 s{sDL}, {-2*SLOT}
s_cmov_b32 s{sSL}, 0""")
lg = []
def lg_wait(tags):
    idx = max((i for i, x in enumerate(lg) if x in tags), default=None)
    if idx is None: return
    n = min(15, len(lg) - 1 - idx)
    I(f's_waitcnt lgkmcnt({n})')
    del lg[:len(lg) - n]

k.c('---- C FFN')
XF, WF, XA, WA = 144, 192, 240, 244
I(f"""s_lshr_b32 s{t}, s{sWAVE}, 1
s_and_b32 s{t+1}, s{sWAVE}, 1
s_mul_i32 s{t+2}, s{t}, {96*128}
v_and_b32 v150, 31, v{VLANE}
v_bfe_u32 v151, v{VLANE}, 1, 3
v_lshrrev_b32 v152, 5, v{VLANE}
v_xor_b32 v151, v151, v152
v_lshlrev_b32 v150, 7, v150
v_add_u32 v150, s{t+2}, v150""")
for j in range(4):
    I(f'v_xor_b32 v153, {2*j}, v151\nv_lshl_add_u32 v{XA+j}, v153, 4, v150')
I(f"""v_bfe_u32 v150, v{VLANE}, 2, 2
v_lshl_add_u32 v150, v152, 3, v150
v_mul_u32_u24 v150, 192, v150
v_bfe_u32 v151, v{VLANE}, 4, 1
v_mul_u32_u24 v151, 12320, v151
v_add_u32 v150, v150, v151
v_and_b32 v151, 3, v{VLANE}
v_lshl_add_u32 v150, v151, 3, v150
s_mul_i32 s{t+2}, s{t+1}, 96
s_add_u32 s{t+2}, s{t+2}, 24576
v_add_u32 v{WA}, s{t+2}, v150""")
I(f's_mov_b32 s{sSL}, 0')
def ffn_reads(u):
    out = []
    def xr(a):
        d = XF + 12*u + 4*a
        return (f'ds_read_b128 v[{d}:{d+3}], v{XA+u} offset:{a*4096}', ('x', a, u))
    def wr(b, s_):
        d = WF + 12*u + 4*b
        return (f'ds_read_b64_tr_b16 v[{d+2*s_}:{d+2*s_+1}], v{WA} offset:{(16*u+4*s_)*192 + b*32}', ('w', b, s_, u))
    return [xr(0), wr(0,0), wr(0,1), wr(1,0), wr(1,1), wr(2,0), wr(2,1), xr(1), xr(2)]
def rd(x): I(x[0]); lg.append(x[1])
stamp(1)
I(f's_waitcnt vmcnt(0)\ns_mov_b32 s{sNEED}, 1\ns_branch L_FSP0')
c_spin_block('L_FSP', 'L_FBK')
c_spin_block('L_FSP0', 'L_FGO')
k.label('L_FGO')
stamp(2)
lg.clear()
for x in ffn_reads(0): rd(x)
I(f'ds_read_b32 v{VTM}, v{VFU}'); lg.append('free')
for x in ffn_reads(1): rd(x)
entry = list(lg)
k.label('L_FLOOP')
m0_ = k.mark()
for u in range(4):
    q = ffn_reads((u + 2) & 3)
    n = 0
    for a in range(3):
        for b in range(3):
            lg_wait([('x', a, u), ('w', b, 0, u), ('w', b, 1, u)] + (['flag'] if (u, n) == (1, 7) else []))
            if (u, n) == (1, 7):
                I(f's_add_u32 s{sNEED}, s{sNEED}, 1'); c_check(None); next_slot()
            ac = (a*3 + b) * 16; x = XF + 12*u + 4*a; w = WF + 12*u + 4*b
            I(f'v_mfma_f32_32x32x16_bf16 v[{ac}:{ac+15}], v[{w}:{w+3}], v[{x}:{x+3}], v[{ac}:{ac+15}]')
            if (u, n) == (2, 0):
                for j in range(4): I(f'v_add_u32 v{XA+j}, s{sDL}, v{XA+j}')
                I(f'v_add_u32 v{WA}, s{sDL}, v{WA}\ns_cbranch_vccnz L_FSP')
                k.label('L_FBK')
            if (u, n) == (3, 0):
                lg_wait([('x', 2, 3)])
                I(f'v_add_u32 v{VTM}, -1, s{sNEED}'.replace('v_add_u32', 'v_add_u32_e64') + f'\nds_write_b32 v{VFR}, v{VTM} offset:16'); lg.append('free')
            rd(q.pop(0))
            if (u, n) == (1, 0): c_flag_read(); lg.append('flag')
            n += 1
    assert not q
assert lg == entry[len(entry)-len(lg):], (lg, entry)
I(f's_cmp_lt_u32 s{sNEED}, 9\ns_cbranch_scc1 L_FLOOP')
k.check_backedge(m0_)
stamp(3)
k.c('---- FFN epilogue')
ST, CSB, EE, OUTR = 144, 156, 188, 196
VA_ = 204
I(f"""s_waitcnt lgkmcnt(0)
s_lshr_b32 s{t}, s{sWAVE}, 1
s_and_b32 s{t+1}, s{sWAVE}, 1
s_mul_i32 s{t+2}, s{t}, {96*16}
s_add_u32 s{t+2}, s{t+2}, {L_AOS}
v_and_b32 v{VA_}, 31, v{VLANE}
v_lshlrev_b32 v{VA_}, 4, v{VA_}
v_add_u32 v{VA_}, s{t+2}, v{VA_}
s_mul_i32 s{t+2}, s{t+1}, {48*4}
s_add_u32 s{t+2}, s{t+2}, {L_CS}
v_lshrrev_b32 v{VA_+1}, 5, v{VLANE}
v_lshlrev_b32 v{VA_+1}, 4, v{VA_+1}
v_add_u32 v{VA_+1}, s{t+2}, v{VA_+1}
v_lshlrev_b32 v{VA_+2}, 4, v{VLANE}""")
for a in range(3): I(f'ds_read_b128 v[{ST+4*a}:{ST+4*a+3}], v{VA_} offset:{a*512}')
def cs_reads(b):
    d = CSB + 16*(b & 1)
    for m in range(2):
        for i2 in range(2):
            I(f'ds_read_b128 v[{d+8*m+4*i2}:{d+8*m+4*i2+3}], v{VA_+1} offset:{m*512 + b*64 + i2*32}')
cs_reads(0)
I(f"""s_mul_i32 s{t+4}, s{sRB}, 6
s_mul_i32 s{t+2}, s{t}, 3
s_add_u32 s{t+4}, s{t+4}, s{t+2}
s_mul_i32 s{t+4}, s{t+4}, 118
s_mul_i32 s{t+5}, s{sCOL}, 6
s_mul_i32 s{t+2}, s{t+1}, 3
s_add_u32 s{t+5}, s{t+5}, s{t+2}
s_add_u32 s{t+4}, s{t+4}, s{t+5}
s_add_u32 s{t+4}, s{t+4}, 32
s_lshl_b32 s{t+4}, s{t+4}, 10""")
tile = 0
pend = []
for b in range(3):
    if b < 2: cs_reads(b + 1)
    I(f's_waitcnt lgkmcnt({4 if b < 2 else 0})')
    cg_ = CSB + 16*(b & 1); cu_ = cg_ + 8
    (pend.append if OPT['defer'] else I)(f's_add_u32 s{t+6}, s{t+5}, {b}\ns_add_u32 s{t+7}, s{t+4}, {b*1024}\ns_cmp_lt_u32 s{t+6}, 86\ns_cselect_b32 s{t+7}, s{t+7}, {OOB}')
    for a in range(3):
        G = (a*3 + b) * 16; U = G + 8; s0 = ST + 4*a; o = G if OPT['defer'] else OUTR + 4*(tile & 1)
        P = lambda r, p: f'v[{r+2*p}:{r+2*p+1}]'
        for p in range(4): I(f'v_pk_fma_f32 {P(G,p)}, {P(cg_,p)}, v[{s0}:{s0+1}], {P(G,p)} op_sel_hi:[1,0,1] neg_lo:[0,1,0] neg_hi:[0,1,0]')
        for p in range(4): I(f'v_pk_mul_f32 {P(EE,p)}, {P(G,p)}, v[{s0+2}:{s0+3}] op_sel:[0,1] op_sel_hi:[1,1]')
        for p in range(4): I(f'v_pk_fma_f32 {P(U,p)}, {P(cu_,p)}, v[{s0}:{s0+1}], {P(U,p)} op_sel_hi:[1,0,1] neg_lo:[0,1,0] neg_hi:[0,1,0]')
        for e in range(8): I(f'v_exp_f32 v{EE+e}, v{EE+e}')
        for p in range(4): I(f'v_pk_mul_f32 {P(U,p)}, {P(U,p)}, {P(G,p)}')
        for p in range(4): I(f'v_pk_fma_f32 {P(EE,p)}, {P(EE,p)}, v[{s0+2}:{s0+3}], v[{s0+2}:{s0+3}] op_sel_hi:[1,0,0]')
        for e in range(8): I(f'v_rcp_f32 v{EE+e}, v{EE+e}')
        for p in range(4): I(f'v_pk_mul_f32 {P(U,p)}, {P(U,p)}, {P(EE,p)}')
        for p in range(4): I(f'v_cvt_pk_bf16_f32 v{o+p}, v{U+2*p}, v{U+2*p+1}')
        st_ = f'buffer_store_dwordx4 v[{o}:{o+3}], v{VA_+2}, {srd(SAF)}, s{t+7} offen{OPT_HST}' + (f'\ns_add_u32 s{t+7}, s{t+7}, {118*1024}' if a < 2 else '')
        (pend.append if OPT['defer'] else I)(st_)
        tile += 1
for x in pend: I(x)
publish_flag()

k.label('L_CQ')
k.fresh()
k.c('---- C QKV')
QA, KA, VA = 0, 48, 100
XS, XD, WQ = 152, 192, 216
XA, WA = 240, 244
I(f"""v_and_b32 v160, 15, v{VLANE}
v_bfe_u32 v161, v{VLANE}, 1, 3
v_lshrrev_b32 v162, 4, v{VLANE}
v_xor_b32 v161, v161, v162
v_lshlrev_b32 v163, 7, v160
v_lshl_add_u32 v{XA}, v161, 4, v163
v_xor_b32 v{XA+1}, 64, v{XA}
v_bfe_u32 v163, v{VLANE}, 2, 2
v_lshl_add_u32 v163, v162, 3, v163
v_lshlrev_b32 v163, 7, v163
v_bfe_u32 v164, v{VLANE}, 3, 1
v_and_b32 v165, 1, v162
v_lshl_or_b32 v164, v165, 1, v164
v_xor_b32 v164, s{sWAVE}, v164
v_lshl_add_u32 v163, v164, 5, v163
v_and_b32 v164, 3, v{VLANE}
v_lshl_add_u32 v163, v164, 3, v163
v_add_u32 v{WA}, 26624, v163""")
I(f's_mov_b32 s{sSL}, 0')
def xreg(tau, j): return XS + 4*tau if tau < 10 else XD + 12*(j & 1) + 4*(tau - 10)
def rd_x(tau, j):
    d = xreg(tau, j); I(f'ds_read_b128 v[{d}:{d+3}], v{XA+j} offset:{tau*2048}'); lg.append(('x', tau, j))
def rd_w(m, s_, j):
    d = WQ + 12*j + 4*m + 2*s_; I(f'ds_read_b64_tr_b16 v[{d}:{d+1}], v{WA} offset:{m*8192 + (32*j+4*s_)*128}'); lg.append(('w', m, s_, j))
def sched(tau):
    ex = [('w',1,0),('w',1,1),('w',2,0),('w',2,1),('w',0,0),('w',0,1),('x',10),('x',11),('x',12)]
    r = [[], [], []]
    if 1 <= tau <= 10: r[1].append(('x', tau - 1))
    if 1 <= tau <= 9: r[2].append(ex[tau - 1])
    return r
def do_reads(lst, j):
    for x in lst:
        if x[0] == 'x': rd_x(x[1], j)
        else: rd_w(x[1], x[2], j)
stamp(1)
I(f's_waitcnt vmcnt(0)\ns_mov_b32 s{sNEED}, 1\ns_branch L_QSP0')
c_spin_block('L_QSP', 'L_QBK')
c_spin_block('L_QSP0', 'L_QGO')
k.label('L_QGO')
stamp(2)
lg.clear()
for tau in range(13):
    for r in sched(tau): do_reads(r, 0)
    if tau == 2: I(f'ds_read_b32 v{VTM}, v{VFU}'); lg.append('free')
entry = list(lg)
k.label('L_QLOOP')
m0_ = k.mark()
for j in range(2):
    for tau in range(13):
        lg_wait([('x', tau, j)] + ([('w',1,0,j),('w',1,1,j),('w',2,0,j),('w',2,1,j)] if tau == 0 else []) + ([('w',0,0,j),('w',0,1,j)] if tau == 1 else [])
                + (['flag'] if (j, tau) == (0, 12) else []))
        if (j, tau) == (0, 12):
            I(f's_add_u32 s{sNEED}, s{sNEED}, 1'); c_check(None); next_slot()
        x = xreg(tau, j); w = WQ + 12*j
        X_ = f'v[{x}:{x+3}]'
        sc = sched(tau)
        I(f'v_mfma_f32_16x16x32_bf16 v[{KA+4*tau}:{KA+4*tau+3}], v[{w+4}:{w+7}], {X_}, v[{KA+4*tau}:{KA+4*tau+3}]')
        if (j, tau) == (1, 0):
            I(f'v_add_u32 v{XA}, s{sDL}, v{XA}\nv_add_u32 v{WA}, s{sDL}, v{WA}')
        I(f'v_mfma_f32_16x16x32_bf16 v[{VA+4*tau}:{VA+4*tau+3}], {X_}, v[{w+8}:{w+11}], v[{VA+4*tau}:{VA+4*tau+3}]')
        if (j, tau) == (1, 0):
            I(f'v_add_u32 v{XA+1}, s{sDL}, v{XA+1}\ns_cbranch_vccnz L_QSP')
            k.label('L_QBK')
        do_reads(sc[1], 1 - j)
        if tau >= 1:
            q = QA + 4*(tau - 1)
            I(f'v_mfma_f32_16x16x32_bf16 v[{q}:{q+3}], v[{w}:{w+3}], {X_}, v[{q}:{q+3}]')
        do_reads(sc[2], 1 - j)
        if (j, tau) == (0, 6): c_flag_read(); lg.append('flag')
        if (j, tau) == (1, 2):
            lg_wait([('x', 9, 1)])
            I(f'v_add_u32_e64 v{VTM}, -1, s{sNEED}\nds_write_b32 v{VFR}, v{VTM} offset:16'); lg.append('free')
assert lg == entry[len(entry)-len(lg):], (lg, entry)
I(f's_cmp_lt_u32 s{sNEED}, 9\ns_cbranch_scc1 L_QLOOP')
k.check_backedge(m0_)
stamp(3)
k.c('---- QKV epilogue (attention)')
KB, VB, QB = 152, 178, 204
AS, SMR, CSQ, CSK, CSV = 204, 212, 250, 228, 232
SEL, ONES, VAD = 234, 238, 242
sPAR, sOA, sOB, sVA_, sVB_ = sM, sM+2, sM+4, sM+6, sM+8
I(f"""s_waitcnt lgkmcnt(0)
v_and_b32 v246, 15, v{VLANE}
v_lshrrev_b32 v247, 4, v{VLANE}
v_lshlrev_b32 v{VAD}, 4, v246
v_add_u32 v{VAD}, {L_AOS}, v{VAD}
v_lshlrev_b32 v{VAD+1}, 4, v247
s_lshl_b32 s{t}, s{sWAVE}, 6
s_add_u32 s{t}, s{t}, {L_CS}
v_add_u32 v{VAD+2}, s{t}, v{VAD+1}
v_add_u32 v{VAD+1}, {L_SM}, v{VAD+1}
v_lshlrev_b32 v248, 2, v246
v_add_u32 v248, s{t}, v248
ds_read_b128 v[{CSQ}:{CSQ+3}], v{VAD+2}
ds_read_b128 v[{CSK}:{CSK+3}], v{VAD+2} offset:256
ds_read_b32 v{CSV}, v248 offset:512
v_lshlrev_b32 v{VAD+3}, 4, v{VLANE}
v_and_b32 v248, 1, v{VLANE}
v_cmp_eq_u32 s[{sPAR}:{sPAR+1}], 1, v248
v_lshl_add_u32 v249, v247, 2, v248
v_cmp_le_u32 s[{sOA}:{sOA+1}], v249, v246
v_add_u32 v249, 2, v249
v_cmp_le_u32 s[{sOB}:{sOB+1}], v249, v246
s_cmp_eq_u32 s{sRB}, 0
s_cselect_b64 s[{sVA_}:{sVA_+1}], s[{sOA}:{sOA+1}], -1
s_cselect_b64 s[{sVB_}:{sVB_+1}], s[{sOB}:{sOB+1}], -1
v_mov_b32 v246, 0x0c0c0100
v_mov_b32 v247, 0x01000c0c
v_cndmask_b32 v246, v246, v247, s[{sPAR}:{sPAR+1}]
v_mov_b32 v247, 0x0c0c0302
v_mov_b32 v248, 0x03020c0c
v_cndmask_b32 v247, v247, v248, s[{sPAR}:{sPAR+1}]
v_mov_b32 v248, 0x0c0c0c0c
v_cndmask_b32 v{SEL}, v246, v248, s[{sOA}:{sOA+1}]
v_cndmask_b32 v{SEL+1}, v247, v248, s[{sOB}:{sOB+1}]
v_cndmask_b32 v{SEL+2}, v248, v246, s[{sOA}:{sOA+1}]
v_cndmask_b32 v{SEL+3}, v248, v247, s[{sOB}:{sOB+1}]""")
for i in range(4): I(f'v_mov_b32 v{ONES+i}, 0x3f803f80')
I(f"""s_mul_i32 s{t+4}, s{sRB}, {6*118}
s_sub_u32 s{t+5}, s{sCOL}, 15
s_lshl_b32 s{t+5}, s{t+5}, 2
s_add_u32 s{t+4}, s{t+4}, s{t+5}
s_add_u32 s{t+4}, s{t+4}, s{sWAVE}
s_lshl_b32 s{t+4}, s{t+4}, 10""")
NEG = 'neg_lo:[0,1,0] neg_hi:[0,1,0]'
def st_reads(tau):
    a = AS + 4*(tau & 1)
    I(f'ds_read_b128 v[{a}:{a+3}], v{VAD} offset:{tau*256}')
def smr_reads(tau):
    m_ = SMR + 8*(tau & 1)
    I(f'ds_read_b128 v[{m_}:{m_+3}], v{VAD+1} offset:{tau*64}\nds_read_b128 v[{m_+4}:{m_+7}], v{VAD+1} offset:{1024+tau*64}')
st_reads(0); smr_reads(0)
for tau in range(13):
    a = AS + 4*(tau & 1)
    if tau < 12: smr_reads(tau + 1); st_reads(tau + 1)
    I(f's_waitcnt lgkmcnt({3 if tau < 12 else 0})')
    m_ = SMR + 8*(tau & 1)
    Kc, Vc = KA + 4*tau, VA + 4*tau
    for p in range(2): I(f'v_pk_fma_f32 v[{Vc+2*p}:{Vc+2*p+1}], v[{m_+2*p}:{m_+2*p+1}], v[{CSV}:{CSV+1}], v[{Vc+2*p}:{Vc+2*p+1}] op_sel_hi:[1,0,1] {NEG}')
    for p in range(2): I(f'v_pk_fma_f32 v[{Kc+2*p}:{Kc+2*p+1}], v[{CSK+2*p}:{CSK+2*p+1}], v[{a}:{a+1}], v[{Kc+2*p}:{Kc+2*p+1}] op_sel_hi:[1,0,1] {NEG}')
    for p in range(2): I(f'v_pk_mul_f32 v[{Vc+2*p}:{Vc+2*p+1}], v[{Vc+2*p}:{Vc+2*p+1}], v[{m_+4+2*p}:{m_+4+2*p+1}]')
    for p in range(2): I(f'v_pk_mul_f32 v[{Kc+2*p}:{Kc+2*p+1}], v[{Kc+2*p}:{Kc+2*p+1}], v[{a}:{a+1}] op_sel:[0,1] op_sel_hi:[1,1]')
    if tau >= 1:
        Qc = QA + 4*(tau - 1)
        for p in range(2): I(f'v_pk_fma_f32 v[{Qc+2*p}:{Qc+2*p+1}], v[{CSQ+2*p}:{CSQ+2*p+1}], v[{a}:{a+1}], v[{Qc+2*p}:{Qc+2*p+1}] op_sel_hi:[1,0,1] {NEG}')
    for p in range(2): I(f'v_cvt_pk_bf16_f32 v{VB+2*tau+p}, v{Vc+2*p}, v{Vc+2*p+1}')
    for p in range(2): I(f'v_cvt_pk_bf16_f32 v{KB+2*tau+p}, v{Kc+2*p}, v{Kc+2*p+1}')
    if tau >= 1:
        for p in range(2): I(f'v_cvt_pk_bf16_f32 v{Qc+p}, v{Qc+2*p}, v{Qc+2*p+1}')
        I(f'v_mov_b32 v{Qc+2}, v{a+3}')
pend = []
for g in range(3):
    ts = list(range(4*g, 4*g + 4))
    def SO(i): return 48 + 24*i
    def SP(i): return SO(i) + 4
    def PP(i): return SO(i) + 8
    def OO(i): return SO(i) + 12
    def LL(i): return SO(i) + 16
    def TT(i): return SO(i) + 20
    for i, tq in enumerate(ts):
        q = QA + 4*tq; tau = tq + 1
        I(f'v_mfma_f32_16x16x16_bf16 v[{SO(i)}:{SO(i)+3}], v[{KB+2*tau}:{KB+2*tau+1}], v[{q}:{q+1}], 0')
        I(f'v_mfma_f32_16x16x16_bf16 v[{SP(i)}:{SP(i)+3}], v[{KB+2*tau-2}:{KB+2*tau-1}], v[{q}:{q+1}], 0')
    par = f's[{sPAR}:{sPAR+1}]'
    def each(fmt):
        for i, tq in enumerate(ts): I(fmt(i, tq))
    each(lambda i, tq: f'v_cndmask_b32 v{SO(i)}, v{SO(i)}, v{SO(i)+1}, {par}\nv_cndmask_b32 v{SO(i)+2}, v{SO(i)+2}, v{SO(i)+3}, {par}\n'
                       f'v_cndmask_b32 v{SP(i)}, v{SP(i)}, v{SP(i)+1}, {par}\nv_cndmask_b32 v{SP(i)+2}, v{SP(i)+2}, v{SP(i)+3}, {par}')
    each(lambda i, tq: f'v_cndmask_b32 v{SO(i)}, v{SP(i)}, v{SO(i)}, s[{sOA}:{sOA+1}]\nv_cndmask_b32 v{SO(i)+1}, v{SP(i)+2}, v{SO(i)+2}, s[{sOB}:{sOB+1}]')
    if g == 0:
        I(f'v_mov_b32 v{TT(0)}, {f32(-1e30)}\nv_cndmask_b32 v{SO(0)}, v{TT(0)}, v{SO(0)}, s[{sVA_}:{sVA_+1}]\nv_cndmask_b32 v{SO(0)+1}, v{TT(0)}, v{SO(0)+1}, s[{sVB_}:{sVB_+1}]')
    each(lambda i, tq: f'v_max_f32 v{TT(i)}, v{SO(i)}, v{SO(i)+1}\nv_max_f32 v{TT(i)+1}, v{SO(i)}, v{SO(i)+1}')
    each(lambda i, tq: f'v_permlane32_swap_b32 v{TT(i)}, v{TT(i)+1}')
    each(lambda i, tq: f'v_max_f32 v{TT(i)+2}, v{TT(i)}, v{TT(i)+1}\nv_max_f32 v{TT(i)+3}, v{TT(i)}, v{TT(i)+1}')
    each(lambda i, tq: f'v_permlane16_swap_b32 v{TT(i)+2}, v{TT(i)+3}')
    each(lambda i, tq: f'v_max_f32 v{TT(i)}, v{TT(i)+2}, v{TT(i)+3}')
    each(lambda i, tq: f'v_mul_f32 v{TT(i)}, v{TT(i)}, v{QA+4*tq+2}')
    each(lambda i, tq: f'v_fma_f32 v{SO(i)}, v{SO(i)}, v{QA+4*tq+2}, -v{TT(i)}\nv_fma_f32 v{SO(i)+1}, v{SO(i)+1}, v{QA+4*tq+2}, -v{TT(i)}')
    each(lambda i, tq: f'v_exp_f32 v{SO(i)}, v{SO(i)}\nv_exp_f32 v{SO(i)+1}, v{SO(i)+1}')
    each(lambda i, tq: f'v_cvt_pk_bf16_f32 v{TT(i)}, v{SO(i)}, v{SO(i)+1}')
    each(lambda i, tq: '\n'.join(f'v_perm_b32 v{PP(i)+e}, v{TT(i)}, v{TT(i)}, v{SEL+e}' for e in range(4)))
    each(lambda i, tq: f'v_mfma_f32_16x16x32_bf16 v[{LL(i)}:{LL(i)+3}], v[{ONES}:{ONES+3}], v[{PP(i)}:{PP(i)+3}], 0\n'
                       f'v_mfma_f32_16x16x32_bf16 v[{OO(i)}:{OO(i)+3}], v[{VB+2*tq}:{VB+2*tq+3}], v[{PP(i)}:{PP(i)+3}], 0')
    each(lambda i, tq: f'v_rcp_f32 v{TT(i)}, v{LL(i)}')
    each(lambda i, tq: '\n'.join(f'v_pk_mul_f32 v[{OO(i)+2*p}:{OO(i)+2*p+1}], v[{OO(i)+2*p}:{OO(i)+2*p+1}], v[{TT(i)}:{TT(i)+1}] op_sel_hi:[1,0]' for p in range(2)))
    for pr in range(2):
        i0, i1 = 2*pr, 2*pr + 1; o = QA + 4*ts[i0]
        I(f'v_cvt_pk_bf16_f32 v{o}, v{OO(i0)}, v{OO(i0)+1}\nv_cvt_pk_bf16_f32 v{o+1}, v{OO(i0)+2}, v{OO(i0)+3}\n'
          f'v_cvt_pk_bf16_f32 v{o+2}, v{OO(i1)}, v{OO(i1)+1}\nv_cvt_pk_bf16_f32 v{o+3}, v{OO(i1)+2}, v{OO(i1)+3}')
    for pr in range(2):
        o = QA + 4*ts[2*pr]
        I(f'v_permlane16_swap_b32 v{o}, v{o+2}\nv_permlane16_swap_b32 v{o+1}, v{o+3}')
    for pr in range(2):
        o = QA + 4*ts[2*pr]
        (pend.append if OPT['defer'] else I)(f'buffer_store_dwordx4 v[{o}:{o+3}], v{VAD+3}, {srd(SAF)}, s{t+4} offen{OPT_HST}\ns_add_u32 s{t+4}, s{t+4}, {118*1024}')
for x in pend: I(x)
publish_flag()
k.label('L_CODE_END')
I('s_endpgm')

hdr = open('cdna_kernels/' + NAME + '.s.ref').read().split('; Override launch')[0]
txt = hdr + f"""; @launch grid=(256,1,1) block=(512,1,1) lds=163840
.amdgcn_target "amdgcn-amd-amdhsa--gfx950"
.text
.globl {NAME}_kernel
.p2align 8
.type {NAME}_kernel,@function
{NAME}_kernel:
""" + k.text() + f""".section .rodata,"a"
.p2align 6
.amdhsa_kernel {NAME}_kernel
  .amdhsa_next_free_vgpr 256
  .amdhsa_next_free_sgpr 102
  .amdhsa_accum_offset 256
  .amdhsa_group_segment_fixed_size 0
  .amdhsa_kernarg_size 80
  .amdhsa_user_sgpr_count 2
  .amdhsa_user_sgpr_kernarg_segment_ptr 1
  .amdhsa_system_sgpr_workgroup_id_x 1
.end_amdhsa_kernel
"""
open(sys.argv[1], 'w').write(txt)
for p_ in k.problems: print('PROBLEM', p_)
print('written', sys.argv[1], 'lines', txt.count('\n'), 'nops', k.nops)
```

```python
import sys, os
from asmlib import K

NAME = "recurrent_scan__sliding_local_dilated__swiglu_ffn__prompt"
OPT = dict(diag=0, nt_x=0, nt_w=0, nt_b2=0, rot=2, rotb=4, latin=1, naw=5, defer=0, psleep=2, cbshift=0, pmask=1, outst=0, hst=0, tb0=99, tb1=99, tb2=99, pl=1, ps=2, pf=3, sct=0, thr=99, thr_from=3, thrb=99, thrd=99, pace=0, pacen=1, apace=0, athr=0, cfin=7, hold=1, cl=6, nr0=2, sig2=4, nr6=0, nr7=8, nr8=16, nr9=16, midbar=1, nawc=5, ald=0, pbar=0, hsleep=1, cprio=0, sigat=8)
for a in sys.argv[2:]:
    k_, v_ = a.split('='); OPT[k_] = int(v_)

SLOT = 51200
MISC = 155648
L_AOS, L_SM, L_SR, L_CS, L_SCR = MISC, MISC + 4096, MISC + 5120, MISC + 6144, MISC + 7168
L_FULL = L_AOS + 4048
L_FREE = L_AOS + 4064
L_NONCE = L_AOS + 4080
AF_BYTES = 64 * 118 * 1024
W_RS, W_CSP, W_FL, W_DIAG = 0x800000, 0x810000, 0x880000, 0x900000
W_PF, W_PK = 0x890000, 0xa00000
WS_REC = 0x1000000
OOB = 0x7f000000
LOG2E = 1.4426950408889634
import struct
def f32(x): return '0x%08x' % struct.unpack('<I', struct.pack('<f', x))[0]

SX, SWA, SWB, SWS, SAF, SW2, SSL, SOUT = 24, 28, 32, 36, 40, 44, 48, 52
sWAVE, sRB, sCOL, sISQ, sH, sRB2, sCB2, sSLOTID = 56, 57, 58, 59, 60, 61, 62, 63
sN = 64
sT = 66
sLW = 80
sKWS, sC, sKW, sX7M, sX7S, sPOS = 86, 87, 88, 89, 90, 91
sNV, sBROW, sABASE, sLB2 = 92, 93, 94, 95
sST = 96
sSTR = 78
sPKI = 73
sT0 = 44
sS0 = 3
sM = 80
VLANE, VDIAG = 254, 255
def srd(i): return f's[{i}:{i+3}]'

k = K()
OPT_OUTST = ['', ' sc1', ' nt', ' sc0 sc1'][OPT['outst']]
OPT_ALD = [' sc1', '', ' sc0 sc1', ' nt'][OPT['ald']]
OPT_HST = [' sc1', ' sc0 sc1', ' sc1 nt'][OPT['hst']]
I = k.I
lblc = [0]
def newlbl(p):
    lblc[0] += 1; return f'L_{p}_{lblc[0]}'
def stamp(i):
    if OPT.get('padat') == i:
        L = newlbl('pad')
        k.label(L)
        I(f's_memrealtime s[96:97]\ns_waitcnt lgkmcnt(0)\ns_sub_u32 s96, s96, s98\ns_cmp_lt_u32 s96, {OPT["padx"]}\ns_cbranch_scc1 {L}')
    if not OPT['diag']: return
    I(f's_memrealtime s[{sST}:{sST+1}]\ns_memtime s[{sST+2}:{sST+3}]\ns_waitcnt lgkmcnt(0)\nv_writelane_b32 v{VDIAG}, s{sST}, {i}\nv_writelane_b32 v{VDIAG}, s{sST+2}, {i+32}' if i < 29 else f's_memrealtime s[{sST}:{sST+1}]\ns_waitcnt lgkmcnt(0)\nv_writelane_b32 v{VDIAG}, s{sST}, {i}')

def mk_srd(d, p, rec):
    I(f's_mov_b32 s{d}, s{p}\ns_mov_b32 s{d+1}, s{p+1}\ns_mov_b32 s{d+2}, {rec}\ns_mov_b32 s{d+3}, 0x20000')


def nonce_poll():
    L = newlbl('np'); D = newlbl('npd')
    I(f's_mov_b32 s{sT}, 0')
    k.label(L)
    I(f"""s_load_dwordx2 s[{sN}:{sN+1}], s[20:21], 0 glc
s_add_u32 s{sT}, s{sT}, 1
s_waitcnt lgkmcnt(0)
s_cmp_lg_u64 s[{sN}:{sN+1}], 0
s_cbranch_scc1 {D}
s_sleep 2
s_cmp_lt_u32 s{sT}, 0x40000
s_cbranch_scc1 {L}""")
    k.label(D)

k.label('KSTART')
if OPT['diag']: I('s_memrealtime s[100:101]')
I(f"""s_cmp_ge_u32 s2, 256
s_cbranch_scc1 L_END
s_load_dwordx16 s[4:19], s[0:1], 0
s_load_dwordx4 s[20:23], s[0:1], 64
s_memrealtime s[{sT0}:{sT0+1}]
s_getpc_b64 s[{sT+2}:{sT+3}]""")
k.label('L_PC')
I(f"""s_and_b32 s{sT+4}, s2, 0xf8
v_lshrrev_b32 v1, 6, v0
v_and_b32 v{VLANE}, 63, v0
v_add_u32 v2, s{sT+4}, v1
v_lshlrev_b32 v2, 7, v2
v_min_u32 v2, L_CODE_END-L_PC-4, v2
global_load_dword v253, v2, s[{sT+2}:{sT+3}]
v_readfirstlane_b32 s{sWAVE}, v1
v_xor_b32 v1, 4, v1
v_lshlrev_b32 v1, 2, v1
v_add_u32 v1, {L_FULL}, v1
v_mov_b32 v2, 0
ds_write_b32 v1, v2""", 'CODE')
if OPT.get('padto') or 'padat' in OPT: I('s_memrealtime s[98:99]')
if OPT['diag']: I(f'v_mov_b32 v{VDIAG}, 0')
T0 = [18,19,20,4,5,10,31,0]; T1 = [21,22,11,16,17,31,31,0]
def pk(b): return '0x%08x' % (b[0] | b[1] << 8 | b[2] << 16 | b[3] << 24)
t = sT
I(f"""s_and_b32 s{t}, s2, 7
s_lshr_b32 s{sSLOTID}, s2, 3
s_and_b32 s{t+1}, s{t}, 1
s_lshr_b32 s{t+2}, s{t}, 1
s_lshl_b32 s{sRB2}, s{t}, 2
s_lshr_b32 s{t+3}, s{sSLOTID}, 3
s_add_u32 s{sRB2}, s{sRB2}, s{t+3}
s_add_u32 s{sCB2}, s{sSLOTID}, {OPT['cbshift']}
s_and_b32 s{sCB2}, s{sCB2}, 7
s_mul_i32 s{t+3}, s{sSLOTID}, 52
s_lshr_b32 s{t+3}, s{t+3}, 8
s_mul_i32 s{t+4}, s{t+3}, 5
s_sub_u32 s{t+4}, s{sSLOTID}, s{t+4}
s_mul_i32 s{t+5}, s{t+1}, 6
s_add_u32 s{sRB}, s{t+4}, s{t+5}
s_mul_i32 s{t+5}, s{t+2}, 6
s_add_u32 s{sCOL}, s{t+5}, s{t+3}
s_lshl_b32 s{t+6}, s{t+1}, 1
s_add_u32 s{t+5}, s{t+5}, s{t+6}
s_add_u32 s{t+5}, s{t+5}, s{sSLOTID}
s_sub_u32 s{t+5}, s{t+5}, 30
s_cmp_eq_u32 s{t+1}, 0
s_mov_b32 s{t+6}, {pk(T1[:4])}
s_mov_b32 s{t+7}, {pk(T1[4:])}
s_cmov_b32 s{t+6}, {pk(T0[:4])}
s_cmov_b32 s{t+7}, {pk(T0[4:])}""")
I(f"""s_sub_u32 s{t+8}, s{sSLOTID}, 25
s_lshl_b32 s{t+8}, s{t+8}, 3
s_lshr_b64 s[{t+6}:{t+7}], s[{t+6}:{t+7}], s{t+8}
s_and_b32 s{t+6}, s{t+6}, 0xff
s_cmp_eq_u32 s{t+2}, 3
s_cselect_b32 s{t+5}, s{t+6}, s{t+5}
s_cselect_b32 s{t+7}, 25, 30
s_cmp_ge_u32 s{sSLOTID}, s{t+7}
s_cselect_b32 s{sCOL}, s{t+5}, s{sCOL}
s_cselect_b32 s{sRB}, 5, s{sRB}
s_cmp_eq_u32 s{sCOL}, 31
s_cselect_b32 s{sCOL}, 0, s{sCOL}
s_cselect_b32 s{sRB}, 11, s{sRB}
s_add_u32 s{t+5}, s{sCOL}, 1
s_cmp_ge_u32 s{sCOL}, 14
s_cselect_b32 s{sCOL}, s{t+5}, s{sCOL}
s_cmp_eq_u32 s{sCOL}, 23
s_cselect_b32 s{sCOL}, 14, s{sCOL}
s_cmp_ge_u32 s{sCOL}, 15
s_cselect_b32 s{sISQ}, 1, 0
s_and_b32 s{sH}, s{sWAVE}, 3""")
if OPT['latin']:
    I(f"""s_cmp_ge_u32 s{t+3}, 3
s_addc_u32 s{sS0}, s{t+3}, s{t+2}
s_cmp_ge_u32 s{t+4}, 3
s_addc_u32 s{sS0}, s{sS0}, s{t+4}
s_lshl_b32 s{t+1}, s{t+1}, 1
s_add_u32 s{sS0}, s{sS0}, s{t+1}
s_cmp_eq_u32 s{sRB}, 5
s_cselect_b32 s{sS0}, s{sCOL}, s{sS0}
s_and_b32 s{sS0}, s{sS0}, 7""")
else:
    I(f's_mov_b32 s{sS0}, 0')
I(f"""s_cmp_lt_u32 s{sWAVE}, 4
s_cbranch_scc0 L_H
s_or_b32 s{t}, s2, s{sWAVE}
s_cmp_lg_u32 s{t}, 0
s_waitcnt lgkmcnt(0)
s_cbranch_scc1 L_NW
v_mov_b32 v2, s{sT0}
v_mov_b32 v3, s{sT0+1}
v_mov_b32 v4, 0
global_store_dwordx2 v4, v[2:3], s[20:21] sc1""")
k.label('L_NW')
sROW = t + 9
vRD = 200
mk_srd(SX, 4, 2048*1024)
I(f"""s_mul_i32 s{t}, s{sRB}, 192
s_mul_i32 s{t+1}, s{sCOL}, 12
s_add_u32 s{t}, s{t}, s{t+1}
s_mul_i32 s{t+1}, s{sH}, 3
s_add_u32 s{t}, s{t}, s{t+1}
s_cmp_lt_u32 s{sCOL}, 16
s_cselect_b32 s{sROW}, s{t}, 0x100000
s_lshl_b32 s{t}, s{sROW}, 10
v_lshlrev_b32 v7, 4, v{VLANE}""")
for a_ in range(3):
    I(f'buffer_load_dwordx4 v[{vRD+4*a_}:{vRD+4*a_+3}], v7, {srd(SX)}, s{t} offen offset:{a_*1024}')
I("""s_barrier
s_branch L_C""")
k.fresh()
k.label('L_H')

vXo0, vXo1, vW, vL16, vB2 = 2, 3, 4, 7, 247
vT = 8
NTX = ' nt' if OPT['nt_x'] else ''
NTW = ' nt' if OPT['nt_w'] else ''
NTB = ' nt' if OPT['nt_b2'] else ''
k.c('---- H prologue')
I(f"""v_lshrrev_b32 v{vT}, 3, v{VLANE}
v_and_b32 v{vT+1}, 7, v{VLANE}
v_lshrrev_b32 v{vT+2}, 1, v{vT}
s_and_b32 s{t}, s{sH}, 1
s_lshl_b32 s{t+1}, s{t}, 2
v_or_b32 v{vT+3}, s{t+1}, v{vT+2}
v_xor_b32 v{vT+3}, v{vT+3}, v{vT+1}
v_lshlrev_b32 v{vT+3}, 4, v{vT+3}
s_mul_i32 s{t+2}, s{sRB}, 192
s_lshl_b32 s{t+3}, s{sISQ}, 4
s_sub_i32 s{t+2}, s{t+2}, s{t+3}
s_lshl_b32 s{t+3}, s{sH}, 3
s_add_i32 s{t+2}, s{t+2}, s{t+3}
s_add_i32 s{t+4}, s{t+2}, 32
v_add_u32 v{vXo1}, s{t+4}, v{vT}
v_lshlrev_b32 v{vXo1}, 10, v{vXo1}
v_add_u32 v{vXo1}, v{vXo1}, v{vT+3}
s_cmp_lt_i32 s{t+2}, 0
s_mov_b32 s{t+4}, -32768
s_cmov_b32 s{t+4}, 0x40000000
v_add_u32 v{vXo0}, s{t+4}, v{vXo1}
v_lshlrev_b32 v{vL16}, 4, v{VLANE}
s_cmp_eq_u32 s{sISQ}, 1
s_cbranch_scc1 L_HQ""")
I(f"""s_mul_i32 s{t+2}, s{sH}, {16*2752}
s_mul_i32 s{t+3}, s{sCOL}, 192
s_add_u32 s{t+2}, s{t+2}, s{t+3}
s_movk_i32 s{t+4}, 171
s_movk_i32 s{t+5}, 2752
s_sub_u32 s{t+6}, 2752, s{t+3}""")
for b in range(3):
    I(f"""v_add_u32 v{vT+4}, {64*b}, v{VLANE}
v_mul_u32_u24 v{vT+5}, s{t+4}, v{vT+4}
v_lshrrev_b32 v{vT+5}, 11, v{vT+5}
v_mul_u32_u24 v{vT+6}, 12, v{vT+5}
v_sub_u32 v{vT+6}, v{vT+4}, v{vT+6}
v_lshlrev_b32 v{vT+6}, 4, v{vT+6}
v_mad_u32_u24 v{vW+b}, v{vT+5}, s{t+5}, v{vT+6}
v_add_u32 v{vW+b}, s{t+2}, v{vW+b}
v_cmp_gt_u32 vcc, s{t+6}, v{vT+6}
v_mov_b32 v{vT+7}, {OOB}
v_cndmask_b32 v{vW+b}, v{vT+7}, v{vW+b}, vcc""")
I(f"""s_mul_i32 s{sLW}, s{sH}, 3072
s_add_u32 s{sLW}, s{sLW}, 24576
s_add_u32 s{sLW+1}, s{sLW}, 1024
s_add_u32 s{sLW+2}, s{sLW}, 2048
s_add_u32 s{sLW+3}, s{sLW}, 12320
s_add_u32 s{sLW+4}, s{sLW}, {12320+1024}
s_add_u32 s{sLW+5}, s{sLW}, {12320+2048}
s_mov_b32 s{sKWS}, {64*2752}
s_mov_b32 s{sC}, 0
s_mov_b32 s{t+11}, 0
s_waitcnt lgkmcnt(0)""")
mk_srd(SWA, 12, 512*2752); mk_srd(SWB, 14, 512*2752)
I('s_branch L_HJ')
k.label('L_HQ')
I(f"""v_and_b32 v{vT+4}, 1, v{vT+2}
s_lshl_b32 s{t+1}, s{t}, 1
v_or_b32 v{vT+4}, s{t+1}, v{vT+4}
v_lshlrev_b32 v{vT+4}, 1, v{vT+4}
v_xor_b32 v{vT+4}, v{vT+4}, v{vT+1}
v_lshlrev_b32 v{vT+4}, 4, v{vT+4}
s_movk_i32 s{t+5}, 3072
v_mad_u32_u24 v{vW}, v{vT}, s{t+5}, v{vT+4}
s_mul_i32 s{t+2}, s{sH}, {8*3072}
s_sub_u32 s{t+3}, s{sCOL}, 15
s_lshl_b32 s{t+3}, s{t+3}, 7
s_add_u32 s{t+2}, s{t+2}, s{t+3}
v_add_u32 v{vW}, s{t+2}, v{vW}
v_add_u32 v{vW+1}, 1024, v{vW}
v_add_u32 v{vW+2}, 2048, v{vW}
s_lshl_b32 s{sLW}, s{sH}, 10
s_add_u32 s{sLW}, s{sLW}, 26624
s_add_u32 s{sLW+1}, s{sLW}, 8192
s_add_u32 s{sLW+2}, s{sLW}, 16384
s_add_u32 s{sLW+3}, s{sLW}, 4096
s_add_u32 s{sLW+4}, s{sLW}, {4096+8192}
s_add_u32 s{sLW+5}, s{sLW}, {4096+16384}
s_mov_b32 s{sKWS}, {64*3072}
s_mov_b32 s{sC}, {32*3072}
s_cmp_lt_u32 s{sH}, 2
s_cselect_b32 s{t+11}, 1, 0
s_waitcnt lgkmcnt(0)""")
mk_srd(SWA, 6, 512*3072); mk_srd(SWB, 6, 512*3072)
k.label('L_HJ')
mk_srd(SX, 4, 2048*1024)
I(f's_lshl_b32 s{t+10}, s{sH}, 10')
sH1K, sX7R = t + 10, t + 11

sXK, sROT = t + 13, sPOS
VFL = 232
def signal_full(n):
    I(f'v_mov_b32 v237, {n}\nds_write_b32 v238, v237')
def spin(base, n):
    L = newlbl('sp'); D = newlbl('spd')
    I(f's_mov_b32 s{t+4}, 0')
    k.label(L)
    I(f"""ds_read_b128 v[{VFL}:{VFL+3}], v236 offset:{base - L_FULL}
s_add_u32 s{t+4}, s{t+4}, 1
s_waitcnt lgkmcnt(0)
v_min_u32 v{VFL}, v{VFL}, v{VFL+1}
v_min3_u32 v{VFL}, v{VFL}, v{VFL+2}, v{VFL+3}
v_cmp_gt_u32 vcc, {n}, v{VFL}
s_cmp_lt_u32 s{t+4}, 0x400000
s_cbranch_vccz {D}
s_sleep {OPT['hsleep']}
s_cbranch_scc1 {L}""")
    k.label(D)

def stage_dma(i, sig=None):
    base = (i % 3) * SLOT
    tag = f'D{i}'
    cnt = [0]
    if OPT.get('nodma') == 1 and i >= 3: return
    if OPT.get('nodma') == 3 and i >= 3:
        n0 = len(k.out); OPT['nodma'] = 0; stage_dma(i, sig); OPT['nodma'] = 3
        import re as _re
        for j_ in range(n0, len(k.out)):
            k.out[j_] = _re.sub(r'buffer_load_dwordx4 (v\d+), (.*) offen lds', lambda m_: f'buffer_load_dwordx4 v[{128 + 4*(j_ % 16)}:{131 + 4*(j_ % 16)}], {m_.group(1)}, {m_.group(2)} offen', k.out[j_])
        return
    def after():
        cnt[0] += 1
        if i >= OPT['thr_from'] and cnt[0] < 13:
            k.throttle(OPT['thr'])
            if OPT['pace'] and cnt[0] % OPT['pacen'] == 0:
                if OPT['apace']:
                    Lp = newlbl('ap'); sv_ = k.snap()
                    I(f's_cbranch_vccz {Lp}\n' + (f's_waitcnt vmcnt({OPT["athr"]})' if OPT['athr'] else f's_sleep {OPT["pace"]}')); k.restore(sv_); k.label(Lp)
                else: I(f's_sleep {OPT["pace"]}')
        if sig is not None and cnt[0] == (OPT['sigat'] if i < 3 else OPT['sig2']):
            stamp(9 + 2*(i-1)); k.wait_vm(f'D{i-1}'); signal_full(sig); stamp(10 + 2*(i-1))
    if OPT.get('fst') and i >= 3: stamp(9 + 2*i)
    if OPT['apace'] and i >= 3: I(f's_cmp_gt_u32 s{t+4}, {OPT["apace"]}\ns_cselect_b64 vcc, 1, 0')
    I(f"""s_add_u32 s{t+2}, s{sS0}, {i}
s_and_b32 s{t+2}, s{t+2}, 7
s_lshl_b32 s{sXK}, s{t+2}, 7
s_mul_i32 s{sKW}, s{t+2}, s{sKWS}""")
    for tt in range(6):
        I(f's_add_u32 m0, s{sH1K}, {base + tt*4096}')
        if tt <= 1: I(f's_nop 0\nbuffer_load_dwordx4 v{vXo0 if tt == 0 else vXo1}, {srd(SX)}, s{sXK} offen{NTX} lds', tag)
        else: I(f's_add_u32 s{t}, s{sXK}, {(tt-1)*32768}\nbuffer_load_dwordx4 v{vXo1}, {srd(SX)}, s{t} offen{NTX} lds', tag)
        after()
    L7 = newlbl('x7')
    I(f"""s_cmp_eq_u32 s{sX7R}, 0
s_cbranch_scc1 {L7}
s_add_u32 m0, s{sH1K}, {base + 6*4096}
s_add_u32 s{t}, s{sXK}, {5*32768}
buffer_load_dwordx4 v{vXo1}, {srd(SX)}, s{t} offen{NTX} lds""", 'MAYBE')
    k.label(L7)
    after()
    I(f's_add_u32 s{t+1}, s{sKW}, s{sC}')
    for j in range(6):
        I(f's_add_u32 m0, s{sLW+j}, {base}')
        I(f'buffer_load_dwordx4 v{vW + j%3}, {srd(SWA if j < 3 else SWB)}, s{sKW if j < 3 else t+1} offen{NTW} lds', tag)
        after()

if OPT['diag']: I(f'v_writelane_b32 v{VDIAG}, s100, 62')
stamp(0)
stage_dma(0)
stamp(61)
I('s_barrier')
I(f"""v_mov_b32 v236, {L_FULL}
s_lshl_b32 s{t}, s{sH}, 2
v_add_u32 v238, s{t}, v236""")
vSD = 32
I(f'v_mov_b32 v18, 0\nglobal_load_dwordx2 v[16:17], v18, s[20:21] sc1', 'NC')
I(f"""s_lshr_b32 s{t}, s{sH}, 1
s_mul_i32 s{t}, s{t}, 12320
s_and_b32 s{t+1}, s{sH}, 1
s_lshl_b32 s{t+1}, s{t+1}, 7
s_add_u32 s{t}, s{t}, s{t+1}
s_add_u32 s{t}, s{t}, 24576
s_lshl_b32 s{t+1}, s{sH}, 13
s_add_u32 s{t+1}, s{t+1}, 26624
s_cmp_eq_u32 s{sISQ}, 1
s_cselect_b32 s{t}, s{t+1}, s{t}
s_movk_i32 s{t+1}, 192
s_cmov_b32 s{t+1}, 128
s_cselect_b32 s{t+2}, 2, 0
s_cselect_b32 s{t+3}, 64, 0
v_and_b32 v64, s{t+2}, v{vT}
v_xor_b32 v64, v64, v{vT+1}
v_lshlrev_b32 v64, 4, v64
v_mad_u32_u24 v64, v{vT}, s{t+1}, v64
v_add_u32 v64, s{t}, v64
v_xor_b32 v65, s{t+3}, v64
s_lshl_b32 s{t+1}, s{t+1}, 3
v_add_u32 v65, s{t+1}, v65
s_lshl_b32 s{t+5}, s{t+1}, 1""")
sSL2 = t + 5
I(f's_mov_b32 s{sSTR}, s{sSL2}')
mk_srd(SWS, 22, WS_REC); mk_srd(SAF, 22, AF_BYTES)

def nonce_get():
    k.wait_vm('NC')
    L = newlbl('np'); D = newlbl('npd'); R = newlbl('npr')
    I(f's_mov_b32 s{t+4}, 0')
    k.label(L)
    I(f"""v_readfirstlane_b32 s{sN}, v16
v_readfirstlane_b32 s{sN+1}, v17
s_add_u32 s{t+4}, s{t+4}, 1
s_add_u32 s{t}, s{sN}, 800
s_addc_u32 s{t+1}, s{sN+1}, 0
s_sub_u32 s{t}, s{t}, s{sT0}
s_subb_u32 s{t+1}, s{t+1}, s{sT0+1}
s_cmp_eq_u32 s{t+1}, 0
s_cbranch_scc1 {D}
s_memrealtime s[{t}:{t+1}]
s_cmp_eq_u64 s[{sN}:{sN+1}], 0
s_waitcnt lgkmcnt(0)
s_cbranch_scc1 {R}
s_sub_u32 s{t}, s{t}, s{sT0}
s_cmp_gt_u32 s{t}, 3000
s_cbranch_scc1 {D}""")
    k.label(R)
    sv = k.snap()
    I(f"""s_sleep 8
global_load_dwordx2 v[16:17], v18, s[20:21] sc1
s_waitcnt vmcnt(0)
s_cmp_lt_u32 s{t+4}, 0x20000
s_cbranch_scc1 {L}""")
    k.restore(sv)
    k.label(D)

def tab8(vals, dst, idx8):
    lo = sum(v << (8*i) for i, v in enumerate(vals[:4])); hi = sum(v << (8*i) for i, v in enumerate(vals[4:]))
    I(f"""s_mov_b32 s{t}, {lo}
s_mov_b32 s{t+1}, {hi}
s_lshr_b64 s[{t}:{t+1}], s[{t}:{t+1}], s{idx8}
s_and_b32 s{dst}, s{t}, 0xff""")
KBASE = [0, 16, 32, 47, 62, 76, 90, 104]
NSTEP = [16, 16, 15, 15, 14, 14, 14, 14]
PC0 = [15, 19, 0, 2, 5, 7, 9, 12]
PCN = [3, 3, 2, 2, 2, 2, 2, 2]
SWC = SSL
sBROWC, sNVC = 100, 101
def p2_params(helper):
    I(f's_lshl_b32 s{t+2}, s{sWAVE}, 3')
    tab8(KBASE, sABASE, t+2); tab8(NSTEP, sNV, t+2)
    if helper:
        I(f"""s_lshl_b32 s{t+3}, s{sCB2}, 7
s_add_u32 s{t+3}, s{t+3}, {W_PK >> 11}
s_add_u32 s{sBROW}, s{sABASE}, s{t+3}
s_lshl_b32 s{t+2}, s{sH}, 3""")
        tab8(KBASE, sBROWC, t+2); tab8(NSTEP, sNVC, t+2)
        I(f's_add_u32 s{sBROWC}, s{sBROWC}, s{t+3}')
    I(f"""s_lshl_b32 s{sLB2}, s{sH}, 11
s_mul_i32 s{sROT}, s{sCB2}, {OPT['rot']}
s_mul_i32 s{t}, s{sRB2}, {OPT['rotb']}
s_add_u32 s{sROT}, s{sROT}, s{t}
s_mul_i32 s{t}, s{sRB2}, {2*118}
s_add_u32 s{sABASE}, s{sABASE}, s{t}""")

ACC, PK, VA1, VA2, VL16, VXR = 0, 64, 240, 243, 246, 250
HPK = 148
def p2_addr():
    I(f"""v_lshlrev_b32 v{VL16}, 4, v{VLANE}
v_add_u32 v{VA1}, s{sLB2}, v{VL16}
v_add_u32 v{VA1+1}, 0x10000, v{VA1}
v_add_u32 v{VA1+2}, 0x20000, v{VA1}""")
def b2_setup():
    p2_params(True)
    p2_addr()
    I(f"""v_and_b32 v{vT+4}, 4, v{vT}
v_and_b32 v{vT+5}, 1, v{vT}
v_add_u32 v{vT+4}, v{vT+4}, v{vT+5}
v_bfe_u32 v{vT+5}, v{VLANE}, 2, 1
v_lshl_add_u32 v{vT+4}, v{vT+5}, 1, v{vT+4}
v_lshlrev_b32 v{vT+4}, 10, v{vT+4}
v_bfe_u32 v{vT+5}, v{vT}, 1, 1
v_lshl_add_u32 v{vT+4}, v{vT+5}, 6, v{vT+4}
v_and_b32 v{vT+5}, 3, v{VLANE}
v_lshl_add_u32 v{vB2}, v{vT+5}, 4, v{vT+4}""")

SIG_L = [13,14,15,16,17,18, 6,7,8,9, 3,4,5, 0,1,2]
PKR = [64 + 8*j for j in range(16)]
HAW = [192 + 8*j for j in range(5)]
def b2_off(step, own):
    I(f"""s_add_u32 s{t+2}, s{sROT}, {step}
s_and_b32 s{t+2}, s{t+2}, 15
s_add_u32 s{t}, s{sBROW if own else sBROWC}, s{t+2}
s_lshl_b32 s{t}, s{t}, 11
s_cmp_lt_u32 s{t+2}, s{sNV if own else sNVC}
s_cselect_b32 s{t}, s{t}, {OOB}""")
def b2_dma(step, own, tag):
    sig = SIG_L[step]
    b2_off(step, own)
    k.throttle(OPT['thrd'])
    I(f"""s_add_u32 m0, s{sLB2}, {sig*8192}
buffer_load_dwordx4 v{VL16}, {srd(SWS)}, s{t} offen sc1 lds
buffer_load_dwordx4 v{VL16}, {srd(SWS)}, s{t} offen offset:1024 sc1 lds""", tag)
def b2_raw(step, own, d, tag):
    b2_off(step, own)
    k.throttle(OPT['thrb'])
    I(f"""buffer_load_dwordx4 v[{d}:{d+3}], v{VL16}, {srd(SWS)}, s{t} offen sc1
buffer_load_dwordx4 v[{d+4}:{d+7}], v{VL16}, {srd(SWS)}, s{t} offen offset:1024 sc1""", tag)
L_RST = L_AOS + 208*16
def row_stats():
    vA = 212
    I(f's_mov_b32 s{t}, 0x3f803f80\ns_waitcnt vmcnt(0)')
    for d in range(4):
        for a in range(3):
            D = vRD + 4*a + d
            I(f'v_dot2_f32_bf16 v{vA+2*a}, v{D}, s{t}, ' + ('0' if d == 0 else f'v{vA+2*a}'))
            I(f'v_dot2_f32_bf16 v{vA+2*a+1}, v{D}, v{D}, ' + ('0' if d == 0 else f'v{vA+2*a+1}'))
    I('s_nop 2')
    for step in ('row_shr:1 row_mask:0xf bank_mask:0xf bound_ctrl:0', 'row_shr:2 row_mask:0xf bank_mask:0xf bound_ctrl:0',
                 'row_shr:4 row_mask:0xf bank_mask:0xf bound_ctrl:0', 'row_shr:8 row_mask:0xf bank_mask:0xf bound_ctrl:0',
                 'row_bcast:15 row_mask:0xa bank_mask:0xf', 'row_bcast:31 row_mask:0xc bank_mask:0xf'):
        for i in range(6): I(f'v_add_f32_dpp v{vA+i}, v{vA+i}, v{vA+i} {step}')
    I(f"""s_mul_i32 s{t}, s{sWAVE}, 24
s_add_u32 s{t}, s{t}, {L_RST}
v_mov_b32 v218, s{t}
s_mov_b32 exec_lo, 0
s_mov_b32 exec_hi, 0x80000000
s_mov_b32 s{t+1}, {f32(1/512)}
s_mov_b32 s{t+2}, {f32(1e-5)}""")
    for a in range(3):
        G = vA + 2*a
        I(f"""v_mul_f32 v{G}, s{t+1}, v{G}
v_mul_f32 v{G+1}, s{t+1}, v{G+1}
v_fma_f32 v{G+1}, -v{G}, v{G}, v{G+1}
v_max_f32 v{G+1}, 0, v{G+1}
v_add_f32 v{G+1}, s{t+2}, v{G+1}
ds_write_b64 v218, v[{G}:{G+1}] offset:{8*a}""")
    I('s_mov_b64 exec, -1')
def row_publish():
    I(f"""s_mul_i32 s{t}, s{sH}, 24
s_add_u32 s{t}, s{t}, {L_RST}
v_min_u32 v72, 2, v{VLANE}
v_lshl_add_u32 v73, v72, 3, s{t}
ds_read_b64 v[76:77], v73
s_mul_i32 s{t}, s{sRB}, 192
s_mul_i32 s{t+1}, s{sCOL}, 12
s_add_u32 s{t}, s{t}, s{t+1}
s_mul_i32 s{t+1}, s{sH}, 3
s_add_u32 s{t}, s{t}, s{t+1}
s_lshl_b32 s{t}, s{t}, 4
s_add_u32 s{t}, s{t}, {W_RS}
s_cmp_lt_u32 s{sCOL}, 16
s_cselect_b32 s{t}, s{t}, {OOB}
v_lshlrev_b32 v72, 4, v72
v_mov_b32 v78, s{sN}
v_mov_b32 v79, s{sN+1}
s_waitcnt lgkmcnt(0)
buffer_store_dwordx4 v[76:79], v72, {srd(SWS)}, s{t} offen sc1""", 'PUB')

def slab_reads():
    for a in range(8):
        I(f'ds_read_b128 v[{vSD+4*a}:{vSD+4*a+3}], v{64 + (a & 1)}')
        if a & 1 and a < 7: I(f'v_add_u32 v64, s{sSTR}, v64\nv_add_u32 v65, s{sSTR}, v65')
    I('s_waitcnt lgkmcnt(0)')

def col_stats():
    vA = 90
    for a in range(8):
        for d in range(4):
            D = vSD + 4*a + d
            if a == 0:
                I(f'v_lshlrev_b32 v{vA+2*d}, 16, v{D}\nv_and_b32 v{vA+2*d+1}, 0xffff0000, v{D}')
            else:
                I(f'v_lshlrev_b32 v72, 16, v{D}\nv_and_b32 v73, 0xffff0000, v{D}\nv_add_f32 v{vA+2*d}, v{vA+2*d}, v72\nv_add_f32 v{vA+2*d+1}, v{vA+2*d+1}, v73')
    for e in range(4): I(f'v_permlane32_swap_b32 v{vA+e}, v{vA+e+4}')
    for e in range(4): I(f'v_add_f32 v{vA+e}, v{vA+e}, v{vA+e+4}')
    for e in range(2): I(f'v_permlane16_swap_b32 v{vA+e}, v{vA+e+2}')
    for e in range(2): I(f'v_add_f32 v{vA+e}, v{vA+e}, v{vA+e+2}')
    for e in range(2): I(f'v_add_f32_dpp v{vA+8+e}, v{vA+e}, v{vA+e} row_ror:8 row_mask:0xf bank_mask:0xf')
def col_publish():
    vA = 90
    I(f"""v_mov_b32 v{vA+10}, s{sN}
v_mov_b32 v{vA+11}, s{sN+1}
v_lshrrev_b32 v72, 4, v{VLANE}
v_lshl_add_u32 v72, v{vT+1}, 2, v72
v_lshlrev_b32 v72, 4, v72
v_and_b32 v73, 8, v{VLANE}
v_cmp_eq_u32 vcc, 0, v73
v_mov_b32 v73, {OOB}
v_cndmask_b32 v72, v73, v72, vcc
s_lshl_b32 s{t}, s{sCOL}, 14
s_lshl_b32 s{t+1}, s{sS0}, 11
s_add_u32 s{t}, s{t}, s{t+1}
s_lshl_b32 s{t+1}, s{sH}, 9
s_add_u32 s{t}, s{t}, s{t+1}
s_add_u32 s{t}, s{t}, {W_CSP}
buffer_store_dwordx4 v[{vA+8}:{vA+11}], v72, {srd(SWS)}, s{t} offen sc1""", 'PUB')

vCL = 4*2+2
vCL = 20
sVAL = t + 8
def collect_setup():
    I(f"""s_lshl_b32 s{t}, s{sH}, 9
s_lshl_b32 s{t+1}, s{sCOL}, 14
s_add_u32 s{t}, s{t}, s{t+1}
s_add_u32 s{t}, s{t}, {W_CSP}
v_and_b32 v200, 31, v{VLANE}
v_lshlrev_b32 v200, 4, v200
v_lshrrev_b32 v201, 5, v{VLANE}
v_lshl_add_u32 v200, v201, 13, v200
v_add_u32 v200, s{t}, v200
s_lshl_b32 s{t}, s{sH}, 6
v_add_u32 v202, s{t}, v{VLANE}
s_mul_i32 s{t}, s{sRB}, 192
s_lshl_b32 s{t+1}, s{sISQ}, 4
s_sub_i32 s{t}, s{t}, s{t+1}
v_add_u32 v201, s{t}, v202
s_add_u32 s{t+1}, s{t+1}, 192
v_cmp_gt_u32 vcc, s{t+1}, v202
s_mov_b64 s[{t+2}:{t+3}], vcc
v_mov_b32 v203, 2048
v_cmp_gt_u32 vcc, v203, v201
s_and_b64 s[{sVAL}:{sVAL+1}], vcc, s[{t+2}:{t+3}]
v_lshlrev_b32 v201, 4, v201
v_add_u32 v201, {W_RS}, v201
v_mov_b32 v203, {OOB}
v_cndmask_b32 v201, v203, v201, s[{sVAL}:{sVAL+1}]
v_lshlrev_b32 v204, 4, v202
v_add_u32 v204, {L_AOS}, v204
v_mov_b32 v203, {L_SCR}
v_cndmask_b32 v204, v203, v204, s[{t+2}:{t+3}]
v_lshlrev_b32 v205, 2, v202
v_add_u32 v205, {L_SM}, v205
s_lshl_b32 s{t}, s{sH}, 8
s_add_u32 s{t}, s{t}, {L_CS}
v_and_b32 v203, 31, v{VLANE}
v_lshlrev_b32 v203, 3, v203
v_add_u32 v203, s{t}, v203
v_and_b32 v206, 15, v{VLANE}
v_mov_b32 v207, s{sBROW}
v_mov_b32 v208, s{sBROWC}
v_mov_b32 v209, s{sNV}
v_mov_b32 v210, s{sNVC}
v_cmp_gt_u32 vcc, 32, v{VLANE}
v_cndmask_b32 v207, v208, v207, vcc
v_cndmask_b32 v209, v210, v209, vcc
v_add_u32 v209, -1, v209
v_min_u32 v206, v206, v209
v_add_u32 v206, v206, v207
v_subrev_u32 v206, {W_PK >> 11}, v206
v_lshlrev_b32 v206, 4, v206
v_add_u32 v206, {W_PF}, v206""")
def collect_loads(tag):
    for p in range(4):
        if p < 2: I(f'buffer_load_dwordx4 v[{vCL+4*p}:{vCL+4*p+3}], v200, {srd(SWS)}, 0 offen offset:{p*2048} sc1', tag)
        else: I(f's_movk_i32 s{t}, {p*2048}\nbuffer_load_dwordx4 v[{vCL+4*p}:{vCL+4*p+3}], v200, {srd(SWS)}, s{t} offen sc1', tag)
    I(f'buffer_load_dwordx4 v[{vCL+16}:{vCL+19}], v201, {srd(SWS)}, 0 offen sc1', tag)
    I(f'buffer_load_dwordx2 v[{vCL+20}:{vCL+21}], v206, {srd(SWS)}, 0 offen sc1', tag)
def collect_check(ok):
    I(f"""v_cmp_eq_u64 vcc, s[{sN}:{sN+1}], v[{vCL+18}:{vCL+19}]
s_orn2_b64 s[{t+2}:{t+3}], vcc, s[{sVAL}:{sVAL+1}]
v_cmp_eq_u64 vcc, s[{sN}:{sN+1}], v[{vCL+20}:{vCL+21}]
s_and_b64 s[{t+2}:{t+3}], s[{t+2}:{t+3}], vcc""")
    for p in range(4):
        I(f"""v_cmp_eq_u64 vcc, s[{sN}:{sN+1}], v[{vCL+4*p+2}:{vCL+4*p+3}]
s_and_b64 s[{t+2}:{t+3}], s[{t+2}:{t+3}], vcc""")
    I(f's_cmp_eq_u64 s[{t+2}:{t+3}], -1\ns_cbranch_scc1 {ok}')
def collect_finish():
    k.wait_vm('CL')
    ok = newlbl('clok'); L = newlbl('clre')
    collect_check(ok)
    I(f's_mov_b32 s{t+4}, 0')
    k.label(L)
    sv = k.snap()
    I('s_sleep 4')
    collect_loads(None)
    I(f's_waitcnt vmcnt(0)\ns_add_u32 s{t+4}, s{t+4}, 1')
    collect_check(ok)
    I(f's_cmp_lt_u32 s{t+4}, 0x20000\ns_cbranch_scc1 {L}')
    k.restore(sv)
    k.label(ok)
    R = vCL + 16
    I(f"""v_add_f32 v{vCL}, v{vCL}, v{vCL+4}
v_add_f32 v{vCL+1}, v{vCL+1}, v{vCL+5}
v_add_f32 v{vCL+8}, v{vCL+8}, v{vCL+12}
v_add_f32 v{vCL+9}, v{vCL+9}, v{vCL+13}
v_add_f32 v{vCL}, v{vCL}, v{vCL+8}
v_add_f32 v{vCL+1}, v{vCL+1}, v{vCL+9}
v_cndmask_b32 v{R}, 0, v{R}, s[{sVAL}:{sVAL+1}]
v_cndmask_b32 v{R+2}, 1.0, v{R+1}, s[{sVAL}:{sVAL+1}]
v_mov_b32 v{vCL+2}, v{vCL}
v_mov_b32 v{vCL+3}, v{vCL+1}
v_rsq_f32 v{R+1}, v{R+2}
s_cmp_eq_u32 s{sISQ}, 1
s_mov_b32 s{t}, {f32(-LOG2E)}
s_cmov_b32 s{t}, {f32(0.25*LOG2E)}
v_permlane32_swap_b32 v{vCL}, v{vCL+2}
v_permlane32_swap_b32 v{vCL+1}, v{vCL+3}
v_mul_f32 v{R+3}, s{t}, v{R+1}
v_add_f32 v{vCL}, v{vCL}, v{vCL+2}
v_add_f32 v{vCL+1}, v{vCL+1}, v{vCL+3}
ds_write_b128 v204, v[{R}:{R+3}]
ds_write_b32 v205, v{R}
ds_write_b32 v205, v{R+1} offset:1024
ds_write_b64 v203, v[{vCL}:{vCL+1}]
ds_write_b64 v236, v[16:17] offset:{L_NONCE - L_FULL}
s_waitcnt lgkmcnt(0)""")

def b2_touch(part):
    if part == 0:
        mk_srd(SOUT, 16, 1376*1024)
        I(f"""s_lshl_b32 s{t}, s{sSLOTID}, 2
s_add_u32 s{t}, s{t}, s{sH}
s_mul_i32 s{t}, s{t}, 43*256
v_lshlrev_b32 v48, 7, v{VLANE}
v_add_u32 v48, s{t}, v48
v_cmp_gt_u32 vcc, 43, v{VLANE}
v_mov_b32 v50, {OOB}
v_cndmask_b32 v48, v50, v48, vcc
buffer_load_dword v51, v48, {srd(SOUT)}, 0 offen""", 'TB')
    elif part == 1:
        I(f"""s_movk_i32 s{t}, 43*128
buffer_load_dword v52, v48, {srd(SOUT)}, s{t} offen""", 'TB')
    else:
        I(f"""s_lshl_b32 s{t}, s{sSLOTID}, 2
s_add_u32 s{t}, s{t}, s{sH}
s_lshl_b32 s{t}, s{t}, 12
v_and_b32 v48, 31, v{VLANE}
v_lshlrev_b32 v48, 7, v48
v_add_u32 v48, s{t}, v48""")
        mk_srd(SOUT, 8, 512*1024)
        I(f'buffer_load_dword v53, v48, {srd(SOUT)}, 0 offen', 'TB')
def pack_load():
    I(f"""s_and_b32 s{t}, s2, 7
s_lshr_b32 s{t+1}, s{sSLOTID}, 1
s_lshl_b32 s{t+1}, s{t+1}, 3
s_add_u32 s{t}, s{t}, s{t+1}
s_and_b32 s{t+1}, s{sSLOTID}, 1
s_lshl_b32 s{t+1}, s{t+1}, 2
s_add_u32 s{t+1}, s{t+1}, s{sH}
s_lshl_b32 s{t+2}, s{t+1}, 7
s_add_u32 s{sPKI}, s{t+2}, s{t}
s_cmp_lt_u32 s{t}, 32
s_cselect_b32 s{SOUT}, s8, s16
s_cselect_b32 s{SOUT+1}, s9, s17
s_mov_b32 s{SOUT+2}, {1376*1024}
s_cmov_b32 s{SOUT+2}, {512*1024}
s_mov_b32 s{SOUT+3}, 0x20000
s_cselect_b32 s{t+3}, 0, 32
s_sub_u32 s{t}, s{t}, s{t+3}
s_lshl_b32 s{t}, s{t}, 14
s_add_u32 s{t}, s{t}, s{t+2}
s_add_u32 s{t+1}, s{t}, 8192
s_mov_b32 s{t+2}, {MISC - 2048}
s_cmp_ge_u32 s{sH}, 1
s_cmov_b32 s{t+2}, {MISC}
s_cmp_ge_u32 s{sH}, 2
s_cmov_b32 s{t+2}, {MISC + 4096}
s_cmp_ge_u32 s{sH}, 3
s_cmov_b32 s{t+2}, {MISC + 6144}
s_mov_b32 m0, s{t+2}
s_cmp_eq_u32 s{t+3}, 0
buffer_load_dwordx4 v{vB2}, {srd(SOUT)}, s{t} offen lds
s_add_u32 m0, s{t+2}, 1024
s_cmp_eq_u32 s{t+3}, 0
buffer_load_dwordx4 v{vB2}, {srd(SOUT)}, s{t+1} offen lds""", 'PKL')
    I(f"""s_cselect_b32 s{t}, 10, 9
s_movk_i32 s{t+1}, 1024
s_cmov_b32 s{t+1}, 512
v_lshrrev_b32 v112, 5, v{VLANE}
v_lshlrev_b32 v112, s{t}, v112
v_bfe_u32 v113, v{VLANE}, 2, 1
v_lshl_add_u32 v112, v113, 7, v112
v_bfe_u32 v113, v{VLANE}, 3, 1
v_lshl_add_u32 v112, v113, 6, v112
v_bfe_u32 v113, v{VLANE}, 4, 1
v_lshl_add_u32 v112, v113, 5, v112
v_and_b32 v113, 3, v{VLANE}
v_lshl_add_u32 v112, v113, 3, v112
v_add_u32 v112, s{t+2}, v112
v_add_u32 v113, s{t+1}, v112""")
def pack_store():
    k.wait_vm('PKL')
    for ct in range(2):
        I(f'ds_read_b64_tr_b16 v[{104+4*ct}:{105+4*ct}], v112 offset:{ct*256}\nds_read_b64_tr_b16 v[{106+4*ct}:{107+4*ct}], v113 offset:{ct*256}')
    I(f"""s_lshl_b32 s{t}, s{sPKI}, 11
s_add_u32 s{t}, s{t}, {W_PK}
s_waitcnt lgkmcnt(0)
buffer_store_dwordx4 v[104:107], v{vL16}, {srd(SWS)}, s{t} offen sc1
buffer_store_dwordx4 v[108:111], v{vL16}, {srd(SWS)}, s{t} offen offset:1024 sc1""", 'PKS')
def pack_flag():
    k.wait_vm('PKS')
    I(f"""s_lshl_b32 s{t}, s{sPKI}, 4
s_add_u32 s{t}, s{t}, {W_PF}
v_mov_b32 v104, s{sN}
v_mov_b32 v105, s{sN+1}
v_mov_b32 v106, 0
buffer_store_dwordx2 v[104:105], v106, {srd(SWS)}, s{t} offen sc1""", 'PUB')
def touch_at(i):
    if OPT['ps'] == i: pack_store()
    if OPT['pl'] == i: pack_load()
    if OPT['pf'] == i: pack_flag()
    for p in range(3):
        if OPT[f'tb{p}'] == i: b2_touch(p)

def landed(i):
    if not (OPT.get('fst') and i >= 3): stamp(9 + 2*i)
    k.wait_vm(f'D{i}'); signal_full(i + 1); stamp(10 + 2*i); touch_at(i)
SLS = t + 7
b2_setup(); collect_setup()
touch_at(0)
stage_dma(1, 1)
spin(L_FULL, 1); slab_reads()
stamp(1)
touch_at(1)
stage_dma(2, 2)
def advance(i, extra_full=False):
    L1 = newlbl('adv')
    I(f"""ds_read_b128 v[{VFL}:{VFL+3}], v236 offset:{L_FREE - L_FULL}
s_mov_b32 s{t+4}, 0
s_waitcnt lgkmcnt(0)
v_min_u32 v{VFL}, v{VFL}, v{VFL+1}
v_min3_u32 v{VFL}, v{VFL}, v{VFL+2}, v{VFL+3}
v_cmp_gt_u32 vcc, {i-2}, v{VFL}
s_nop 0
s_cbranch_vccz {L1}""")
    sv = k.snap()
    k.wait_vm(f'D{i-1}'); signal_full(i)
    spin(L_FREE, i - 2)
    k.restore(sv)
    k.label(L1)
    if extra_full: spin(L_FULL, 2)
    stage_dma(i, i)
    touch_at(i - 1)
col_stats(); nonce_get(); col_publish()
advance(3, True); row_publish()
advance(4)
advance(5)
if OPT['cl'] == 5: collect_loads('CL')
advance(6)
if OPT['cl'] == 6: collect_loads('CL')
if OPT['cl'] == 5:
    collect_finish()
    for j in range(OPT['nr6']): b2_raw(j, True, PKR[j], 'RP')
advance(7)
if OPT['cl'] == 6: collect_finish()
for j in range(OPT['nr6'] if OPT['cl'] == 5 else 0, OPT['nr0']): b2_raw(j, True, PKR[j], 'RP')
stamp(23); k.wait_vm('D7'); stamp(24)
signal_full(9)
for j in range(max(OPT['nr0'], OPT['nr6'] if OPT['cl'] == 5 else 0), OPT['nr7']): b2_raw(j, True, PKR[j], 'RP')
spin(L_FREE, 6); stamp(2)
for j in range(6): b2_dma(j, False, 'L')
for j in range(OPT['nr7'], OPT['nr8']): b2_raw(j, True, PKR[j], 'RP')
spin(L_FREE, 7)
for j in range(10, 16): b2_dma(j, False, 'L')
for j in range(OPT['nr8'], OPT['nr9']): b2_raw(j, True, PKR[j], 'RP')
spin(L_FREE, 9 if OPT['hold'] else 8); stamp(3)
for j in range(6, 10): b2_dma(j, False, 'L')
for j in range(OPT['nr9'], 16): b2_raw(j, True, PKR[j], 'RP')
I('s_waitcnt vmcnt(0)')
signal_full(10)
k.vm_reset()
stamp(4)

k.label('L_P2')
k.c('---- phase 2 setup')
VOO, VP = 248, 232
I(f's_lshl_b32 s{t+5}, s{sWAVE}, 3')
tab8(PC0, t+6, t+5); tab8(PCN, t+7, t+5)
I(f"""s_mul_i32 s{t}, s{sRB2}, 86
s_lshr_b32 s{t}, s{t}, 8
s_mul_i32 s{t}, s{t}, 23
s_add_u32 s{t}, s{t}, s{t+6}
v_lshrrev_b32 v1, 2, v{VLANE}
v_min_u32 v1, s{t+7}, v1
v_add_u32 v1, s{t}, v1
v_lshlrev_b32 v1, 7, v1
v_and_b32 v2, 3, v{VLANE}
v_lshl_add_u32 v1, v2, 4, v1
v_add_u32 v{VP}, {W_FL}, v1
s_lshr_b32 s{t}, s{sWAVE}, 2
s_lshl_b32 s{t}, s{t}, 5
s_lshl_b32 s{t+1}, s{sRB2}, 6
s_add_u32 s{t}, s{t}, s{t+1}
v_and_b32 v1, 31, v{VLANE}
v_add_u32 v1, s{t}, v1
v_lshlrev_b32 v1, 10, v1
v_lshrrev_b32 v2, 5, v{VLANE}
v_lshl_add_u32 v1, v2, 4, v1
s_lshl_b32 s{t}, s{sCB2}, 7
s_lshl_b32 s{t+1}, s{sH}, 5
s_add_u32 s{t}, s{t}, s{t+1}
v_add_u32 v{VOO}, s{t}, v1
v_add_u32 v{VOO+1}, {118*1024}, v{VL16}
s_mov_b32 s{t+4}, 0""")
stamp(5)
if OPT['pmask']: I('s_mov_b64 exec, 0xffff')
k.label('L_POLL')
I(f"""buffer_load_dwordx2 v[{VP+2}:{VP+3}], v{VP}, {srd(SWS)}, 0 offen sc1
s_add_u32 s{t+4}, s{t+4}, 1
s_waitcnt vmcnt(0)
v_cmp_eq_u64 vcc, s[{sN}:{sN+1}], v[{VP+2}:{VP+3}]
s_cmp_eq_u64 vcc, exec
s_cbranch_scc1 L_POLLED
s_sleep {OPT['psleep']}
s_cmp_lt_u32 s{t+4}, 0x20000
s_cbranch_scc1 L_POLL""")
k.label('L_POLLED')
I('s_mov_b64 exec, -1')
if OPT['pbar']: I('s_barrier')
k.vm_reset()
stamp(6)
def a_load(i, AW):
    d = AW[i % len(AW)]
    I(f"""s_add_u32 s{t+2}, s{sROT}, {i}
s_and_b32 s{t+2}, s{t+2}, 15
s_add_u32 s{t}, s{sABASE}, s{t+2}
s_lshl_b32 s{t}, s{t}, 10
s_cmp_lt_u32 s{t+2}, s{sNV}
s_cselect_b32 s{t}, s{t}, {OOB}
buffer_load_dwordx4 v[{d}:{d+3}], v{VL16}, {srd(SAF)}, s{t} offen{OPT_ALD}
buffer_load_dwordx4 v[{d+4}:{d+7}], v{VOO+1}, {srd(SAF)}, s{t} offen{OPT_ALD}""", f'A{i}')
def frag_reads(i, d):
    off = SIG_L[i] * 8192; r = off >> 16; off &= 0xffff
    I(f'ds_read_b128 v[{d}:{d+3}], v{VA1+r} offset:{off}\nds_read_b128 v[{d+4}:{d+7}], v{VA1+r} offset:{off+1024}')
def p2_stream(helper):
    AW = HAW[:OPT['naw']] if helper else [96 + 8*j for j in range(OPT['nawc'])]
    nw = len(AW)
    BD = 64
    for i in range(nw): a_load(i, AW)
    if not helper:
        L = newlbl('pw'); D = newlbl('pwd')
        I(f's_lshl_b32 s{t}, s{sH}, 2\ns_add_u32 s{t}, s{t}, {L_FULL}\nv_mov_b32 v238, s{t}\ns_mov_b32 s{t+4}, 0')
        k.label(L)
        I(f"""ds_read_b32 v239, v238
s_add_u32 s{t+4}, s{t+4}, 1
s_waitcnt lgkmcnt(0)
v_cmp_gt_u32 vcc, 10, v239
s_cmp_lt_u32 s{t+4}, 0x400000
s_cbranch_vccz {D}
s_cbranch_scc1 {L}""")
        k.label(D)
        frag_reads(0, BD); frag_reads(1, BD + 8)
    stamp(25)
    for i in range(16):
        if not helper and i + 2 < 16: frag_reads(i + 2, BD + 8*((i + 2) % 3))
        b = PKR[i] if helper else BD + 8*(i % 3)
        a = AW[i % nw]
        k.wait_vm(f'A{i}', None if helper else 2*min(2, 15 - i))
        if i == 12 and OPT['midbar']: I('s_barrier')
        for mt in range(2):
            for ct in range(2):
                r = ACC + 32*mt + 16*ct
                I(f'v_mfma_f32_32x32x16_bf16 v[{r}:{r+15}], v[{b+4*ct}:{b+4*ct+3}], v[{a+4*mt}:{a+4*mt+3}], ' + ('0' if i == 0 else f'v[{r}:{r+15}]'))
        if i + nw < 16: a_load(i + nw, AW)
        if i + nw == 16 or (nw == 16 and i == 0): I(f'buffer_load_dwordx4 v[{VXR}:{VXR+3}], v{VOO}, {srd(SX)}, 0 offen', 'XR')
        if i in (0, 3, 7, 11): stamp(26 + (i + 1)//4)
I(f's_cmp_lt_u32 s{sWAVE}, 4\ns_cbranch_scc1 L_P2C')
p2_stream(True)
I('s_branch L_P2E')
k.label('L_P2C')
k.vm_reset(); k.pv = []; k.pl = []
p2_stream(False)
k.label('L_P2E')
stamp(7)
k.c('---- reduction + final epilogue')
mk_srd(SOUT, 18, 2048*1024)
I(f"""s_lshl_b32 s{t}, s{sWAVE}, 11
s_add_u32 s{t}, s{t}, 24576
v_add_u32 v64, s{t}, v{VL16}
v_add_u32 v65, 0x10000, v64
s_lshl_b32 s{t}, s{sWAVE}, 14
s_add_u32 s{t}, s{t}, 24576
v_add_u32 v66, s{t}, v{VL16}""")
if not OPT['midbar']: I('s_barrier')
for d in range(8):
    for hf in range(2):
        I(f'ds_write_b128 v{64 + (d >> 2)}, v[{8*d+4*hf}:{8*d+4*hf+3}] offset:{(d & 3)*16384 + hf*1024}')
I('s_waitcnt lgkmcnt(0)\ns_barrier')
stamp(31)
R = 72
order = [2, 3, 4, 5, 6, 7, 0, 1]
for s_ in order:
    for hf in range(2): I(f'ds_read_b128 v[{R+8*s_+4*hf}:{R+8*s_+4*hf+3}], v66 offset:{s_*2048 + hf*1024}')
I(f's_mov_b32 s{t}, {f32(-LOG2E)}\ns_mov_b32 s{t+1}, {f32(-LOG2E)}\ns_mov_b32 s{t+2}, 1.0\ns_mov_b32 s{t+3}, 1.0\ns_waitcnt vmcnt(0)')
X = 140
I(f'v_permlane32_swap_b32 v{VXR}, v{VXR+2}\nv_permlane32_swap_b32 v{VXR+1}, v{VXR+3}')
for d in range(4): I(f'v_lshlrev_b32 v{X+2*d}, 16, v{VXR+d}\nv_and_b32 v{X+2*d+1}, 0xffff0000, v{VXR+d}')
F, E, S0 = R + 16, 148, R
PR = lambda r, p: f'v[{r+2*p}:{r+2*p+1}]'
for n_, s_ in enumerate(order[1:6]):
    I(f's_waitcnt lgkmcnt({12 - 2*n_})')
    for p in range(4): I(f'v_pk_add_f32 {PR(F,p)}, {PR(F,p)}, {PR(R+8*s_,p)}')
for p in range(4): I(f'v_pk_mul_f32 {PR(E,p)}, {PR(F,p)}, s[{t}:{t+1}]')
I('s_waitcnt lgkmcnt(0)')
for p in range(4): I(f'v_exp_f32 v{E+2*p}, v{E+2*p}\nv_exp_f32 v{E+2*p+1}, v{E+2*p+1}\nv_pk_add_f32 {PR(S0,p)}, {PR(S0,p)}, {PR(R+8,p)}')
for p in range(4): I(f'v_pk_add_f32 {PR(E,p)}, {PR(E,p)}, s[{t+2}:{t+3}]')
for p in range(4): I(f'v_rcp_f32 v{E+2*p}, v{E+2*p}\nv_rcp_f32 v{E+2*p+1}, v{E+2*p+1}\nv_pk_mul_f32 {PR(F,p)}, {PR(F,p)}, {PR(S0,p)}')
for p in range(4): I(f'v_pk_fma_f32 {PR(F,p)}, {PR(F,p)}, {PR(E,p)}, {PR(X,p)}')
for p in range(4): I(f'v_cvt_pk_bf16_f32 v{E+8+p}, v{F+2*p}, v{F+2*p+1}')
I(f'v_permlane32_swap_b32 v{E+8}, v{E+10}\nv_permlane32_swap_b32 v{E+9}, v{E+11}')
I(f'buffer_store_dwordx4 v[{E+8}:{E+11}], v{VOO}, {srd(SOUT)}, 0 offen{OPT_OUTST}')
if OPT['diag']:
    I('s_waitcnt vmcnt(0)')
    stamp(8)
    I(f"""s_lshl_b32 s{t}, s2, 3
s_add_u32 s{t}, s{t}, s{sWAVE}
s_lshl_b32 s{t}, s{t}, 8
s_add_u32 s{t}, s{t}, {W_DIAG}
v_lshlrev_b32 v1, 2, v{VLANE}
buffer_store_dword v{VDIAG}, v1, {srd(SWS)}, s{t} offen""")
    if OPT['diag'] == 2:
        I(f"""s_cmp_lg_u32 s2, {OPT.get('dw', 0)}
s_cbranch_scc1 L_END
s_and_b32 s{t}, s{sWAVE}, 3
s_cmp_lg_u32 s{t}, 0
s_cbranch_scc1 L_END
s_cmp_eq_u32 s{sWAVE}, 0
s_cselect_b32 s{t}, 8, 44
s_cselect_b32 s{t+1}, 9, 5
v_add_u32 v1, s{t}, v1
v_cmp_gt_u32 vcc, s{t+1}, v{VLANE}
s_and_saveexec_b64 s[{t+2}:{t+3}], vcc
global_store_dword v1, v{VDIAG}, s[20:21]""")
if OPT.get('padto'):
    k.label('L_PAD')
    I(f"""s_memrealtime s[{t}:{t+1}]
s_waitcnt lgkmcnt(0)
s_sub_u32 s{t}, s{t}, s98
s_cmp_lt_u32 s{t}, {OPT['padto']}
s_cbranch_scc1 L_PAD""")
k.label('L_END')
I('s_endpgm')

k.label('L_C')
k.fresh()
I('s_waitcnt lgkmcnt(0)')
if OPT['diag']: I(f'v_writelane_b32 v{VDIAG}, s100, 62')
stamp(0)
if OPT['sct']:
    I(f"""s_lshl_b32 s{t}, s2, 2
s_add_u32 s{t}, s{t}, s{sWAVE}
s_mul_i32 s{t+1}, s{t}, 1376
s_and_b32 s{t+1}, s{t+1}, -64
s_add_u32 s{t+2}, s16, s{t+1}
s_addc_u32 s{t+3}, s17, 0
s_lshl_b32 s{t+1}, s{t}, 9
s_add_u32 s{t+4}, s8, s{t+1}
s_addc_u32 s{t+5}, s9, 0""")
    for i in range(22): I(f's_load_dword s{t+6}, s[{t+2}:{t+3}], {64*i}')
    for i in range(8): I(f's_load_dword s{t+6}, s[{t+4}:{t+5}], {64*i}')
mk_srd(SWS, 22, WS_REC); mk_srd(SAF, 22, AF_BYTES)
p2_params(False)
for r in range(152): I(f'v_mov_b32 v{r}, 0')
row_stats()
VCF, VFU, VFR, VTM = 248, 246, 245, 247
I(f"""v_mov_b32 v{VFU}, {L_FULL}
s_lshl_b32 s{t}, s{sWAVE}, 2
v_add_u32 v{VFR}, s{t}, v{VFU}
s_cmp_eq_u32 s{sISQ}, 1
s_cbranch_scc1 L_CQ""")
sNEED = t + 11
def c_flag_read(): I(f'ds_read_b128 v[{VCF}:{VCF+3}], v{VFU}')
def c_check(spinl):
    I(f"""v_min_u32 v{VCF}, v{VCF}, v{VCF+1}
v_min3_u32 v{VCF}, v{VCF}, v{VCF+2}, v{VCF+3}
v_cmp_gt_u32 vcc, s{sNEED}, v{VCF}""")
def c_spin_block(spinl, back):
    k.label(spinl)
    I(f's_mov_b32 s{t+4}, 0')
    k.label(spinl + '_l')
    c_flag_read()
    I(f's_add_u32 s{t+4}, s{t+4}, 1\ns_waitcnt lgkmcnt(0)')
    c_check(None)
    if OPT['diag']: I(f's_add_u32 m0, s{sNEED}, 8\ns_nop 0\nv_writelane_b32 v{VDIAG}, s{t+4}, m0')
    I(f's_cmp_lt_u32 s{t+4}, 0x400000\ns_cbranch_vccz {back}\ns_cbranch_scc1 {spinl}_l\ns_branch {back}')

def publish_flag():
    stamp(30)
    I(f"""s_mul_i32 s{t}, s{sRB}, 23
s_add_u32 s{t}, s{t}, s{sCOL}
s_lshl_b32 s{t}, s{t}, 7
s_lshl_b32 s{t+1}, s{sWAVE}, 4
s_add_u32 s{t}, s{t}, s{t+1}
s_add_u32 s{t}, s{t}, {W_FL}
v_mov_b32 v250, {OOB}
v_cmp_eq_u32 vcc, 0, v{VLANE}
v_cndmask_b32 v250, v250, 0, vcc
v_mov_b32 v251, {L_NONCE}
ds_read_b64 v[252:253], v251
s_waitcnt vmcnt(0) lgkmcnt(0)
v_readfirstlane_b32 s{sN}, v252
v_readfirstlane_b32 s{sN+1}, v253
buffer_store_dwordx2 v[252:253], v250, {srd(SWS)}, s{t} offen sc1""")
    if OPT['hold']:
        I(f"""s_lshl_b32 s{t}, s{sWAVE}, 2
s_add_u32 s{t}, s{t}, {L_FREE}
v_mov_b32 v250, s{t}
v_mov_b32 v251, 9
ds_write_b32 v250, v251""")
    stamp(4)
    p2_addr()
    I('s_branch L_P2')

sSL, sIT = t + 12, t + 13
sDL = t + 10
def next_slot():
    I(f"""s_add_u32 s{sSL}, s{sSL}, 1
s_mov_b32 s{sDL}, {SLOT}
s_cmp_eq_u32 s{sSL}, 3
s_cmov_b32 s{sDL}, {-2*SLOT}
s_cmov_b32 s{sSL}, 0""")
lg = []
def lg_wait(tags):
    idx = max((i for i, x in enumerate(lg) if x in tags), default=None)
    if idx is None: return
    n = min(15, len(lg) - 1 - idx)
    I(f's_waitcnt lgkmcnt({n})')
    del lg[:len(lg) - n]

k.c('---- C FFN')
XF, WF, XA, WA = 144, 192, 240, 244
I(f"""s_lshr_b32 s{t}, s{sWAVE}, 1
s_and_b32 s{t+1}, s{sWAVE}, 1
s_mul_i32 s{t+2}, s{t}, {96*128}
v_and_b32 v150, 31, v{VLANE}
v_bfe_u32 v151, v{VLANE}, 1, 3
v_lshrrev_b32 v152, 5, v{VLANE}
v_xor_b32 v151, v151, v152
v_lshlrev_b32 v150, 7, v150
v_add_u32 v150, s{t+2}, v150""")
for j in range(4):
    I(f'v_xor_b32 v153, {2*j}, v151\nv_lshl_add_u32 v{XA+j}, v153, 4, v150')
I(f"""v_bfe_u32 v150, v{VLANE}, 2, 2
v_lshl_add_u32 v150, v152, 3, v150
v_mul_u32_u24 v150, 192, v150
v_bfe_u32 v151, v{VLANE}, 4, 1
v_mul_u32_u24 v151, 12320, v151
v_add_u32 v150, v150, v151
v_and_b32 v151, 3, v{VLANE}
v_lshl_add_u32 v150, v151, 3, v150
s_mul_i32 s{t+2}, s{t+1}, 96
s_add_u32 s{t+2}, s{t+2}, 24576
v_add_u32 v{WA}, s{t+2}, v150""")
I(f's_mov_b32 s{sSL}, 0')
def ffn_reads(u):
    out = []
    def xr(a):
        d = XF + 12*u + 4*a
        return (f'ds_read_b128 v[{d}:{d+3}], v{XA+u} offset:{a*4096}', ('x', a, u))
    def wr(b, s_):
        d = WF + 12*u + 4*b
        return (f'ds_read_b64_tr_b16 v[{d+2*s_}:{d+2*s_+1}], v{WA} offset:{(16*u+4*s_)*192 + b*32}', ('w', b, s_, u))
    return [xr(0), wr(0,0), wr(0,1), wr(1,0), wr(1,1), wr(2,0), wr(2,1), xr(1), xr(2)]
def rd(x): I(x[0]); lg.append(x[1])
stamp(1)
I(f's_waitcnt vmcnt(0)\ns_mov_b32 s{sNEED}, 1\ns_branch L_FSP0')
c_spin_block('L_FSP', 'L_FBK')
c_spin_block('L_FSP0', 'L_FGO')
k.label('L_FGO')
stamp(2)
lg.clear()
for x in ffn_reads(0): rd(x)
I(f'ds_read_b32 v{VTM}, v{VFU}'); lg.append('free')
for x in ffn_reads(1): rd(x)
entry = list(lg)
k.label('L_FLOOP')
m0_ = k.mark()
for u in range(4):
    q = ffn_reads((u + 2) & 3)
    n = 0
    for a in range(3):
        for b in range(3):
            lg_wait([('x', a, u), ('w', b, 0, u), ('w', b, 1, u)] + (['flag'] if (u, n) == (1, 7) else []))
            if (u, n) == (1, 7):
                I(f's_add_u32 s{sNEED}, s{sNEED}, 1'); c_check(None); next_slot()
            ac = (a*3 + b) * 16; x = XF + 12*u + 4*a; w = WF + 12*u + 4*b
            I(f'v_mfma_f32_32x32x16_bf16 v[{ac}:{ac+15}], v[{w}:{w+3}], v[{x}:{x+3}], v[{ac}:{ac+15}]')
            if (u, n) == (2, 0):
                for j in range(4): I(f'v_add_u32 v{XA+j}, s{sDL}, v{XA+j}')
                I(f'v_add_u32 v{WA}, s{sDL}, v{WA}\ns_cbranch_vccnz L_FSP')
                k.label('L_FBK')
            if (u, n) == (3, 0):
                lg_wait([('x', 2, 3)])
                I(f'v_add_u32 v{VTM}, -1, s{sNEED}'.replace('v_add_u32', 'v_add_u32_e64') + f'\nds_write_b32 v{VFR}, v{VTM} offset:16'); lg.append('free')
            rd(q.pop(0))
            if (u, n) == (1, 0): c_flag_read(); lg.append('flag')
            n += 1
    assert not q
assert lg == entry[len(entry)-len(lg):], (lg, entry)
I(f's_cmp_lt_u32 s{sNEED}, 9\ns_cbranch_scc1 L_FLOOP')
k.check_backedge(m0_)
stamp(3)
k.c('---- FFN epilogue')
ST, CSB, EE, OUTR = 144, 156, 188, 196
VA_ = 204
I(f"""s_waitcnt lgkmcnt(0)
s_lshr_b32 s{t}, s{sWAVE}, 1
s_and_b32 s{t+1}, s{sWAVE}, 1
s_mul_i32 s{t+2}, s{t}, {96*16}
s_add_u32 s{t+2}, s{t+2}, {L_AOS}
v_and_b32 v{VA_}, 31, v{VLANE}
v_lshlrev_b32 v{VA_}, 4, v{VA_}
v_add_u32 v{VA_}, s{t+2}, v{VA_}
s_mul_i32 s{t+2}, s{t+1}, {48*4}
s_add_u32 s{t+2}, s{t+2}, {L_CS}
v_lshrrev_b32 v{VA_+1}, 5, v{VLANE}
v_lshlrev_b32 v{VA_+1}, 4, v{VA_+1}
v_add_u32 v{VA_+1}, s{t+2}, v{VA_+1}
v_lshlrev_b32 v{VA_+2}, 4, v{VLANE}""")
for a in range(3): I(f'ds_read_b128 v[{ST+4*a}:{ST+4*a+3}], v{VA_} offset:{a*512}')
def cs_reads(b):
    d = CSB + 16*(b & 1)
    for m in range(2):
        for i2 in range(2):
            I(f'ds_read_b128 v[{d+8*m+4*i2}:{d+8*m+4*i2+3}], v{VA_+1} offset:{m*512 + b*64 + i2*32}')
cs_reads(0)
I(f"""s_mul_i32 s{t+4}, s{sRB}, 6
s_mul_i32 s{t+2}, s{t}, 3
s_add_u32 s{t+4}, s{t+4}, s{t+2}
s_mul_i32 s{t+4}, s{t+4}, 118
s_mul_i32 s{t+5}, s{sCOL}, 6
s_mul_i32 s{t+2}, s{t+1}, 3
s_add_u32 s{t+5}, s{t+5}, s{t+2}
s_add_u32 s{t+4}, s{t+4}, s{t+5}
s_add_u32 s{t+4}, s{t+4}, 32
s_lshl_b32 s{t+4}, s{t+4}, 10""")
tile = 0
pend = []
for b in range(3):
    if b < 2: cs_reads(b + 1)
    I(f's_waitcnt lgkmcnt({4 if b < 2 else 0})')
    cg_ = CSB + 16*(b & 1); cu_ = cg_ + 8
    (pend.append if OPT['defer'] else I)(f's_add_u32 s{t+6}, s{t+5}, {b}\ns_add_u32 s{t+7}, s{t+4}, {b*1024}\ns_cmp_lt_u32 s{t+6}, 86\ns_cselect_b32 s{t+7}, s{t+7}, {OOB}')
    for a in range(3):
        G = (a*3 + b) * 16; U = G + 8; s0 = ST + 4*a; o = G if OPT['defer'] else OUTR + 4*(tile & 1)
        P = lambda r, p: f'v[{r+2*p}:{r+2*p+1}]'
        for p in range(4): I(f'v_pk_fma_f32 {P(G,p)}, {P(cg_,p)}, v[{s0}:{s0+1}], {P(G,p)} op_sel_hi:[1,0,1] neg_lo:[0,1,0] neg_hi:[0,1,0]')
        for p in range(4): I(f'v_pk_mul_f32 {P(EE,p)}, {P(G,p)}, v[{s0+2}:{s0+3}] op_sel:[0,1] op_sel_hi:[1,1]')
        for p in range(4): I(f'v_pk_fma_f32 {P(U,p)}, {P(cu_,p)}, v[{s0}:{s0+1}], {P(U,p)} op_sel_hi:[1,0,1] neg_lo:[0,1,0] neg_hi:[0,1,0]')
        for e in range(8): I(f'v_exp_f32 v{EE+e}, v{EE+e}')
        for p in range(4): I(f'v_pk_mul_f32 {P(U,p)}, {P(U,p)}, {P(G,p)}')
        for p in range(4): I(f'v_pk_fma_f32 {P(EE,p)}, {P(EE,p)}, v[{s0+2}:{s0+3}], v[{s0+2}:{s0+3}] op_sel_hi:[1,0,0]')
        for e in range(8): I(f'v_rcp_f32 v{EE+e}, v{EE+e}')
        for p in range(4): I(f'v_pk_mul_f32 {P(U,p)}, {P(U,p)}, {P(EE,p)}')
        for p in range(4): I(f'v_cvt_pk_bf16_f32 v{o+p}, v{U+2*p}, v{U+2*p+1}')
        st_ = f'buffer_store_dwordx4 v[{o}:{o+3}], v{VA_+2}, {srd(SAF)}, s{t+7} offen{OPT_HST}' + (f'\ns_add_u32 s{t+7}, s{t+7}, {118*1024}' if a < 2 else '')
        (pend.append if OPT['defer'] else I)(st_)
        tile += 1
for x in pend: I(x)
publish_flag()

k.label('L_CQ')
k.fresh()
k.c('---- C QKV')
QA, KA, VA = 0, 48, 100
XS, XD, WQ = 152, 192, 216
XA, WA = 240, 244
I(f"""v_and_b32 v160, 15, v{VLANE}
v_bfe_u32 v161, v{VLANE}, 1, 3
v_lshrrev_b32 v162, 4, v{VLANE}
v_xor_b32 v161, v161, v162
v_lshlrev_b32 v163, 7, v160
v_lshl_add_u32 v{XA}, v161, 4, v163
v_xor_b32 v{XA+1}, 64, v{XA}
v_bfe_u32 v163, v{VLANE}, 2, 2
v_lshl_add_u32 v163, v162, 3, v163
v_lshlrev_b32 v163, 7, v163
v_bfe_u32 v164, v{VLANE}, 3, 1
v_and_b32 v165, 1, v162
v_lshl_or_b32 v164, v165, 1, v164
v_xor_b32 v164, s{sWAVE}, v164
v_lshl_add_u32 v163, v164, 5, v163
v_and_b32 v164, 3, v{VLANE}
v_lshl_add_u32 v163, v164, 3, v163
v_add_u32 v{WA}, 26624, v163""")
I(f's_mov_b32 s{sSL}, 0')
def xreg(tau, j): return XS + 4*tau if tau < 10 else XD + 12*(j & 1) + 4*(tau - 10)
def rd_x(tau, j):
    d = xreg(tau, j); I(f'ds_read_b128 v[{d}:{d+3}], v{XA+j} offset:{tau*2048}'); lg.append(('x', tau, j))
def rd_w(m, s_, j):
    d = WQ + 12*j + 4*m + 2*s_; I(f'ds_read_b64_tr_b16 v[{d}:{d+1}], v{WA} offset:{m*8192 + (32*j+4*s_)*128}'); lg.append(('w', m, s_, j))
def sched(tau):
    ex = [('w',1,0),('w',1,1),('w',2,0),('w',2,1),('w',0,0),('w',0,1),('x',10),('x',11),('x',12)]
    r = [[], [], []]
    if 1 <= tau <= 10: r[1].append(('x', tau - 1))
    if 1 <= tau <= 9: r[2].append(ex[tau - 1])
    return r
def do_reads(lst, j):
    for x in lst:
        if x[0] == 'x': rd_x(x[1], j)
        else: rd_w(x[1], x[2], j)
stamp(1)
I(f's_waitcnt vmcnt(0)\ns_mov_b32 s{sNEED}, 1\ns_branch L_QSP0')
c_spin_block('L_QSP', 'L_QBK')
c_spin_block('L_QSP0', 'L_QGO')
k.label('L_QGO')
stamp(2)
lg.clear()
for tau in range(13):
    for r in sched(tau): do_reads(r, 0)
    if tau == 2: I(f'ds_read_b32 v{VTM}, v{VFU}'); lg.append('free')
entry = list(lg)
k.label('L_QLOOP')
m0_ = k.mark()
for j in range(2):
    for tau in range(13):
        lg_wait([('x', tau, j)] + ([('w',1,0,j),('w',1,1,j),('w',2,0,j),('w',2,1,j)] if tau == 0 else []) + ([('w',0,0,j),('w',0,1,j)] if tau == 1 else [])
                + (['flag'] if (j, tau) == (0, 12) else []))
        if (j, tau) == (0, 12):
            I(f's_add_u32 s{sNEED}, s{sNEED}, 1'); c_check(None); next_slot()
        x = xreg(tau, j); w = WQ + 12*j
        X_ = f'v[{x}:{x+3}]'
        sc = sched(tau)
        I(f'v_mfma_f32_16x16x32_bf16 v[{KA+4*tau}:{KA+4*tau+3}], v[{w+4}:{w+7}], {X_}, v[{KA+4*tau}:{KA+4*tau+3}]')
        if (j, tau) == (1, 0):
            I(f'v_add_u32 v{XA}, s{sDL}, v{XA}\nv_add_u32 v{WA}, s{sDL}, v{WA}')
        I(f'v_mfma_f32_16x16x32_bf16 v[{VA+4*tau}:{VA+4*tau+3}], {X_}, v[{w+8}:{w+11}], v[{VA+4*tau}:{VA+4*tau+3}]')
        if (j, tau) == (1, 0):
            I(f'v_add_u32 v{XA+1}, s{sDL}, v{XA+1}\ns_cbranch_vccnz L_QSP')
            k.label('L_QBK')
        do_reads(sc[1], 1 - j)
        if tau >= 1:
            q = QA + 4*(tau - 1)
            I(f'v_mfma_f32_16x16x32_bf16 v[{q}:{q+3}], v[{w}:{w+3}], {X_}, v[{q}:{q+3}]')
        do_reads(sc[2], 1 - j)
        if (j, tau) == (0, 6): c_flag_read(); lg.append('flag')
        if (j, tau) == (1, 2):
            lg_wait([('x', 9, 1)])
            I(f'v_add_u32_e64 v{VTM}, -1, s{sNEED}\nds_write_b32 v{VFR}, v{VTM} offset:16'); lg.append('free')
assert lg == entry[len(entry)-len(lg):], (lg, entry)
I(f's_cmp_lt_u32 s{sNEED}, 9\ns_cbranch_scc1 L_QLOOP')
k.check_backedge(m0_)
stamp(3)
k.c('---- QKV epilogue (attention)')
KB, VB, QB = 152, 178, 204
AS, SMR, CSQ, CSK, CSV = 204, 212, 250, 228, 232
SEL, ONES, VAD = 234, 238, 242
sPAR, sOA, sOB, sVA_, sVB_ = sM, sM+2, sM+4, sM+6, sM+8
I(f"""s_waitcnt lgkmcnt(0)
v_and_b32 v246, 15, v{VLANE}
v_lshrrev_b32 v247, 4, v{VLANE}
v_lshlrev_b32 v{VAD}, 4, v246
v_add_u32 v{VAD}, {L_AOS}, v{VAD}
v_lshlrev_b32 v{VAD+1}, 4, v247
s_lshl_b32 s{t}, s{sWAVE}, 6
s_add_u32 s{t}, s{t}, {L_CS}
v_add_u32 v{VAD+2}, s{t}, v{VAD+1}
v_add_u32 v{VAD+1}, {L_SM}, v{VAD+1}
v_lshlrev_b32 v248, 2, v246
v_add_u32 v248, s{t}, v248
ds_read_b128 v[{CSQ}:{CSQ+3}], v{VAD+2}
ds_read_b128 v[{CSK}:{CSK+3}], v{VAD+2} offset:256
ds_read_b32 v{CSV}, v248 offset:512
v_lshlrev_b32 v{VAD+3}, 4, v{VLANE}
v_and_b32 v248, 1, v{VLANE}
v_cmp_eq_u32 s[{sPAR}:{sPAR+1}], 1, v248
v_lshl_add_u32 v249, v247, 2, v248
v_cmp_le_u32 s[{sOA}:{sOA+1}], v249, v246
v_add_u32 v249, 2, v249
v_cmp_le_u32 s[{sOB}:{sOB+1}], v249, v246
s_cmp_eq_u32 s{sRB}, 0
s_cselect_b64 s[{sVA_}:{sVA_+1}], s[{sOA}:{sOA+1}], -1
s_cselect_b64 s[{sVB_}:{sVB_+1}], s[{sOB}:{sOB+1}], -1
v_mov_b32 v246, 0x0c0c0100
v_mov_b32 v247, 0x01000c0c
v_cndmask_b32 v246, v246, v247, s[{sPAR}:{sPAR+1}]
v_mov_b32 v247, 0x0c0c0302
v_mov_b32 v248, 0x03020c0c
v_cndmask_b32 v247, v247, v248, s[{sPAR}:{sPAR+1}]
v_mov_b32 v248, 0x0c0c0c0c
v_cndmask_b32 v{SEL}, v246, v248, s[{sOA}:{sOA+1}]
v_cndmask_b32 v{SEL+1}, v247, v248, s[{sOB}:{sOB+1}]
v_cndmask_b32 v{SEL+2}, v248, v246, s[{sOA}:{sOA+1}]
v_cndmask_b32 v{SEL+3}, v248, v247, s[{sOB}:{sOB+1}]""")
for i in range(4): I(f'v_mov_b32 v{ONES+i}, 0x3f803f80')
I(f"""s_mul_i32 s{t+4}, s{sRB}, {6*118}
s_sub_u32 s{t+5}, s{sCOL}, 15
s_lshl_b32 s{t+5}, s{t+5}, 2
s_add_u32 s{t+4}, s{t+4}, s{t+5}
s_add_u32 s{t+4}, s{t+4}, s{sWAVE}
s_lshl_b32 s{t+4}, s{t+4}, 10""")
NEG = 'neg_lo:[0,1,0] neg_hi:[0,1,0]'
def st_reads(tau):
    a = AS + 4*(tau & 1)
    I(f'ds_read_b128 v[{a}:{a+3}], v{VAD} offset:{tau*256}')
def smr_reads(tau):
    m_ = SMR + 8*(tau & 1)
    I(f'ds_read_b128 v[{m_}:{m_+3}], v{VAD+1} offset:{tau*64}\nds_read_b128 v[{m_+4}:{m_+7}], v{VAD+1} offset:{1024+tau*64}')
st_reads(0); smr_reads(0)
for tau in range(13):
    a = AS + 4*(tau & 1)
    if tau < 12: smr_reads(tau + 1); st_reads(tau + 1)
    I(f's_waitcnt lgkmcnt({3 if tau < 12 else 0})')
    m_ = SMR + 8*(tau & 1)
    Kc, Vc = KA + 4*tau, VA + 4*tau
    for p in range(2): I(f'v_pk_fma_f32 v[{Vc+2*p}:{Vc+2*p+1}], v[{m_+2*p}:{m_+2*p+1}], v[{CSV}:{CSV+1}], v[{Vc+2*p}:{Vc+2*p+1}] op_sel_hi:[1,0,1] {NEG}')
    for p in range(2): I(f'v_pk_fma_f32 v[{Kc+2*p}:{Kc+2*p+1}], v[{CSK+2*p}:{CSK+2*p+1}], v[{a}:{a+1}], v[{Kc+2*p}:{Kc+2*p+1}] op_sel_hi:[1,0,1] {NEG}')
    for p in range(2): I(f'v_pk_mul_f32 v[{Vc+2*p}:{Vc+2*p+1}], v[{Vc+2*p}:{Vc+2*p+1}], v[{m_+4+2*p}:{m_+4+2*p+1}]')
    for p in range(2): I(f'v_pk_mul_f32 v[{Kc+2*p}:{Kc+2*p+1}], v[{Kc+2*p}:{Kc+2*p+1}], v[{a}:{a+1}] op_sel:[0,1] op_sel_hi:[1,1]')
    if tau >= 1:
        Qc = QA + 4*(tau - 1)
        for p in range(2): I(f'v_pk_fma_f32 v[{Qc+2*p}:{Qc+2*p+1}], v[{CSQ+2*p}:{CSQ+2*p+1}], v[{a}:{a+1}], v[{Qc+2*p}:{Qc+2*p+1}] op_sel_hi:[1,0,1] {NEG}')
    for p in range(2): I(f'v_cvt_pk_bf16_f32 v{VB+2*tau+p}, v{Vc+2*p}, v{Vc+2*p+1}')
    for p in range(2): I(f'v_cvt_pk_bf16_f32 v{KB+2*tau+p}, v{Kc+2*p}, v{Kc+2*p+1}')
    if tau >= 1:
        for p in range(2): I(f'v_cvt_pk_bf16_f32 v{Qc+p}, v{Qc+2*p}, v{Qc+2*p+1}')
        I(f'v_mov_b32 v{Qc+2}, v{a+3}')
pend = []
for g in range(3):
    ts = list(range(4*g, 4*g + 4))
    def SO(i): return 48 + 24*i
    def SP(i): return SO(i) + 4
    def PP(i): return SO(i) + 8
    def OO(i): return SO(i) + 12
    def LL(i): return SO(i) + 16
    def TT(i): return SO(i) + 20
    for i, tq in enumerate(ts):
        q = QA + 4*tq; tau = tq + 1
        I(f'v_mfma_f32_16x16x16_bf16 v[{SO(i)}:{SO(i)+3}], v[{KB+2*tau}:{KB+2*tau+1}], v[{q}:{q+1}], 0')
        I(f'v_mfma_f32_16x16x16_bf16 v[{SP(i)}:{SP(i)+3}], v[{KB+2*tau-2}:{KB+2*tau-1}], v[{q}:{q+1}], 0')
    par = f's[{sPAR}:{sPAR+1}]'
    def each(fmt):
        for i, tq in enumerate(ts): I(fmt(i, tq))
    each(lambda i, tq: f'v_cndmask_b32 v{SO(i)}, v{SO(i)}, v{SO(i)+1}, {par}\nv_cndmask_b32 v{SO(i)+2}, v{SO(i)+2}, v{SO(i)+3}, {par}\n'
                       f'v_cndmask_b32 v{SP(i)}, v{SP(i)}, v{SP(i)+1}, {par}\nv_cndmask_b32 v{SP(i)+2}, v{SP(i)+2}, v{SP(i)+3}, {par}')
    each(lambda i, tq: f'v_cndmask_b32 v{SO(i)}, v{SP(i)}, v{SO(i)}, s[{sOA}:{sOA+1}]\nv_cndmask_b32 v{SO(i)+1}, v{SP(i)+2}, v{SO(i)+2}, s[{sOB}:{sOB+1}]')
    if g == 0:
        I(f'v_mov_b32 v{TT(0)}, {f32(-1e30)}\nv_cndmask_b32 v{SO(0)}, v{TT(0)}, v{SO(0)}, s[{sVA_}:{sVA_+1}]\nv_cndmask_b32 v{SO(0)+1}, v{TT(0)}, v{SO(0)+1}, s[{sVB_}:{sVB_+1}]')
    each(lambda i, tq: f'v_max_f32 v{TT(i)}, v{SO(i)}, v{SO(i)+1}\nv_max_f32 v{TT(i)+1}, v{SO(i)}, v{SO(i)+1}')
    each(lambda i, tq: f'v_permlane32_swap_b32 v{TT(i)}, v{TT(i)+1}')
    each(lambda i, tq: f'v_max_f32 v{TT(i)+2}, v{TT(i)}, v{TT(i)+1}\nv_max_f32 v{TT(i)+3}, v{TT(i)}, v{TT(i)+1}')
    each(lambda i, tq: f'v_permlane16_swap_b32 v{TT(i)+2}, v{TT(i)+3}')
    each(lambda i, tq: f'v_max_f32 v{TT(i)}, v{TT(i)+2}, v{TT(i)+3}')
    each(lambda i, tq: f'v_mul_f32 v{TT(i)}, v{TT(i)}, v{QA+4*tq+2}')
    each(lambda i, tq: f'v_fma_f32 v{SO(i)}, v{SO(i)}, v{QA+4*tq+2}, -v{TT(i)}\nv_fma_f32 v{SO(i)+1}, v{SO(i)+1}, v{QA+4*tq+2}, -v{TT(i)}')
    each(lambda i, tq: f'v_exp_f32 v{SO(i)}, v{SO(i)}\nv_exp_f32 v{SO(i)+1}, v{SO(i)+1}')
    each(lambda i, tq: f'v_cvt_pk_bf16_f32 v{TT(i)}, v{SO(i)}, v{SO(i)+1}')
    each(lambda i, tq: '\n'.join(f'v_perm_b32 v{PP(i)+e}, v{TT(i)}, v{TT(i)}, v{SEL+e}' for e in range(4)))
    each(lambda i, tq: f'v_mfma_f32_16x16x32_bf16 v[{LL(i)}:{LL(i)+3}], v[{ONES}:{ONES+3}], v[{PP(i)}:{PP(i)+3}], 0\n'
                       f'v_mfma_f32_16x16x32_bf16 v[{OO(i)}:{OO(i)+3}], v[{VB+2*tq}:{VB+2*tq+3}], v[{PP(i)}:{PP(i)+3}], 0')
    each(lambda i, tq: f'v_rcp_f32 v{TT(i)}, v{LL(i)}')
    each(lambda i, tq: '\n'.join(f'v_pk_mul_f32 v[{OO(i)+2*p}:{OO(i)+2*p+1}], v[{OO(i)+2*p}:{OO(i)+2*p+1}], v[{TT(i)}:{TT(i)+1}] op_sel_hi:[1,0]' for p in range(2)))
    for pr in range(2):
        i0, i1 = 2*pr, 2*pr + 1; o = QA + 4*ts[i0]
        I(f'v_cvt_pk_bf16_f32 v{o}, v{OO(i0)}, v{OO(i0)+1}\nv_cvt_pk_bf16_f32 v{o+1}, v{OO(i0)+2}, v{OO(i0)+3}\n'
          f'v_cvt_pk_bf16_f32 v{o+2}, v{OO(i1)}, v{OO(i1)+1}\nv_cvt_pk_bf16_f32 v{o+3}, v{OO(i1)+2}, v{OO(i1)+3}')
    for pr in range(2):
        o = QA + 4*ts[2*pr]
        I(f'v_permlane16_swap_b32 v{o}, v{o+2}\nv_permlane16_swap_b32 v{o+1}, v{o+3}')
    for pr in range(2):
        o = QA + 4*ts[2*pr]
        (pend.append if OPT['defer'] else I)(f'buffer_store_dwordx4 v[{o}:{o+3}], v{VAD+3}, {srd(SAF)}, s{t+4} offen{OPT_HST}\ns_add_u32 s{t+4}, s{t+4}, {118*1024}')
for x in pend: I(x)
publish_flag()
k.label('L_CODE_END')
I('s_endpgm')

hdr = open('cdna_kernels/' + NAME + '.s.ref').read().split('; Override launch')[0]
txt = hdr + f"""; @launch grid=(256,1,1) block=(512,1,1) lds=163840
.amdgcn_target "amdgcn-amd-amdhsa--gfx950"
.text
.globl {NAME}_kernel
.p2align 8
.type {NAME}_kernel,@function
{NAME}_kernel:
""" + k.text() + f""".section .rodata,"a"
.p2align 6
.amdhsa_kernel {NAME}_kernel
  .amdhsa_next_free_vgpr 256
  .amdhsa_next_free_sgpr 102
  .amdhsa_accum_offset 256
  .amdhsa_group_segment_fixed_size 0
  .amdhsa_kernarg_size 80
  .amdhsa_user_sgpr_count 2
  .amdhsa_user_sgpr_kernarg_segment_ptr 1
  .amdhsa_system_sgpr_workgroup_id_x 1
.end_amdhsa_kernel
"""
open(sys.argv[1], 'w').write(txt)
for p_ in k.problems: print('PROBLEM', p_)
print('written', sys.argv[1], 'lines', txt.count('\n'), 'nops', k.nops)
```

```python
import re
REG = re.compile(r'(?<![\w.])([vsa])(?:\[(\d+):(\d+)\]|(\d+))(?![\w])')
TRANS = ('v_exp_f32', 'v_log_f32', 'v_rcp_f32', 'v_rsq_f32', 'v_sqrt_f32', 'v_sin_f32', 'v_cos_f32')

def regs_of(op):
    out = set()
    for m in REG.finditer(op):
        k = m.group(1)
        if m.group(4) is not None: out.add((k, int(m.group(4))))
        else:
            for i in range(int(m.group(2)), int(m.group(3)) + 1): out.add((k, i))
    o = op.strip()
    if re.search(r'\bvcc\b', o): out |= {('s', 'vcc')}
    if re.search(r'\bvcc_lo\b|\bvcc_hi\b', o): out |= {('s', 'vcc')}
    if re.search(r'\bm0\b', o): out |= {('s', 'm0')}
    if re.search(r'\bexec(_lo|_hi)?\b', o): out |= {('s', 'exec')}
    return out

class Ins:
    def __init__(self, text):
        self.text = text
        t = text.split(';')[0].strip()
        parts = t.split(None, 1)
        self.mn = mn = parts[0]
        rest = parts[1] if len(parts) > 1 else ''
        ops = [o.strip() for o in re.split(r',(?![^\[]*\])', rest)] if rest else []
        self.ops = ops
        self.dst, self.src = set(), set()
        self.ws = 1
        self.cls = 'other'
        self.srcC = set(); self.srcAB = set(); self.data = set()
        if mn == 's_nop':
            self.ws = int(ops[0], 0) + 1; self.cls = 'nop'; return
        if mn.startswith('v_mfma'):
            self.cls = 'mfma'
            self.passes = 8 if '32x32' in mn else 4
            self.dst = regs_of(ops[0]); self.srcAB = regs_of(ops[1]) | regs_of(ops[2]); self.srcC = regs_of(ops[3].split()[0])
            self.src = self.srcAB | self.srcC
        elif mn.startswith('v_'):
            self.cls = 'valu'
            self.trans = mn.replace('_e32', '').replace('_e64', '') in TRANS
            self.dpp = any(x in t for x in ('row_', 'quad_perm', 'wave_'))
            self.perml = mn.startswith('v_permlane')
            self.rdlane = mn.startswith(('v_readfirstlane', 'v_readlane'))
            self.dst = regs_of(ops[0])
            for o in ops[1:]: self.src |= regs_of(o)
            if self.perml: self.dst |= regs_of(ops[1]); self.src |= regs_of(ops[0])
            if mn.startswith(('v_fmac', 'v_dot2c')) or self.dpp: self.src |= regs_of(ops[0])
            if mn.startswith('v_cndmask') and len(ops) == 3: self.src |= {('s', 'vcc')}
            if mn.startswith(('v_add_co', 'v_sub_co', 'v_addc_co')): self.dst |= regs_of(ops[1])
        elif mn.startswith(('buffer_', 'global_')):
            self.cls = 'vmem'
            self.lds = bool(re.search(r'\blds\b', t)) or 'load_lds' in mn
            isload = '_load' in mn
            self.wide_store = False
            if isload and not self.lds:
                self.dst = regs_of(ops[0])
                for o in ops[1:]: self.src |= regs_of(o)
            else:
                for o in ops: self.src |= regs_of(o)
                if '_store' in mn:
                    self.data = regs_of(ops[0] if mn.startswith('buffer_') else ops[1])
                    self.wide_store = mn.endswith(('x3', 'x4'))
            if self.lds: self.src |= {('s', 'm0')}
        elif mn.startswith('ds_'):
            self.cls = 'ds'
            if mn.startswith('ds_read'):
                self.dst = regs_of(ops[0])
                for o in ops[1:]: self.src |= regs_of(o)
            else:
                for o in ops: self.src |= regs_of(o)
        elif mn.startswith('s_'):
            self.cls = 'salu'
            nodst = ('s_cmp', 's_waitcnt', 's_barrier', 's_branch', 's_cbranch', 's_sleep', 's_setprio', 's_endpgm', 's_bitcmp')
            if not mn.startswith(nodst) and ops:
                self.dst = regs_of(ops[0])
                for o in ops[1:]: self.src |= regs_of(o)
            else:
                for o in ops: self.src |= regs_of(o)

def need(p, c):
    n = 0
    vd = {r for r in p.dst if r[0] in 'va'}
    sd = {r for r in p.dst if r[0] == 's'}
    if p.cls == 'valu':
        if c.cls == 'mfma' and vd & c.src: n = max(n, 2)
        if c.cls == 'valu':
            if p.trans and not c.trans and vd & c.src: n = max(n, 1)
            if (c.perml or c.dpp) and vd & c.src: n = max(n, 2)
            if c.rdlane and vd & c.src: n = max(n, 1)
            if sd & c.src: n = max(n, 4 if c.rdlane else 2)
        if c.cls == 'vmem' and sd & c.src: n = max(n, 5)
        if c.cls == 'salu' and sd & c.src: n = max(n, 1)
    if p.cls == 'mfma':
        big = 12 if p.passes == 8 else 8
        if c.cls == 'valu':
            if vd & (c.src | c.dst): n = max(n, big)
            if p.srcC & c.dst: n = max(n, 7 if p.passes == 8 else 3)
        if c.cls in ('vmem', 'ds') and vd & (c.src | c.dst): n = max(n, big)
        if c.cls == 'mfma':
            if vd & c.srcAB: n = max(n, big)
            if vd & c.srcC and not (vd == c.srcC and p.passes == c.passes): n = max(n, 10 if p.passes == 8 else 6)
            if vd & c.dst and not (vd & c.srcC): n = max(n, big)
    if p.cls == 'salu' and ('s', 'm0') in p.dst and c.cls == 'vmem' and c.lds: n = max(n, 1)
    if p.cls == 'vmem' and p.wide_store and p.data & c.dst: n = max(n, 2)
    return n

class K:
    def __init__(self):
        self.out = []
        self.ins = []
        self.vm = []
        self.nops = 0
        self.pv = []
        self.pl = []
        self.problems = []
        self.region = None; self.rbytes = 0; self.pads = {}; self.padstep = 120
    def raw(self, t): self.out.append(t)
    def c(self, t): self.out.append('  ; ' + t)
    def label(self, name): self.out.append(name + ':'); self.ins.append(None)
    def _pad(self, ins, hist):
        dist = 0; req = 0
        for p in reversed(hist):
            if p is None: continue
            req = max(req, need(p, ins) - dist)
            dist += p.ws
            if dist > 20: break
        return req
    def I(self, text, tag=None):
        for line in text.strip().split('\n'):
            line = line.strip()
            if not line or line.startswith(';'):
                if line: self.out.append('  ' + line)
                continue
            ins = Ins(line)
            if self.region is not None:
                if self.rbytes >= self.padstep:
                    lst = self.pads.setdefault(self.region, []); nm = f'L_W{self.region}_{len(lst)}'; lst.append(nm)
                    self.out.append(nm + ':'); self.out.append(f'  s_cbranch_execz @{nm}@'); self.ins.append(Ins('s_cbranch_execz x')); self.rbytes = 4
                short = ins.cls in ('salu', 'nop') or (ins.cls == 'valu' and ins.mn in ('v_exp_f32', 'v_rcp_f32', 'v_max_f32', 'v_mul_f32', 'v_mov_b32', 'v_add_u32', 'v_lshlrev_b32', 'v_and_b32', 'v_permlane16_swap_b32', 'v_permlane32_swap_b32'))
                self.rbytes += 4 if short else 8
            req = self._pad(ins, self.ins)
            while req > 0:
                k = min(req, 16); n = Ins(f's_nop {k-1}'); self.ins.append(n); self.out.append(f'  s_nop {k-1}'); self.nops += k; req -= k
            self._score(ins)
            self.ins.append(ins); self.out.append('  ' + line)
            if ins.cls == 'vmem': self.vm.append(tag)
    def _score(self, ins):
        if ins.mn == 's_waitcnt':
            m = re.search(r'vmcnt\((\d+)\)', ins.text)
            if m: n = int(m.group(1)); self.pv = self.pv[len(self.pv) - n:] if n < len(self.pv) else self.pv; self.pv = [] if n == 0 else self.pv
            m = re.search(r'lgkmcnt\((\d+)\)', ins.text)
            if m: n = int(m.group(1)); self.pl = self.pl[len(self.pl) - n:] if n < len(self.pl) else self.pl; self.pl = [] if n == 0 else self.pl
            return
        touched = {r for r in (ins.src | ins.dst) if r[0] == 'v'}
        for kind, pend in (('vmem', self.pv), ('lds', self.pl)):
            for d in pend:
                if d & touched:
                    self.problems.append(f'line {len(self.out)}: "{ins.text}" touches registers of an outstanding {kind} load {sorted(x[1] for x in d & touched)}')
        if ins.cls == 'vmem': self.pv.append({r for r in ins.dst if r[0] == 'v'})
        if ins.cls == 'ds': self.pl.append({r for r in ins.dst if r[0] == 'v'})
    def snap(self): return (list(self.vm), list(self.pv), list(self.pl))
    def restore(self, s): self.vm, self.pv, self.pl = list(s[0]), list(s[1]), list(s[2])
    def fresh(self): self.ins.clear(); self.vm = []; self.pv = []; self.pl = []
    def mark(self): return len(self.ins)
    def check_backedge(self, start):
        body = [i for i in self.ins[start:] if i is not None]
        hist = list(body)
        for k, ins in enumerate(body[:24]):
            r = self._pad(ins, hist)
            assert r <= 0, f'back-edge hazard before "{ins.text}" needs {r}'
            hist.append(ins)
    def barrier_hist(self):
        pass
    def vm_reset(self): self.vm = []
    def wait_vm(self, tag, lgkm=None):
        idx = max((i for i, t in enumerate(self.vm) if t == tag), default=None)
        if idx is None:
            if lgkm is not None: self.I(f's_waitcnt lgkmcnt({lgkm})')
            return
        n = sum(1 for x in self.vm[idx + 1:] if x != 'MAYBE')
        assert n <= 63, n
        self.vm = self.vm[idx + 1:]
        self.I(f's_waitcnt vmcnt({n})' + (f' lgkmcnt({lgkm})' if lgkm is not None else ''))
    def throttle(self, n):
        if n is None or n >= 60: return
        self.I(f's_waitcnt vmcnt({n})')
        if len(self.vm) > n: self.vm = self.vm[len(self.vm) - n:] if n else []
    def begin_region(self, r): self.region = r; self.rbytes = 10**6
    def end_region(self): self.region = None
    def chains(self, parts, ret):
        entries = {}; tgt = {}
        for r, lst in self.pads.items():
            n = parts[r]; cuts = [len(lst) * i // n for i in range(n + 1)]
            entries[r] = [lst[cuts[i]] for i in range(n)]
            for i in range(n):
                seg = lst[cuts[i]:cuts[i + 1]]
                for a, b in zip(seg, seg[1:] + [ret]): tgt[a] = b
        self.tgt = tgt
        return entries
    def text(self):
        t = '\n'.join(self.out) + '\n'
        return re.sub(r'@(L_W\w+)@', lambda m: self.tgt[m.group(1)], t)
```

```python
import sys, os
from asmlib import K

NAME = "recurrent_scan__sliding_local_dilated__swiglu_ffn__prompt"
OPT = dict(diag=0, nt_x=0, nt_w=0, nt_b2=0, rot=2, rotb=4, latin=1, naw=5, defer=0, psleep=2, cbshift=0, pmask=1, outst=1, hst=0, tb0=99, tb1=99, tb2=99, pl=1, ps=2, pf=3, sct=0, thr=99, thr_from=3, thrb=99, thrd=99, pace=0, pacen=1, apace=0, athr=0, cfin=7, hold=1, cl=6, cw=1, skip=0, agrp=3, lvl=0, lva=6, ilv=2, fsh=4, fst_=0, fld=0, w0=99, w0w=0, tl=99, walk=1, padstep=250, nr0=2, sig2=4, nr6=0, nr7=8, nr8=16, nr9=16, midbar=1, nawc=5, ald=0, pbar=0, hsleep=1, cprio=2, sigat=8)
for a in sys.argv[2:]:
    k_, v_ = a.split('='); OPT[k_] = int(v_)

SLOT = 51200
MISC = 155648
L_AOS, L_SM, L_SR, L_CS, L_SCR = MISC, MISC + 4096, MISC + 5120, MISC + 6144, MISC + 7168
L_FULL = L_AOS + 4048
L_FREE = L_AOS + 4064
L_NONCE = L_AOS + 4080
AF_BYTES = 64 * 118 * 1024
W_RS, W_CSP, W_FL, W_DIAG = 0x800000, 0x810000, 0x880000, 0x900000
W_FL = 0x8c0000
W_PF, W_PK = 0x890000, 0xa00000
WS_REC = 0x1000000
OOB = 0x7f000000
LOG2E = 1.4426950408889634
import struct
def f32(x): return '0x%08x' % struct.unpack('<I', struct.pack('<f', x))[0]

SX, SWA, SWB, SWS, SAF, SW2, SSL, SOUT = 24, 28, 32, 36, 40, 44, 48, 52
sWAVE, sRB, sCOL, sISQ, sH, sRB2, sCB2, sSLOTID = 56, 57, 58, 59, 60, 61, 62, 63
sN = 64
sT = 66
sLW = 80
sKWS, sC, sKW, sX7M, sX7S, sPOS = 86, 87, 88, 89, 90, 91
sNV, sBROW, sABASE, sLB2 = 92, 93, 94, 95
sST = 96
sSTR = 78
sPKI = 73
sT0 = 44
sS0 = 3
sM = 80
VLANE, VDIAG = 254, 255
def srd(i): return f's[{i}:{i+3}]'

k = K()
k.padstep = OPT['padstep']
OPT_OUTST = ['', ' sc1', ' nt', ' sc0 sc1'][OPT['outst']]
OPT_ALD = [' sc1', '', ' sc0 sc1', ' nt', ' sc1 nt'][OPT['ald']]
OPT_FST = [' sc1', ' sc0 sc1', ' sc1 nt'][OPT['fst_']]
OPT_FLD = [' sc1', ' sc0 sc1', ' sc1 nt'][OPT['fld']]
OPT_HST = [' sc1', ' sc0 sc1', ' sc1 nt'][OPT['hst']]
I = k.I
lblc = [0]
def newlbl(p):
    lblc[0] += 1; return f'L_{p}_{lblc[0]}'
def stamp(i):
    if OPT.get('padat') == i:
        L = newlbl('pad')
        k.label(L)
        I(f's_memrealtime s[96:97]\ns_waitcnt lgkmcnt(0)\ns_sub_u32 s96, s96, s98\ns_cmp_lt_u32 s96, {OPT["padx"]}\ns_cbranch_scc1 {L}')
    if not OPT['diag']: return
    I(f's_memrealtime s[{sST}:{sST+1}]\ns_memtime s[{sST+2}:{sST+3}]\ns_waitcnt lgkmcnt(0)\nv_writelane_b32 v{VDIAG}, s{sST}, {i}\nv_writelane_b32 v{VDIAG}, s{sST+2}, {i+32}' if i < 29 else f's_memrealtime s[{sST}:{sST+1}]\ns_waitcnt lgkmcnt(0)\nv_writelane_b32 v{VDIAG}, s{sST}, {i}')

def mk_srd(d, p, rec):
    I(f's_mov_b32 s{d}, s{p}\ns_mov_b32 s{d+1}, s{p+1}\ns_mov_b32 s{d+2}, {rec}\ns_mov_b32 s{d+3}, 0x20000')


def nonce_poll():
    L = newlbl('np'); D = newlbl('npd')
    I(f's_mov_b32 s{sT}, 0')
    k.label(L)
    I(f"""s_load_dwordx2 s[{sN}:{sN+1}], s[20:21], 0 glc
s_add_u32 s{sT}, s{sT}, 1
s_waitcnt lgkmcnt(0)
s_cmp_lg_u64 s[{sN}:{sN+1}], 0
s_cbranch_scc1 {D}
s_sleep 2
s_cmp_lt_u32 s{sT}, 0x40000
s_cbranch_scc1 {L}""")
    k.label(D)

k.label('KSTART')
if OPT['diag']: I('s_memrealtime s[100:101]')
I(f"""s_cmp_ge_u32 s2, 256
s_cbranch_scc1 L_END
s_load_dwordx16 s[4:19], s[0:1], 0
s_load_dwordx4 s[20:23], s[0:1], 64
s_memrealtime s[{sT0}:{sT0+1}]
s_getpc_b64 s[{sT+2}:{sT+3}]""")
k.label('L_PC')
I(f"""s_and_b32 s{sT+4}, s2, 0xf8
v_lshrrev_b32 v1, 6, v0
v_and_b32 v{VLANE}, 63, v0
v_add_u32 v2, s{sT+4}, v1
v_lshlrev_b32 v2, 7, v2
v_min_u32 v2, L_CODE_END-L_PC-4, v2
global_load_dword v253, v2, s[{sT+2}:{sT+3}]
v_readfirstlane_b32 s{sWAVE}, v1
v_xor_b32 v1, 4, v1
v_lshlrev_b32 v1, 2, v1
v_add_u32 v1, {L_FULL}, v1
v_mov_b32 v2, 0
ds_write_b32 v1, v2""", 'CODE')
if OPT.get('padto') or 'padat' in OPT: I('s_memrealtime s[98:99]')
if OPT['diag']: I(f'v_mov_b32 v{VDIAG}, 0')
T0 = [18,19,20,4,5,10,31,0]; T1 = [21,22,11,16,17,31,31,0]
def pk(b): return '0x%08x' % (b[0] | b[1] << 8 | b[2] << 16 | b[3] << 24)
t = sT
I(f"""s_and_b32 s{t}, s2, 7
s_lshr_b32 s{sSLOTID}, s2, 3
s_and_b32 s{t+1}, s{t}, 1
s_lshr_b32 s{t+2}, s{t}, 1
s_lshl_b32 s{sRB2}, s{t}, 2
s_lshr_b32 s{t+3}, s{sSLOTID}, 3
s_add_u32 s{sRB2}, s{sRB2}, s{t+3}
s_add_u32 s{sCB2}, s{sSLOTID}, {OPT['cbshift']}
s_and_b32 s{sCB2}, s{sCB2}, 7
s_mul_i32 s{t+3}, s{sSLOTID}, 52
s_lshr_b32 s{t+3}, s{t+3}, 8
s_mul_i32 s{t+4}, s{t+3}, 5
s_sub_u32 s{t+4}, s{sSLOTID}, s{t+4}
s_mul_i32 s{t+5}, s{t+1}, 6
s_add_u32 s{sRB}, s{t+4}, s{t+5}
s_mul_i32 s{t+5}, s{t+2}, 6
s_add_u32 s{sCOL}, s{t+5}, s{t+3}
s_lshl_b32 s{t+6}, s{t+1}, 1
s_add_u32 s{t+5}, s{t+5}, s{t+6}
s_add_u32 s{t+5}, s{t+5}, s{sSLOTID}
s_sub_u32 s{t+5}, s{t+5}, 30
s_cmp_eq_u32 s{t+1}, 0
s_mov_b32 s{t+6}, {pk(T1[:4])}
s_mov_b32 s{t+7}, {pk(T1[4:])}
s_cmov_b32 s{t+6}, {pk(T0[:4])}
s_cmov_b32 s{t+7}, {pk(T0[4:])}""")
I(f"""s_sub_u32 s{t+8}, s{sSLOTID}, 25
s_lshl_b32 s{t+8}, s{t+8}, 3
s_lshr_b64 s[{t+6}:{t+7}], s[{t+6}:{t+7}], s{t+8}
s_and_b32 s{t+6}, s{t+6}, 0xff
s_cmp_eq_u32 s{t+2}, 3
s_cselect_b32 s{t+5}, s{t+6}, s{t+5}
s_cselect_b32 s{t+7}, 25, 30
s_cmp_ge_u32 s{sSLOTID}, s{t+7}
s_cselect_b32 s{sCOL}, s{t+5}, s{sCOL}
s_cselect_b32 s{sRB}, 5, s{sRB}
s_cmp_eq_u32 s{sCOL}, 31
s_cselect_b32 s{sCOL}, 0, s{sCOL}
s_cselect_b32 s{sRB}, 11, s{sRB}
s_add_u32 s{t+5}, s{sCOL}, 1
s_cmp_ge_u32 s{sCOL}, 14
s_cselect_b32 s{sCOL}, s{t+5}, s{sCOL}
s_cmp_eq_u32 s{sCOL}, 23
s_cselect_b32 s{sCOL}, 14, s{sCOL}
s_cmp_ge_u32 s{sCOL}, 15
s_cselect_b32 s{sISQ}, 1, 0
s_and_b32 s{sH}, s{sWAVE}, 3""")
if OPT['latin']:
    I(f"""s_cmp_ge_u32 s{t+3}, 3
s_addc_u32 s{sS0}, s{t+3}, s{t+2}
s_cmp_ge_u32 s{t+4}, 3
s_addc_u32 s{sS0}, s{sS0}, s{t+4}
s_lshl_b32 s{t+1}, s{t+1}, 1
s_add_u32 s{sS0}, s{sS0}, s{t+1}
s_cmp_eq_u32 s{sRB}, 5
s_cselect_b32 s{sS0}, s{sCOL}, s{sS0}
s_and_b32 s{sS0}, s{sS0}, 7""")
else:
    I(f's_mov_b32 s{sS0}, 0')
I(f"""s_cmp_lt_u32 s{sWAVE}, 4
s_cbranch_scc0 L_H
s_or_b32 s{t}, s2, s{sWAVE}
s_cmp_lg_u32 s{t}, 0
s_waitcnt lgkmcnt(0)
s_cbranch_scc1 L_NW
v_mov_b32 v2, s{sT0}
v_mov_b32 v3, s{sT0+1}
v_mov_b32 v4, 0
global_store_dwordx2 v4, v[2:3], s[20:21] sc1""")
k.label('L_NW')
sROW = t + 9
vRD = 200
mk_srd(SX, 4, 2048*1024)
I(f"""s_mul_i32 s{t}, s{sRB}, 192
s_mul_i32 s{t+1}, s{sCOL}, 12
s_add_u32 s{t}, s{t}, s{t+1}
s_mul_i32 s{t+1}, s{sH}, 3
s_add_u32 s{t}, s{t}, s{t+1}
s_cmp_lt_u32 s{sCOL}, 16
s_cselect_b32 s{sROW}, s{t}, 0x100000
s_lshl_b32 s{t}, s{sROW}, 10
v_lshlrev_b32 v7, 4, v{VLANE}""")
for a_ in range(3):
    I(f'buffer_load_dwordx4 v[{vRD+4*a_}:{vRD+4*a_+3}], v7, {srd(SX)}, s{t} offen offset:{a_*1024}')
I("""s_barrier
s_branch L_C""")
k.fresh()
k.label('L_H')

vXo0, vXo1, vW, vL16, vB2 = 2, 3, 4, 7, 247
vT = 8
NTX = ' nt' if OPT['nt_x'] else ''
NTW = ' nt' if OPT['nt_w'] else ''
NTB = ' nt' if OPT['nt_b2'] else ''
k.c('---- H prologue')
I(f"""v_lshrrev_b32 v{vT}, 3, v{VLANE}
v_and_b32 v{vT+1}, 7, v{VLANE}
v_lshrrev_b32 v{vT+2}, 1, v{vT}
s_and_b32 s{t}, s{sH}, 1
s_lshl_b32 s{t+1}, s{t}, 2
v_or_b32 v{vT+3}, s{t+1}, v{vT+2}
v_xor_b32 v{vT+3}, v{vT+3}, v{vT+1}
v_lshlrev_b32 v{vT+3}, 4, v{vT+3}
s_mul_i32 s{t+2}, s{sRB}, 192
s_lshl_b32 s{t+3}, s{sISQ}, 4
s_sub_i32 s{t+2}, s{t+2}, s{t+3}
s_lshl_b32 s{t+3}, s{sH}, 3
s_add_i32 s{t+2}, s{t+2}, s{t+3}
s_add_i32 s{t+4}, s{t+2}, 32
v_add_u32 v{vXo1}, s{t+4}, v{vT}
v_lshlrev_b32 v{vXo1}, 10, v{vXo1}
v_add_u32 v{vXo1}, v{vXo1}, v{vT+3}
s_cmp_lt_i32 s{t+2}, 0
s_mov_b32 s{t+4}, -32768
s_cmov_b32 s{t+4}, 0x40000000
v_add_u32 v{vXo0}, s{t+4}, v{vXo1}
v_lshlrev_b32 v{vL16}, 4, v{VLANE}
s_cmp_eq_u32 s{sISQ}, 1
s_cbranch_scc1 L_HQ""")
I(f"""s_mul_i32 s{t+2}, s{sH}, {16*2752}
s_mul_i32 s{t+3}, s{sCOL}, 192
s_add_u32 s{t+2}, s{t+2}, s{t+3}
s_movk_i32 s{t+4}, 171
s_movk_i32 s{t+5}, 2752
s_sub_u32 s{t+6}, 2752, s{t+3}""")
for b in range(3):
    I(f"""v_add_u32 v{vT+4}, {64*b}, v{VLANE}
v_mul_u32_u24 v{vT+5}, s{t+4}, v{vT+4}
v_lshrrev_b32 v{vT+5}, 11, v{vT+5}
v_mul_u32_u24 v{vT+6}, 12, v{vT+5}
v_sub_u32 v{vT+6}, v{vT+4}, v{vT+6}
v_bfe_u32 v{vT+7}, v{vT+5}, 3, 1
v_lshlrev_b32 v{vT+7}, 1, v{vT+7}
v_xor_b32 v{vT+6}, v{vT+6}, v{vT+7}
v_lshlrev_b32 v{vT+6}, 4, v{vT+6}
v_mad_u32_u24 v{vW+b}, v{vT+5}, s{t+5}, v{vT+6}
v_add_u32 v{vW+b}, s{t+2}, v{vW+b}
v_cmp_gt_u32 vcc, s{t+6}, v{vT+6}
v_mov_b32 v{vT+7}, {OOB}
v_cndmask_b32 v{vW+b}, v{vT+7}, v{vW+b}, vcc""")
I(f"""s_mul_i32 s{sLW}, s{sH}, 3072
s_add_u32 s{sLW}, s{sLW}, 24576
s_add_u32 s{sLW+1}, s{sLW}, 1024
s_add_u32 s{sLW+2}, s{sLW}, 2048
s_add_u32 s{sLW+3}, s{sLW}, 12288
s_add_u32 s{sLW+4}, s{sLW}, {12288+1024}
s_add_u32 s{sLW+5}, s{sLW}, {12288+2048}
s_mov_b32 s{sKWS}, {64*2752}
s_mov_b32 s{sC}, 0
s_mov_b32 s{t+11}, 0
s_waitcnt lgkmcnt(0)""")
mk_srd(SWA, 12, 512*2752); mk_srd(SWB, 14, 512*2752)
I('s_branch L_HJ')
k.label('L_HQ')
I(f"""v_and_b32 v{vT+4}, 1, v{vT+2}
s_lshl_b32 s{t+1}, s{t}, 1
v_or_b32 v{vT+4}, s{t+1}, v{vT+4}
v_lshlrev_b32 v{vT+4}, 1, v{vT+4}
v_xor_b32 v{vT+4}, v{vT+4}, v{vT+1}
v_lshlrev_b32 v{vT+4}, 4, v{vT+4}
s_movk_i32 s{t+5}, 3072
v_mad_u32_u24 v{vW}, v{vT}, s{t+5}, v{vT+4}
s_mul_i32 s{t+2}, s{sH}, {8*3072}
s_sub_u32 s{t+3}, s{sCOL}, 15
s_lshl_b32 s{t+3}, s{t+3}, 7
s_add_u32 s{t+2}, s{t+2}, s{t+3}
v_add_u32 v{vW}, s{t+2}, v{vW}
v_add_u32 v{vW+1}, 1024, v{vW}
v_add_u32 v{vW+2}, 2048, v{vW}
s_lshl_b32 s{sLW}, s{sH}, 10
s_add_u32 s{sLW}, s{sLW}, 26624
s_add_u32 s{sLW+1}, s{sLW}, 8192
s_add_u32 s{sLW+2}, s{sLW}, 16384
s_add_u32 s{sLW+3}, s{sLW}, 4096
s_add_u32 s{sLW+4}, s{sLW}, {4096+8192}
s_add_u32 s{sLW+5}, s{sLW}, {4096+16384}
s_mov_b32 s{sKWS}, {64*3072}
s_mov_b32 s{sC}, {32*3072}
s_cmp_lt_u32 s{sH}, 2
s_cselect_b32 s{t+11}, 1, 0
s_waitcnt lgkmcnt(0)""")
mk_srd(SWA, 6, 512*3072); mk_srd(SWB, 6, 512*3072)
k.label('L_HJ')
mk_srd(SX, 4, 2048*1024)
I(f's_lshl_b32 s{t+10}, s{sH}, 10')
sH1K, sX7R = t + 10, t + 11

sXK, sROT = t + 13, sPOS
VFL = 232
def signal_full(n):
    I(f'v_mov_b32 v237, {n}\nds_write_b32 v238, v237')
def spin(base, n):
    L = newlbl('sp'); D = newlbl('spd')
    I(f's_mov_b32 s{t+4}, 0')
    k.label(L)
    I(f"""ds_read_b128 v[{VFL}:{VFL+3}], v236 offset:{base - L_FULL}
s_add_u32 s{t+4}, s{t+4}, 1
s_waitcnt lgkmcnt(0)
v_min_u32 v{VFL}, v{VFL}, v{VFL+1}
v_min3_u32 v{VFL}, v{VFL}, v{VFL+2}, v{VFL+3}
v_cmp_gt_u32 vcc, {n}, v{VFL}
s_cmp_lt_u32 s{t+4}, 0x400000
s_cbranch_vccz {D}
s_sleep {OPT['hsleep']}
s_cbranch_scc1 {L}""")
    k.label(D)

def stage_dma(i, sig=None):
    base = (i % 3) * SLOT
    tag = f'D{i}'
    cnt = [0]
    if OPT.get('nodma') == 1 and i >= 3: return
    if OPT.get('nodma') == 3 and i >= 3:
        n0 = len(k.out); OPT['nodma'] = 0; stage_dma(i, sig); OPT['nodma'] = 3
        import re as _re
        for j_ in range(n0, len(k.out)):
            k.out[j_] = _re.sub(r'buffer_load_dwordx4 (v\d+), (.*) offen lds', lambda m_: f'buffer_load_dwordx4 v[{128 + 4*(j_ % 16)}:{131 + 4*(j_ % 16)}], {m_.group(1)}, {m_.group(2)} offen', k.out[j_])
        return
    def after():
        cnt[0] += 1
        if i >= OPT['thr_from'] and cnt[0] < 13:
            k.throttle(OPT['thr'])
            if OPT['pace'] and cnt[0] % OPT['pacen'] == 0:
                if OPT['apace']:
                    Lp = newlbl('ap'); sv_ = k.snap()
                    I(f's_cbranch_vccz {Lp}\n' + (f's_waitcnt vmcnt({OPT["athr"]})' if OPT['athr'] else f's_sleep {OPT["pace"]}')); k.restore(sv_); k.label(Lp)
                else: I(f's_sleep {OPT["pace"]}')
        if sig is not None and cnt[0] == (OPT['sigat'] if i < 3 else OPT['sig2']):
            stamp(9 + 2*(i-1)); k.wait_vm(f'D{i-1}'); signal_full(sig); stamp(10 + 2*(i-1))
    if OPT.get('fst') and i >= 3: stamp(9 + 2*i)
    if OPT['apace'] and i >= 3: I(f's_cmp_gt_u32 s{t+4}, {OPT["apace"]}\ns_cselect_b64 vcc, 1, 0')
    I(f"""s_add_u32 s{t+2}, s{sS0}, {i}
s_and_b32 s{t+2}, s{t+2}, 7
s_lshl_b32 s{sXK}, s{t+2}, 7
s_mul_i32 s{sKW}, s{t+2}, s{sKWS}""")
    for tt in range(6):
        I(f's_add_u32 m0, s{sH1K}, {base + tt*4096}')
        if tt <= 1: I(f's_nop 0\nbuffer_load_dwordx4 v{vXo0 if tt == 0 else vXo1}, {srd(SX)}, s{sXK} offen{NTX} lds', tag)
        else: I(f's_add_u32 s{t}, s{sXK}, {(tt-1)*32768}\nbuffer_load_dwordx4 v{vXo1}, {srd(SX)}, s{t} offen{NTX} lds', tag)
        after()
    L7 = newlbl('x7')
    I(f"""s_cmp_eq_u32 s{sX7R}, 0
s_cbranch_scc1 {L7}
s_add_u32 m0, s{sH1K}, {base + 6*4096}
s_add_u32 s{t}, s{sXK}, {5*32768}
buffer_load_dwordx4 v{vXo1}, {srd(SX)}, s{t} offen{NTX} lds""", 'MAYBE')
    k.label(L7)
    after()
    I(f's_add_u32 s{t+1}, s{sKW}, s{sC}')
    for j in range(6):
        I(f's_add_u32 m0, s{sLW+j}, {base}')
        I(f'buffer_load_dwordx4 v{vW + j%3}, {srd(SWA if j < 3 else SWB)}, s{sKW if j < 3 else t+1} offen{NTW} lds', tag)
        after()

if OPT['diag']: I(f'v_writelane_b32 v{VDIAG}, s100, 62')
stamp(0)
stage_dma(0)
stamp(61)
I('s_barrier')
I(f"""v_mov_b32 v236, {L_FULL}
s_lshl_b32 s{t}, s{sH}, 2
v_add_u32 v238, s{t}, v236""")
vSD = 32
I(f'v_mov_b32 v18, 0\nglobal_load_dwordx2 v[16:17], v18, s[20:21] sc1', 'NC')
I(f"""s_lshr_b32 s{t}, s{sH}, 1
s_mul_i32 s{t}, s{t}, 12288
s_and_b32 s{t+1}, s{sH}, 1
s_lshl_b32 s{t+1}, s{t+1}, 7
s_add_u32 s{t}, s{t}, s{t+1}
s_add_u32 s{t}, s{t}, 24576
s_lshl_b32 s{t+1}, s{sH}, 13
s_add_u32 s{t+1}, s{t+1}, 26624
s_cmp_eq_u32 s{sISQ}, 1
s_cselect_b32 s{t}, s{t+1}, s{t}
s_movk_i32 s{t+1}, 192
s_cmov_b32 s{t+1}, 128
s_cselect_b32 s{t+2}, 2, 0
s_cselect_b32 s{t+3}, 64, 32
v_and_b32 v64, s{t+2}, v{vT}
v_xor_b32 v64, v64, v{vT+1}
v_lshlrev_b32 v64, 4, v64
v_mad_u32_u24 v64, v{vT}, s{t+1}, v64
v_add_u32 v64, s{t}, v64
v_xor_b32 v65, s{t+3}, v64
s_lshl_b32 s{t+1}, s{t+1}, 3
v_add_u32 v65, s{t+1}, v65
s_lshl_b32 s{t+5}, s{t+1}, 1""")
sSL2 = t + 5
I(f's_mov_b32 s{sSTR}, s{sSL2}')
mk_srd(SWS, 22, WS_REC); mk_srd(SAF, 22, AF_BYTES)

def nonce_get():
    k.wait_vm('NC')
    L = newlbl('np'); D = newlbl('npd'); R = newlbl('npr')
    I(f's_mov_b32 s{t+4}, 0')
    k.label(L)
    I(f"""v_readfirstlane_b32 s{sN}, v16
v_readfirstlane_b32 s{sN+1}, v17
s_add_u32 s{t+4}, s{t+4}, 1
s_add_u32 s{t}, s{sN}, 800
s_addc_u32 s{t+1}, s{sN+1}, 0
s_sub_u32 s{t}, s{t}, s{sT0}
s_subb_u32 s{t+1}, s{t+1}, s{sT0+1}
s_cmp_eq_u32 s{t+1}, 0
s_cbranch_scc1 {D}
s_memrealtime s[{t}:{t+1}]
s_cmp_eq_u64 s[{sN}:{sN+1}], 0
s_waitcnt lgkmcnt(0)
s_cbranch_scc1 {R}
s_sub_u32 s{t}, s{t}, s{sT0}
s_cmp_gt_u32 s{t}, 3000
s_cbranch_scc1 {D}""")
    k.label(R)
    sv = k.snap()
    I(f"""s_sleep 8
global_load_dwordx2 v[16:17], v18, s[20:21] sc1
s_waitcnt vmcnt(0)
s_cmp_lt_u32 s{t+4}, 0x20000
s_cbranch_scc1 {L}""")
    k.restore(sv)
    k.label(D)

def tab8(vals, dst, idx8):
    lo = sum(v << (8*i) for i, v in enumerate(vals[:4])); hi = sum(v << (8*i) for i, v in enumerate(vals[4:]))
    I(f"""s_mov_b32 s{t}, {lo}
s_mov_b32 s{t+1}, {hi}
s_lshr_b64 s[{t}:{t+1}], s[{t}:{t+1}], s{idx8}
s_and_b32 s{dst}, s{t}, 0xff""")
KBASE = [0, 16, 32, 47, 62, 76, 90, 104]
NSTEP = [16, 16, 15, 15, 14, 14, 14, 14]
PC0 = [15, 19, 0, 2, 5, 7, 9, 12]
PCN = [3, 3, 2, 2, 2, 2, 2, 2]
if OPT['lvl']:
    KBASE = [0, 16, 32, 46, 60, 75, 89, 104]
    NSTEP = [16, 16, 14, 14, 15, 14, 15, 14]
    PC0 = [15, 19, 0, 7, 0, 7, 0, 7]
    PCN = [3, 3, 6, 6, 7, 7, 7, 7]
SWC = SSL
sBROWC, sNVC = 100, 101
def p2_params(helper):
    I(f's_lshl_b32 s{t+2}, s{sWAVE}, 3')
    tab8(KBASE, sABASE, t+2); tab8(NSTEP, sNV, t+2)
    if helper:
        I(f"""s_lshl_b32 s{t+3}, s{sCB2}, 7
s_add_u32 s{t+3}, s{t+3}, {W_PK >> 11}
s_add_u32 s{sBROW}, s{sABASE}, s{t+3}
s_lshl_b32 s{t+2}, s{sH}, 3""")
        tab8(KBASE, sBROWC, t+2); tab8(NSTEP, sNVC, t+2)
        I(f's_add_u32 s{sBROWC}, s{sBROWC}, s{t+3}')
    I(f"""s_lshl_b32 s{sLB2}, s{sH}, 11
s_mul_i32 s{sROT}, s{sCB2}, {OPT['rot']}
s_mul_i32 s{t}, s{sRB2}, {OPT['rotb']}
s_add_u32 s{sROT}, s{sROT}, s{t}
s_mul_i32 s{t}, s{sRB2}, {2*118}
s_add_u32 s{sABASE}, s{sABASE}, s{t}""")

ACC, PK, VA1, VA2, VL16, VXR = 0, 64, 240, 243, 246, 250
HPK = 148
def p2_addr():
    I(f"""v_lshlrev_b32 v{VL16}, 4, v{VLANE}
v_add_u32 v{VA1}, s{sLB2}, v{VL16}
v_add_u32 v{VA1+1}, 0x10000, v{VA1}
v_add_u32 v{VA1+2}, 0x20000, v{VA1}""")
def b2_setup():
    p2_params(True)
    p2_addr()
    I(f"""v_and_b32 v{vT+4}, 4, v{vT}
v_and_b32 v{vT+5}, 1, v{vT}
v_add_u32 v{vT+4}, v{vT+4}, v{vT+5}
v_bfe_u32 v{vT+5}, v{VLANE}, 2, 1
v_lshl_add_u32 v{vT+4}, v{vT+5}, 1, v{vT+4}
v_lshlrev_b32 v{vT+4}, 10, v{vT+4}
v_bfe_u32 v{vT+5}, v{vT}, 1, 1
v_lshl_add_u32 v{vT+4}, v{vT+5}, 6, v{vT+4}
v_and_b32 v{vT+5}, 3, v{VLANE}
v_lshl_add_u32 v{vB2}, v{vT+5}, 4, v{vT+4}""")

SIG_L = [13,14,15,16,17,18, 6,7,8,9, 3,4,5, 0,1,2]
PKR = [64 + 8*j for j in range(16)]
HAW = [192 + 8*j for j in range(5)]
def b2_off(step, own):
    I(f"""s_add_u32 s{t+2}, s{sROT}, {step}
s_and_b32 s{t+2}, s{t+2}, 15
s_add_u32 s{t}, s{sBROW if own else sBROWC}, s{t+2}
s_lshl_b32 s{t}, s{t}, 11
s_cmp_lt_u32 s{t+2}, s{sNV if own else sNVC}
s_cselect_b32 s{t}, s{t}, {OOB}""")
def b2_dma(step, own, tag):
    sig = SIG_L[step]
    b2_off(step, own)
    k.throttle(OPT['thrd'])
    I(f"""s_add_u32 m0, s{sLB2}, {sig*8192}
buffer_load_dwordx4 v{VL16}, {srd(SWS)}, s{t} offen sc1 lds
buffer_load_dwordx4 v{VL16}, {srd(SWS)}, s{t} offen offset:1024 sc1 lds""", tag)
def b2_raw(step, own, d, tag):
    b2_off(step, own)
    k.throttle(OPT['thrb'])
    I(f"""buffer_load_dwordx4 v[{d}:{d+3}], v{VL16}, {srd(SWS)}, s{t} offen sc1
buffer_load_dwordx4 v[{d+4}:{d+7}], v{VL16}, {srd(SWS)}, s{t} offen offset:1024 sc1""", tag)
L_RST = L_AOS + 208*16
def row_stats():
    vA = 212
    I(f's_mov_b32 s{t}, 0x3f803f80\ns_waitcnt vmcnt(0)')
    for d in range(4):
        for a in range(3):
            D = vRD + 4*a + d
            I(f'v_dot2_f32_bf16 v{vA+2*a}, v{D}, s{t}, ' + ('0' if d == 0 else f'v{vA+2*a}'))
            I(f'v_dot2_f32_bf16 v{vA+2*a+1}, v{D}, v{D}, ' + ('0' if d == 0 else f'v{vA+2*a+1}'))
    I('s_nop 2')
    for step in ('row_shr:1 row_mask:0xf bank_mask:0xf bound_ctrl:0', 'row_shr:2 row_mask:0xf bank_mask:0xf bound_ctrl:0',
                 'row_shr:4 row_mask:0xf bank_mask:0xf bound_ctrl:0', 'row_shr:8 row_mask:0xf bank_mask:0xf bound_ctrl:0',
                 'row_bcast:15 row_mask:0xa bank_mask:0xf', 'row_bcast:31 row_mask:0xc bank_mask:0xf'):
        for i in range(6): I(f'v_add_f32_dpp v{vA+i}, v{vA+i}, v{vA+i} {step}')
    I(f"""s_mul_i32 s{t}, s{sWAVE}, 24
s_add_u32 s{t}, s{t}, {L_RST}
v_mov_b32 v218, s{t}
s_mov_b32 exec_lo, 0
s_mov_b32 exec_hi, 0x80000000
s_mov_b32 s{t+1}, {f32(1/512)}
s_mov_b32 s{t+2}, {f32(1e-5)}""")
    for a in range(3):
        G = vA + 2*a
        I(f"""v_mul_f32 v{G}, s{t+1}, v{G}
v_mul_f32 v{G+1}, s{t+1}, v{G+1}
v_fma_f32 v{G+1}, -v{G}, v{G}, v{G+1}
v_max_f32 v{G+1}, 0, v{G+1}
v_add_f32 v{G+1}, s{t+2}, v{G+1}
ds_write_b64 v218, v[{G}:{G+1}] offset:{8*a}""")
    I('s_mov_b64 exec, -1')
def row_publish():
    I(f"""s_mul_i32 s{t}, s{sH}, 24
s_add_u32 s{t}, s{t}, {L_RST}
v_min_u32 v72, 2, v{VLANE}
v_lshl_add_u32 v73, v72, 3, s{t}
ds_read_b64 v[76:77], v73
s_mul_i32 s{t}, s{sRB}, 192
s_mul_i32 s{t+1}, s{sCOL}, 12
s_add_u32 s{t}, s{t}, s{t+1}
s_mul_i32 s{t+1}, s{sH}, 3
s_add_u32 s{t}, s{t}, s{t+1}
s_lshl_b32 s{t}, s{t}, 4
s_add_u32 s{t}, s{t}, {W_RS}
s_cmp_lt_u32 s{sCOL}, 16
s_cselect_b32 s{t}, s{t}, {OOB}
v_lshlrev_b32 v72, 4, v72
v_mov_b32 v78, s{sN}
v_mov_b32 v79, s{sN+1}
s_waitcnt lgkmcnt(0)
buffer_store_dwordx4 v[76:79], v72, {srd(SWS)}, s{t} offen sc1""", 'PUB')

def slab_reads():
    for a in range(8):
        I(f'ds_read_b128 v[{vSD+4*a}:{vSD+4*a+3}], v{64 + (a & 1)}')
        if a & 1 and a < 7: I(f'v_add_u32 v64, s{sSTR}, v64\nv_add_u32 v65, s{sSTR}, v65')
    I('s_waitcnt lgkmcnt(0)')

def col_stats():
    vA = 90
    for a in range(8):
        for d in range(4):
            D = vSD + 4*a + d
            if a == 0:
                I(f'v_lshlrev_b32 v{vA+2*d}, 16, v{D}\nv_and_b32 v{vA+2*d+1}, 0xffff0000, v{D}')
            else:
                I(f'v_lshlrev_b32 v72, 16, v{D}\nv_and_b32 v73, 0xffff0000, v{D}\nv_add_f32 v{vA+2*d}, v{vA+2*d}, v72\nv_add_f32 v{vA+2*d+1}, v{vA+2*d+1}, v73')
    for e in range(4): I(f'v_permlane32_swap_b32 v{vA+e}, v{vA+e+4}')
    for e in range(4): I(f'v_add_f32 v{vA+e}, v{vA+e}, v{vA+e+4}')
    for e in range(2): I(f'v_permlane16_swap_b32 v{vA+e}, v{vA+e+2}')
    for e in range(2): I(f'v_add_f32 v{vA+e}, v{vA+e}, v{vA+e+2}')
    for e in range(2): I(f'v_add_f32_dpp v{vA+8+e}, v{vA+e}, v{vA+e} row_ror:8 row_mask:0xf bank_mask:0xf')
def col_publish():
    vA = 90
    I(f"""v_mov_b32 v{vA+10}, s{sN}
v_mov_b32 v{vA+11}, s{sN+1}
v_lshrrev_b32 v72, 4, v{VLANE}
v_lshl_add_u32 v72, v{vT+1}, 2, v72
v_lshlrev_b32 v72, 4, v72
v_and_b32 v73, 8, v{VLANE}
v_cmp_eq_u32 vcc, 0, v73
v_mov_b32 v73, {OOB}
v_cndmask_b32 v72, v73, v72, vcc
s_lshl_b32 s{t}, s{sCOL}, 14
s_lshl_b32 s{t+1}, s{sS0}, 11
s_add_u32 s{t}, s{t}, s{t+1}
s_lshl_b32 s{t+1}, s{sH}, 9
s_add_u32 s{t}, s{t}, s{t+1}
s_add_u32 s{t}, s{t}, {W_CSP}
buffer_store_dwordx4 v[{vA+8}:{vA+11}], v72, {srd(SWS)}, s{t} offen sc1""", 'PUB')

vCL = 4*2+2
vCL = 20
sVAL = t + 8
def collect_setup():
    I(f"""s_lshl_b32 s{t}, s{sH}, 9
s_lshl_b32 s{t+1}, s{sCOL}, 14
s_add_u32 s{t}, s{t}, s{t+1}
s_add_u32 s{t}, s{t}, {W_CSP}
v_and_b32 v200, 31, v{VLANE}
v_lshlrev_b32 v200, 4, v200
v_lshrrev_b32 v201, 5, v{VLANE}
v_lshl_add_u32 v200, v201, 13, v200
v_add_u32 v200, s{t}, v200
s_lshl_b32 s{t}, s{sH}, 6
v_add_u32 v202, s{t}, v{VLANE}
s_mul_i32 s{t}, s{sRB}, 192
s_lshl_b32 s{t+1}, s{sISQ}, 4
s_sub_i32 s{t}, s{t}, s{t+1}
v_add_u32 v201, s{t}, v202
s_add_u32 s{t+1}, s{t+1}, 192
v_cmp_gt_u32 vcc, s{t+1}, v202
s_mov_b64 s[{t+2}:{t+3}], vcc
v_mov_b32 v203, 2048
v_cmp_gt_u32 vcc, v203, v201
s_and_b64 s[{sVAL}:{sVAL+1}], vcc, s[{t+2}:{t+3}]
v_lshlrev_b32 v201, 4, v201
v_add_u32 v201, {W_RS}, v201
v_mov_b32 v203, {OOB}
v_cndmask_b32 v201, v203, v201, s[{sVAL}:{sVAL+1}]
v_lshlrev_b32 v204, 4, v202
v_add_u32 v204, {L_AOS}, v204
v_mov_b32 v203, {L_SCR}
v_cndmask_b32 v204, v203, v204, s[{t+2}:{t+3}]
v_lshlrev_b32 v205, 2, v202
v_add_u32 v205, {L_SM}, v205
s_lshl_b32 s{t}, s{sH}, 8
s_add_u32 s{t}, s{t}, {L_CS}
v_and_b32 v203, 31, v{VLANE}
v_lshlrev_b32 v203, 3, v203
v_add_u32 v203, s{t}, v203
v_and_b32 v206, 15, v{VLANE}
v_mov_b32 v207, s{sBROW}
v_mov_b32 v208, s{sBROWC}
v_mov_b32 v209, s{sNV}
v_mov_b32 v210, s{sNVC}
v_cmp_gt_u32 vcc, 32, v{VLANE}
v_cndmask_b32 v207, v208, v207, vcc
v_cndmask_b32 v209, v210, v209, vcc
v_add_u32 v209, -1, v209
v_min_u32 v206, v206, v209
v_add_u32 v206, v206, v207
v_subrev_u32 v206, {W_PK >> 11}, v206
v_lshlrev_b32 v206, 4, v206
v_add_u32 v206, {W_PF}, v206""")
def collect_loads(tag):
    for p in range(4):
        if p < 2: I(f'buffer_load_dwordx4 v[{vCL+4*p}:{vCL+4*p+3}], v200, {srd(SWS)}, 0 offen offset:{p*2048} sc1', tag)
        else: I(f's_movk_i32 s{t}, {p*2048}\nbuffer_load_dwordx4 v[{vCL+4*p}:{vCL+4*p+3}], v200, {srd(SWS)}, s{t} offen sc1', tag)
    I(f'buffer_load_dwordx4 v[{vCL+16}:{vCL+19}], v201, {srd(SWS)}, 0 offen sc1', tag)
    I(f'buffer_load_dwordx2 v[{vCL+20}:{vCL+21}], v206, {srd(SWS)}, 0 offen sc1', tag)
def collect_check(ok):
    I(f"""v_cmp_eq_u64 vcc, s[{sN}:{sN+1}], v[{vCL+18}:{vCL+19}]
s_orn2_b64 s[{t+2}:{t+3}], vcc, s[{sVAL}:{sVAL+1}]
v_cmp_eq_u64 vcc, s[{sN}:{sN+1}], v[{vCL+20}:{vCL+21}]
s_and_b64 s[{t+2}:{t+3}], s[{t+2}:{t+3}], vcc""")
    for p in range(4):
        I(f"""v_cmp_eq_u64 vcc, s[{sN}:{sN+1}], v[{vCL+4*p+2}:{vCL+4*p+3}]
s_and_b64 s[{t+2}:{t+3}], s[{t+2}:{t+3}], vcc""")
    I(f's_cmp_eq_u64 s[{t+2}:{t+3}], -1\ns_cbranch_scc1 {ok}')
def collect_finish():
    k.wait_vm('CL')
    ok = newlbl('clok'); L = newlbl('clre')
    collect_check(ok)
    I(f's_mov_b32 s{t+4}, 0')
    k.label(L)
    sv = k.snap()
    I('s_sleep 4')
    collect_loads(None)
    I(f's_waitcnt vmcnt(0)\ns_add_u32 s{t+4}, s{t+4}, 1')
    collect_check(ok)
    I(f's_cmp_lt_u32 s{t+4}, 0x20000\ns_cbranch_scc1 {L}')
    k.restore(sv)
    k.label(ok)
    R = vCL + 16
    I(f"""v_add_f32 v{vCL}, v{vCL}, v{vCL+4}
v_add_f32 v{vCL+1}, v{vCL+1}, v{vCL+5}
v_add_f32 v{vCL+8}, v{vCL+8}, v{vCL+12}
v_add_f32 v{vCL+9}, v{vCL+9}, v{vCL+13}
v_add_f32 v{vCL}, v{vCL}, v{vCL+8}
v_add_f32 v{vCL+1}, v{vCL+1}, v{vCL+9}
v_cndmask_b32 v{R}, 0, v{R}, s[{sVAL}:{sVAL+1}]
v_cndmask_b32 v{R+2}, 1.0, v{R+1}, s[{sVAL}:{sVAL+1}]
v_mov_b32 v{vCL+2}, v{vCL}
v_mov_b32 v{vCL+3}, v{vCL+1}
v_rsq_f32 v{R+1}, v{R+2}
s_cmp_eq_u32 s{sISQ}, 1
s_mov_b32 s{t}, {f32(-LOG2E)}
s_cmov_b32 s{t}, {f32(0.25*LOG2E)}
v_permlane32_swap_b32 v{vCL}, v{vCL+2}
v_permlane32_swap_b32 v{vCL+1}, v{vCL+3}
v_mul_f32 v{R+3}, s{t}, v{R+1}
v_add_f32 v{vCL}, v{vCL}, v{vCL+2}
v_add_f32 v{vCL+1}, v{vCL+1}, v{vCL+3}
ds_write_b128 v204, v[{R}:{R+3}]
ds_write_b32 v205, v{R}
ds_write_b32 v205, v{R+1} offset:1024
ds_write_b64 v203, v[{vCL}:{vCL+1}]
ds_write_b64 v236, v[16:17] offset:{L_NONCE - L_FULL}
s_waitcnt lgkmcnt(0)""")

def b2_touch(part):
    if part == 0:
        mk_srd(SOUT, 16, 1376*1024)
        I(f"""s_lshl_b32 s{t}, s{sSLOTID}, 2
s_add_u32 s{t}, s{t}, s{sH}
s_mul_i32 s{t}, s{t}, 43*256
v_lshlrev_b32 v48, 7, v{VLANE}
v_add_u32 v48, s{t}, v48
v_cmp_gt_u32 vcc, 43, v{VLANE}
v_mov_b32 v50, {OOB}
v_cndmask_b32 v48, v50, v48, vcc
buffer_load_dword v51, v48, {srd(SOUT)}, 0 offen""", 'TB')
    elif part == 1:
        I(f"""s_movk_i32 s{t}, 43*128
buffer_load_dword v52, v48, {srd(SOUT)}, s{t} offen""", 'TB')
    else:
        I(f"""s_lshl_b32 s{t}, s{sSLOTID}, 2
s_add_u32 s{t}, s{t}, s{sH}
s_lshl_b32 s{t}, s{t}, 12
v_and_b32 v48, 31, v{VLANE}
v_lshlrev_b32 v48, 7, v48
v_add_u32 v48, s{t}, v48""")
        mk_srd(SOUT, 8, 512*1024)
        I(f'buffer_load_dword v53, v48, {srd(SOUT)}, 0 offen', 'TB')
def pack_load():
    I(f"""s_and_b32 s{t}, s2, 7
s_lshr_b32 s{t+1}, s{sSLOTID}, 1
s_lshl_b32 s{t+1}, s{t+1}, 3
s_add_u32 s{t}, s{t}, s{t+1}
s_and_b32 s{t+1}, s{sSLOTID}, 1
s_lshl_b32 s{t+1}, s{t+1}, 2
s_add_u32 s{t+1}, s{t+1}, s{sH}
s_lshl_b32 s{t+2}, s{t+1}, 7
s_add_u32 s{sPKI}, s{t+2}, s{t}
s_cmp_lt_u32 s{t}, 32
s_cselect_b32 s{SOUT}, s8, s16
s_cselect_b32 s{SOUT+1}, s9, s17
s_mov_b32 s{SOUT+2}, {1376*1024}
s_cmov_b32 s{SOUT+2}, {512*1024}
s_mov_b32 s{SOUT+3}, 0x20000
s_cselect_b32 s{t+3}, 0, 32
@@PKMAP
s_lshl_b32 s{t}, s{t}, 14
s_add_u32 s{t}, s{t}, s{t+2}
s_add_u32 s{t+1}, s{t}, 8192
s_mov_b32 s{t+2}, {MISC - 2048}
s_cmp_ge_u32 s{sH}, 1
s_cmov_b32 s{t+2}, {MISC}
s_cmp_ge_u32 s{sH}, 2
s_cmov_b32 s{t+2}, {MISC + 4096}
s_cmp_ge_u32 s{sH}, 3
s_cmov_b32 s{t+2}, {MISC + 6144}
s_mov_b32 m0, s{t+2}
s_cmp_eq_u32 s{t+3}, 0
buffer_load_dwordx4 v{vB2}, {srd(SOUT)}, s{t} offen{NTB} lds
s_add_u32 m0, s{t+2}, 1024
s_cmp_eq_u32 s{t+3}, 0
buffer_load_dwordx4 v{vB2}, {srd(SOUT)}, s{t+1} offen{NTB} lds""", 'PKL')
    I(f"""v_lshrrev_b32 v112, 5, v{VLANE}
v_lshlrev_b32 v112, 10, v112
v_bfe_u32 v113, v{VLANE}, 2, 1
v_lshl_add_u32 v112, v113, 7, v112
v_bfe_u32 v113, v{VLANE}, 3, 1
v_lshl_add_u32 v112, v113, 6, v112
v_bfe_u32 v113, v{VLANE}, 4, 1
v_lshl_add_u32 v112, v113, 5, v112
v_and_b32 v113, 3, v{VLANE}
v_lshl_add_u32 v112, v113, 3, v112
v_add_u32 v112, s{t+2}, v112
v_add_u32 v113, 512, v112""")
    pm = f's_sub_u32 s{t}, s{t}, s{t+3}'
    if OPT['lvl']:
        pm = f"""s_mul_i32 s{t+4}, s{t}, 3
  s_sub_u32 s{t+5}, s{t+4}, {3*32-2}
  s_cmp_ge_u32 s{t}, 60
  s_cselect_b32 s{t+6}, {3*60 - (3*32-2)}, 0
  s_cmp_ge_u32 s{t}, 89
  s_cselect_b32 s{t+6}, {3*89-1 - (3*32-2)}, s{t+6}
  s_sub_u32 s{t+5}, s{t+5}, s{t+6}
  s_cmp_lt_u32 s{t}, 32
  s_cselect_b32 s{t}, s{t}, s{t+5}"""
    k.out = [x.replace('@@PKMAP', pm) for x in k.out]
def pack_store():
    k.wait_vm('PKL')
    for ct in range(2):
        I(f'ds_read_b64_tr_b16 v[{104+4*ct}:{105+4*ct}], v112 offset:{ct*256}\nds_read_b64_tr_b16 v[{106+4*ct}:{107+4*ct}], v113 offset:{ct*256}')
    I(f"""s_lshl_b32 s{t}, s{sPKI}, 11
s_add_u32 s{t}, s{t}, {W_PK}
s_waitcnt lgkmcnt(0)
buffer_store_dwordx4 v[104:107], v{vL16}, {srd(SWS)}, s{t} offen sc1
buffer_store_dwordx4 v[108:111], v{vL16}, {srd(SWS)}, s{t} offen offset:1024 sc1""", 'PKS')
def pack_flag():
    k.wait_vm('PKS')
    I(f"""s_lshl_b32 s{t}, s{sPKI}, 4
s_add_u32 s{t}, s{t}, {W_PF}
v_mov_b32 v104, s{sN}
v_mov_b32 v105, s{sN+1}
v_mov_b32 v106, 0
buffer_store_dwordx2 v[104:105], v106, {srd(SWS)}, s{t} offen sc1""", 'PUB')
def touch_at(i):
    if OPT['ps'] == i: pack_store()
    if OPT['pl'] == i: pack_load()
    if OPT['pf'] == i: pack_flag()
    if OPT['tl'] == i: tlb_touch()
    for p in range(3):
        if OPT[f'tb{p}'] == i: b2_touch(p)

def tlb_touch():
    mk_srd(SOUT, 18, 2048*1024)
    I(f"""s_mul_i32 s{t}, s{sRB2}, {2*118*1024}
s_lshl_b32 s{t+1}, s{sCB2}, 18
s_add_u32 s{t+1}, s{t+1}, {W_PK}
s_cmp_eq_u32 s{sH}, 1
s_cmov_b32 s{t}, s{t+1}
s_cmp_eq_u32 s{sH}, 3
s_cmov_b32 s{t}, {W_FL}
s_cmp_eq_u32 s{sH}, 2
s_cmov_b32 s{t}, {OOB}
s_lshl_b32 s{t+1}, s{sRB2}, 16
s_cselect_b32 s{t+1}, s{t+1}, {OOB}
v_lshlrev_b32 v114, 12, v{VLANE}
v_min_u32 v114, {59*4096}, v114
buffer_load_dword v115, v114, {srd(SWS)}, s{t} offen sc1
v_and_b32 v114, 0xffff, v114
buffer_load_dword v116, v114, {srd(SOUT)}, s{t+1} offen""", 'TL')
def landed(i):
    if not (OPT.get('fst') and i >= 3): stamp(9 + 2*i)
    k.wait_vm(f'D{i}'); signal_full(i + 1); stamp(10 + 2*i); touch_at(i)
SLS = t + 7
b2_setup(); collect_setup()
touch_at(0)
stage_dma(1, 1)
spin(L_FULL, 1); slab_reads()
stamp(1)
touch_at(1)
stage_dma(2, 2)
def advance(i, extra_full=False):
    L1 = newlbl('adv')
    I(f"""ds_read_b128 v[{VFL}:{VFL+3}], v236 offset:{L_FREE - L_FULL}
s_mov_b32 s{t+4}, 0
s_waitcnt lgkmcnt(0)
v_min_u32 v{VFL}, v{VFL}, v{VFL+1}
v_min3_u32 v{VFL}, v{VFL}, v{VFL+2}, v{VFL+3}
v_cmp_gt_u32 vcc, {i-2}, v{VFL}
s_nop 0
s_cbranch_vccz {L1}""")
    sv = k.snap()
    k.wait_vm(f'D{i-1}'); signal_full(i)
    spin(L_FREE, i - 2)
    k.restore(sv)
    k.label(L1)
    if extra_full: spin(L_FULL, 2)
    stage_dma(i, i)
    touch_at(i - 1)
col_stats(); nonce_get(); col_publish()
advance(3, True); row_publish()
advance(4)
advance(5)
if OPT['cl'] == 5: collect_loads('CL')
advance(6)
if OPT['cl'] == 6: collect_loads('CL')
if OPT['cl'] == 5:
    collect_finish()
    for j in range(OPT['nr6']): b2_raw(j, True, PKR[j], 'RP')
advance(7)
if OPT['cl'] == 6: collect_finish()
for j in range(OPT['nr6'] if OPT['cl'] == 5 else 0, OPT['nr0']): b2_raw(j, True, PKR[j], 'RP')
stamp(23); k.wait_vm('D7'); stamp(24)
signal_full(9)
for j in range(max(OPT['nr0'], OPT['nr6'] if OPT['cl'] == 5 else 0), OPT['nr7']): b2_raw(j, True, PKR[j], 'RP')
spin(L_FREE, 6); stamp(2)
for j in range(6): b2_dma(j, False, 'L')
for j in range(OPT['nr7'], OPT['nr8']): b2_raw(j, True, PKR[j], 'RP')
spin(L_FREE, 7)
for j in range(10, 16): b2_dma(j, False, 'L')
for j in range(OPT['nr8'], OPT['nr9']): b2_raw(j, True, PKR[j], 'RP')
spin(L_FREE, 9 if OPT['hold'] else 8); stamp(3)
for j in range(6, 10): b2_dma(j, False, 'L')
for j in range(OPT['nr9'], 16): b2_raw(j, True, PKR[j], 'RP')
I('s_waitcnt vmcnt(0)')
signal_full(10)
k.vm_reset()
stamp(4)

k.label('L_P2')
if OPT['walk']: k.begin_region('P')
k.c('---- phase 2 setup')
VOO, VP = 248, 232
I(f's_lshl_b32 s{t+5}, s{sWAVE}, 3')
tab8(PC0, t+6, t+5); tab8(PCN, t+7, t+5)
I(f"""s_mul_i32 s{t}, s{sRB2}, 86
s_lshr_b32 s{t}, s{t}, 8
s_mul_i32 s{t}, s{t}, 23
s_add_u32 s{t}, s{t}, s{t+6}
v_lshrrev_b32 v1, 2, v{VLANE}
v_min_u32 v1, s{t+7}, v1
v_add_u32 v1, s{t}, v1
v_lshlrev_b32 v1, {max(7, OPT['fsh']+2)}, v1
v_and_b32 v2, 3, v{VLANE}
v_lshl_add_u32 v1, v2, {OPT['fsh']}, v1
s_and_b32 s{t}, s{sWAVE}, {4 if OPT['lvl'] else 0}
s_lshl_b32 s{t}, s{t}, 4
s_add_u32 s{t}, s{t}, {W_FL}
v_add_u32 v{VP}, s{t}, v1
s_lshl_b32 s{t}, s{sWAVE}, 3
s_lshl_b32 s{t+1}, s{sRB2}, 6
s_add_u32 s{t}, s{t}, s{t+1}
v_lshrrev_b32 v1, 3, v{VLANE}
v_add_u32 v1, s{t}, v1
v_lshlrev_b32 v1, 10, v1
v_and_b32 v2, 7, v{VLANE}
v_lshl_add_u32 v1, v2, 4, v1
s_lshl_b32 s{t}, s{sCB2}, 7
v_add_u32 v{VOO}, s{t}, v1
v_add_u32 v{VOO+1}, {118*1024}, v{VL16}
s_mov_b32 s{t+4}, 0""")
stamp(5)
if OPT['pmask']: I('s_mov_b32 exec_hi, 0')
k.label('L_POLL')
I(f"""buffer_load_dwordx2 v[{VP+2}:{VP+3}], v{VP}, {srd(SWS)}, 0 offen{OPT_FLD}
s_add_u32 s{t+4}, s{t+4}, 1
s_waitcnt vmcnt(0)
v_cmp_eq_u64 vcc, s[{sN}:{sN+1}], v[{VP+2}:{VP+3}]
s_cmp_eq_u64 vcc, exec
s_cbranch_scc1 L_POLLED
s_sleep {OPT['psleep']}
s_cmp_lt_u32 s{t+4}, 0x20000
s_cbranch_scc1 L_POLL""")
k.label('L_POLLED')
I('s_mov_b64 exec, -1')
if OPT['pbar']: I('s_barrier')
k.vm_reset()
stamp(6)
def a_load(i, AW):
    d = AW[i % len(AW)]
    I(f"""s_add_u32 s{t+2}, s{sROT}, {i}
s_and_b32 s{t+2}, s{t+2}, 15
s_add_u32 s{t}, s{sABASE}, s{t+2}
s_lshl_b32 s{t}, s{t}, 10
s_cmp_lt_u32 s{t+2}, s{sNV}
s_cselect_b32 s{t}, s{t}, {OOB}
buffer_load_dwordx4 v[{d}:{d+3}], v{VL16}, {srd(SAF)}, s{t} offen{OPT_ALD}
buffer_load_dwordx4 v[{d+4}:{d+7}], v{VOO+1}, {srd(SAF)}, s{t} offen{OPT_ALD}""", f'A{i}')
def frag_reads(i, d):
    off = SIG_L[i] * 8192; r = off >> 16; off &= 0xffff
    I(f'ds_read_b128 v[{d}:{d+3}], v{VA1+r} offset:{off}\nds_read_b128 v[{d+4}:{d+7}], v{VA1+r} offset:{off+1024}')
def p2_stream(helper):
    AW = HAW[:OPT['naw']] if helper else [96 + 8*j for j in range(OPT['nawc'])]
    nw = len(AW)
    BD = 64
    w0 = min(nw, OPT['w0'])
    for i in range(w0): a_load(i, AW)
    if not helper:
        L = newlbl('pw'); D = newlbl('pwd')
        I(f's_lshl_b32 s{t}, s{sH}, 2\ns_add_u32 s{t}, s{t}, {L_FULL}\nv_mov_b32 v238, s{t}\ns_mov_b32 s{t+4}, 0')
        k.label(L)
        I(f"""ds_read_b32 v239, v238
s_add_u32 s{t+4}, s{t+4}, 1
s_waitcnt lgkmcnt(0)
v_cmp_gt_u32 vcc, 10, v239
s_cmp_lt_u32 s{t+4}, 0x400000
s_cbranch_vccz {D}
s_cbranch_scc1 {L}""")
        k.label(D)
        frag_reads(0, BD); frag_reads(1, BD + 8)
    stamp(25)
    for i in range(16):
        if not helper and i + 2 < 16: frag_reads(i + 2, BD + 8*((i + 2) % 3))
        b = PKR[i] if helper else BD + 8*(i % 3)
        a = AW[i % nw]
        if i == 0 and w0 < nw:
            k.wait_vm(f'A{OPT["w0w"]}')
            for j in range(w0, nw): a_load(j, AW)
        k.wait_vm(f'A{i}', None if helper else 2*min(2, 15 - i))
        if i == 12 and OPT['midbar']: I('s_barrier')
        Ls = None
        if OPT['skip'] and i > 0:
            Ls = newlbl('sk')
            I(f's_add_u32 s{t+3}, s{sROT}, {i}\ns_and_b32 s{t+3}, s{t+3}, 15\ns_cmp_lt_u32 s{t+3}, s{sNV}\ns_cbranch_scc0 {Ls}')
        for mt in range(2):
            for ct in range(2):
                r = ACC + 32*mt + 16*ct
                if not (OPT.get('nomf') and i > 0): I(f'v_mfma_f32_32x32x16_bf16 v[{r}:{r+15}], v[{b+4*ct}:{b+4*ct+3}], v[{a+4*mt}:{a+4*mt+3}], ' + ('0' if i == 0 else f'v[{r}:{r+15}]'))
        if Ls: k.label(Ls)
        if i + nw < 16: a_load(i + nw, AW)
        if i + nw == 16 or (nw == 16 and i == 0): I(f'buffer_load_dwordx4 v[{VXR}:{VXR+3}], v{VOO}, {srd(SX)}, 0 offen', 'XR')
        if i in (0, 3, 7, 11): stamp(26 + (i + 1)//4)
I(f's_cmp_lt_u32 s{sWAVE}, 4\ns_cbranch_scc1 L_P2C')
p2_stream(True)
I('s_branch L_P2E')
k.label('L_P2C')
k.vm_reset(); k.pv = []; k.pl = []
p2_stream(False)
k.label('L_P2E')
stamp(7)
k.c('---- reduction + final epilogue')
mk_srd(SOUT, 18, 2048*1024)
XA_ = 232
I(f"""s_lshl_b32 s{t}, s{sWAVE}, 14
s_add_u32 s{t}, s{t}, 24576
v_and_b32 v236, 31, v{VLANE}
v_lshlrev_b32 v236, 8, v236
v_add_u32 v236, s{t}, v236
v_lshrrev_b32 v237, 5, v{VLANE}
v_and_b32 v238, 7, v{VLANE}
v_xor_b32 v237, v237, v238""")
for i2 in range(4): I(f'v_xor_b32 v{XA_+i2}, {2*i2}, v237\nv_lshl_add_u32 v{XA_+i2}, v{XA_+i2}, 4, v236')
if not OPT['midbar']: I('s_barrier')
for mt in range(2 if OPT.get('tx') != 1 else 0):
    for ct in range(2):
        for i2 in range(4):
            r = 32*mt + 16*ct + 4*i2
            I(f'ds_write_b128 v{XA_+i2}, v[{r}:{r+3}] offset:{mt*8192 + ct*128}')
I(f"""s_lshl_b32 s{t}, s{sWAVE}, 11
s_add_u32 s{t}, s{t}, 24576
v_lshrrev_b32 v64, 3, v{VLANE}
v_and_b32 v65, 3, v{VLANE}
v_lshlrev_b32 v65, 1, v65
v_xor_b32 v65, v65, v64
v_lshlrev_b32 v65, 4, v65
v_lshl_add_u32 v65, v64, 8, v65
v_and_b32 v64, 4, v{VLANE}
v_lshl_add_u32 v65, v64, 5, v65
v_add_u32 v236, s{t}, v65
v_xor_b32 v237, 16, v236
v_add_u32 v238, 0x10000, v236
v_add_u32 v239, 0x10000, v237
s_mov_b32 s{t}, {f32(-LOG2E)}
s_mov_b32 s{t+1}, {f32(-LOG2E)}
s_mov_b32 s{t+2}, 1.0
s_mov_b32 s{t+3}, 1.0
s_waitcnt vmcnt(0)""")
X = 140
for d in range(4): I(f'v_lshlrev_b32 v{X+2*d}, 16, v{VXR+d}\nv_and_b32 v{X+2*d+1}, 0xffff0000, v{VXR+d}')
I('s_waitcnt lgkmcnt(0)\ns_barrier')
stamp(31)
R = 72
order = [2, 3, 4, 5, 6, 7, 0, 1]
for s_ in (order if OPT.get('tx') != 2 else []):
    for hf in range(2): I(f'ds_read_b128 v[{R+8*s_+4*hf}:{R+8*s_+4*hf+3}], v{236 + 2*(s_ >> 2) + hf} offset:{(s_ & 3)*16384}')
F, E, S0 = R + 16, 148, R
PR = lambda r, p: f'v[{r+2*p}:{r+2*p+1}]'
for n_, s_ in enumerate(order[1:6]):
    I(f's_waitcnt lgkmcnt({12 - 2*n_})')
    for p in range(4): I(f'v_pk_add_f32 {PR(F,p)}, {PR(F,p)}, {PR(R+8*s_,p)}')
for p in range(4): I(f'v_pk_mul_f32 {PR(E,p)}, {PR(F,p)}, s[{t}:{t+1}]')
I('s_waitcnt lgkmcnt(0)')
for p in range(4): I(f'v_exp_f32 v{E+2*p}, v{E+2*p}\nv_exp_f32 v{E+2*p+1}, v{E+2*p+1}\nv_pk_add_f32 {PR(S0,p)}, {PR(S0,p)}, {PR(R+8,p)}')
for p in range(4): I(f'v_pk_add_f32 {PR(E,p)}, {PR(E,p)}, s[{t+2}:{t+3}]')
for p in range(4): I(f'v_rcp_f32 v{E+2*p}, v{E+2*p}\nv_rcp_f32 v{E+2*p+1}, v{E+2*p+1}\nv_pk_mul_f32 {PR(F,p)}, {PR(F,p)}, {PR(S0,p)}')
for p in range(4): I(f'v_pk_fma_f32 {PR(F,p)}, {PR(F,p)}, {PR(E,p)}, {PR(X,p)}')
for p in range(4): I(f'v_cvt_pk_bf16_f32 v{E+8+p}, v{F+2*p}, v{F+2*p+1}')
if OPT.get('tx') != 3: I(f'buffer_store_dwordx4 v[{E+8}:{E+11}], v{VOO}, {srd(SOUT)}, 0 offen{OPT_OUTST}')
k.end_region()
if OPT['diag']:
    I('s_waitcnt vmcnt(0)')
    stamp(8)
    I(f"""s_lshl_b32 s{t}, s2, 3
s_add_u32 s{t}, s{t}, s{sWAVE}
s_lshl_b32 s{t}, s{t}, 8
s_add_u32 s{t}, s{t}, {W_DIAG}
v_lshlrev_b32 v1, 2, v{VLANE}
buffer_store_dword v{VDIAG}, v1, {srd(SWS)}, s{t} offen""")
    if OPT['diag'] == 2:
        I(f"""s_cmp_lg_u32 s2, {OPT.get('dw', 0)}
s_cbranch_scc1 L_END
s_and_b32 s{t}, s{sWAVE}, 3
s_cmp_lg_u32 s{t}, 0
s_cbranch_scc1 L_END
s_cmp_eq_u32 s{sWAVE}, 0
s_cselect_b32 s{t}, 8, 44
s_cselect_b32 s{t+1}, 9, 5
v_add_u32 v1, s{t}, v1
v_cmp_gt_u32 vcc, s{t+1}, v{VLANE}
s_and_saveexec_b64 s[{t+2}:{t+3}], vcc
global_store_dword v1, v{VDIAG}, s[20:21]""")
if OPT.get('padto'):
    k.label('L_PAD')
    I(f"""s_memrealtime s[{t}:{t+1}]
s_waitcnt lgkmcnt(0)
s_sub_u32 s{t}, s{t}, s98
s_cmp_lt_u32 s{t}, {OPT['padto']}
s_cbranch_scc1 L_PAD""")
k.label('L_END')
I('s_endpgm')

k.label('L_C')
k.fresh()
I('s_waitcnt lgkmcnt(0)')
if OPT['diag']: I(f'v_writelane_b32 v{VDIAG}, s100, 62')
stamp(0)
if OPT['sct']:
    I(f"""s_lshl_b32 s{t}, s2, 2
s_add_u32 s{t}, s{t}, s{sWAVE}
s_mul_i32 s{t+1}, s{t}, 1376
s_and_b32 s{t+1}, s{t+1}, -64
s_add_u32 s{t+2}, s16, s{t+1}
s_addc_u32 s{t+3}, s17, 0
s_lshl_b32 s{t+1}, s{t}, 9
s_add_u32 s{t+4}, s8, s{t+1}
s_addc_u32 s{t+5}, s9, 0""")
    for i in range(22): I(f's_load_dword s{t+6}, s[{t+2}:{t+3}], {64*i}')
    for i in range(8): I(f's_load_dword s{t+6}, s[{t+4}:{t+5}], {64*i}')
mk_srd(SWS, 22, WS_REC); mk_srd(SAF, 22, AF_BYTES)
p2_params(False)
for r in range(152): I(f'v_mov_b32 v{r}, 0')
row_stats()
I(f"""s_mul_i32 s{t+8}, s{sRB}, 23
s_add_u32 s{t+8}, s{t+8}, s{sCOL}
s_lshl_b32 s{t+8}, s{t+8}, 7
s_lshl_b32 s{t+9}, s{sWAVE}, 4
s_add_u32 s{t+8}, s{t+8}, s{t+9}
s_add_u32 s{t+8}, s{t+8}, {W_FL}""")
if OPT['walk']:
    I(f"""s_mov_b64 exec, 0
s_cmp_eq_u32 s{sWAVE}, 2
s_cbranch_scc1 @@P0
s_cmp_eq_u32 s{sWAVE}, 3
s_cbranch_scc1 @@P1
s_lshl_b32 s{t}, s{sISQ}, 1
s_add_u32 s{t}, s{t}, s{sWAVE}
s_cmp_eq_u32 s{t}, 0
s_cbranch_scc1 @@F0
s_cmp_eq_u32 s{t}, 1
s_cbranch_scc1 @@F1
s_cmp_eq_u32 s{t}, 2
s_cbranch_scc1 @@Q0
s_branch @@Q1""")
    k.label('L_WRET')
    I('s_mov_b64 exec, -1')
VCF, VFU, VFR, VTM = 248, 246, 245, 247
I(f"""v_mov_b32 v{VFU}, {L_FULL}
s_lshl_b32 s{t}, s{sWAVE}, 2
v_add_u32 v{VFR}, s{t}, v{VFU}
s_cmp_eq_u32 s{sISQ}, 1
s_cbranch_scc1 L_CQ""")
sNEED = t + 11
def c_flag_read(): I(f'ds_read_b128 v[{VCF}:{VCF+3}], v{VFU}')
def c_check(spinl):
    I(f"""v_min_u32 v{VCF}, v{VCF}, v{VCF+1}
v_min3_u32 v{VCF}, v{VCF}, v{VCF+2}, v{VCF+3}
v_cmp_gt_u32 vcc, s{sNEED}, v{VCF}""")
def c_spin_block(spinl, back):
    k.label(spinl)
    I(f's_mov_b32 s{t+4}, 0')
    k.label(spinl + '_l')
    c_flag_read()
    I(f's_add_u32 s{t+4}, s{t+4}, 1\ns_waitcnt lgkmcnt(0)')
    c_check(None)
    if OPT['diag']: I(f's_add_u32 m0, s{sNEED}, 8\ns_nop 0\nv_writelane_b32 v{VDIAG}, s{t+4}, m0')
    I(f's_cmp_lt_u32 s{t+4}, 0x400000\ns_cbranch_vccz {back}\ns_cbranch_scc1 {spinl}_l\ns_branch {back}')

sFLG = t + 8
def flag_prep():
    I(f'v_mov_b32 v247, {L_NONCE}\nds_read_b64 v[248:249], v247')
def early_flag(younger):
    I(f's_mov_b64 exec, 1\ns_waitcnt vmcnt({younger})\nbuffer_store_dwordx2 v[248:249], v{VLANE}, {srd(SWS)}, s{sFLG} offen offset:64 sc1\ns_mov_b64 exec, -1')
def publish_flag():
    stamp(30)
    I(f"""s_mov_b64 exec, 1
s_waitcnt vmcnt(0)
buffer_store_dwordx2 v[248:249], v{VLANE}, {srd(SWS)}, s{sFLG} offen sc1
s_mov_b64 exec, -1
v_readfirstlane_b32 s{sN}, v248
v_readfirstlane_b32 s{sN+1}, v249""")
    if OPT['hold']:
        I(f"""s_lshl_b32 s{t}, s{sWAVE}, 2
s_add_u32 s{t}, s{t}, {L_FREE}
v_mov_b32 v250, s{t}
v_mov_b32 v251, 9
ds_write_b32 v250, v251""")
    stamp(4)
    I('s_setprio 0')
    p2_addr()
    I('s_branch L_P2'); k.end_region()

sSL, sIT = t + 12, t + 13
sDL = t + 10
def next_slot():
    I(f"""s_add_u32 s{sSL}, s{sSL}, 1
s_mov_b32 s{sDL}, {SLOT}
s_cmp_eq_u32 s{sSL}, 3
s_cmov_b32 s{sDL}, {-2*SLOT}
s_cmov_b32 s{sSL}, 0""")
lg = []
def lg_wait(tags):
    idx = max((i for i, x in enumerate(lg) if x in tags), default=None)
    if idx is None: return
    n = min(15, len(lg) - 1 - idx)
    I(f's_waitcnt lgkmcnt({n})')
    del lg[:len(lg) - n]

k.c('---- C FFN')
XF, WF, XA, WA = 144, 192, 240, 242
I(f"""s_lshr_b32 s{t}, s{sWAVE}, 1
s_and_b32 s{t+1}, s{sWAVE}, 1
s_mul_i32 s{t+2}, s{t}, {96*128}
v_and_b32 v150, 15, v{VLANE}
v_bfe_u32 v151, v{VLANE}, 1, 3
v_lshrrev_b32 v152, 4, v{VLANE}
v_xor_b32 v151, v151, v152
v_lshlrev_b32 v150, 7, v150
v_add_u32 v150, s{t+2}, v150
v_lshl_add_u32 v{XA}, v151, 4, v150
v_xor_b32 v{XA+1}, 64, v{XA}
v_bfe_u32 v150, v{VLANE}, 2, 2
v_lshl_add_u32 v150, v152, 3, v150
v_mul_u32_u24 v150, 192, v150
v_and_b32 v151, 3, v{VLANE}
v_lshl_add_u32 v150, v151, 3, v150
v_add_u32 v150, 24576, v150
v_and_b32 v152, 1, v152
s_mul_i32 s{t+2}, s{t+1}, 3""")
for b_ in range(3):
    I(f's_add_u32 s{t+3}, s{t+2}, {b_}\nv_xor_b32 v151, s{t+3}, v152\nv_lshl_add_u32 v{WA+b_}, v151, 5, v150')
I(f's_mov_b32 s{sSL}, 0')
def ffn_reads(j):
    def xr(tt):
        d = XF + 24*j + 4*tt
        return (f'ds_read_b128 v[{d}:{d+3}], v{XA+j} offset:{tt*2048}', ('x', tt, j))
    def wr(b, m, s_):
        d = WF + 24*j + 8*b + 4*m + 2*s_
        return (f'ds_read_b64_tr_b16 v[{d}:{d+1}], v{WA+b} offset:{m*12288 + (32*j+4*s_)*192}', ('w', b, m, s_, j))
    return [xr(0)] + [wr(b, m, s_) for b in range(3) for m in range(2) for s_ in range(2)] + [xr(tt) for tt in range(1, 6)]
def rd(x): I(x[0]); lg.append(x[1])
stamp(1)
I(f's_setprio {OPT["cprio"]}\ns_mov_b32 s{sNEED}, 1\ns_branch L_FSP0')
c_spin_block('L_FSP', 'L_FBK')
c_spin_block('L_FSP0', 'L_FGO')
k.label('L_FGO')
stamp(2)
lg.clear()
FREE_AT = 5
q = ffn_reads(0)
for n in range(36):
    if n >= 1 and n % 2 == 1 and q: rd(q.pop(0))
    if n == FREE_AT: I(f'ds_read_b32 v{VTM}, v{VFU}'); lg.append('free')
assert not q
entry = list(lg)
k.label('L_FLOOP')
m0_ = k.mark()
for j in range(2):
    q = ffn_reads(1 - j)
    n = 0
    for tt in range(6):
        for b in range(3):
            for m in range(2):
                lg_wait({0: [('x', 0, j), ('w', 2, 1, 1, j)], 6: [('x', 2, j)], 18: [('x', 5, j)]}.get(n, []) + (['flag'] if (j, n) == (0, 34) else []) if OPT['cw'] else
                        [('x', tt, j), ('w', b, m, 0, j), ('w', b, m, 1, j)] + (['flag'] if (j, n) == (0, 34) else []))
                if (j, n) == (0, 34):
                    I(f's_add_u32 s{sNEED}, s{sNEED}, 1'); c_check(None); next_slot()
                ac = ((tt >> 1)*3 + b) * 16 + 8*m + 4*(tt & 1); x = XF + 24*j + 4*tt; w = WF + 24*j + 8*b + 4*m
                I(f'v_mfma_f32_16x16x32_bf16 v[{ac}:{ac+3}], v[{w}:{w+3}], v[{x}:{x+3}], v[{ac}:{ac+3}]')
                if (j, n) == (0, 35): I(f'v_add_u32 v{XA}, s{sDL}, v{XA}\nv_add_u32 v{WA}, s{sDL}, v{WA}')
                if (j, n) == (1, 0): I(f'v_add_u32 v{WA+1}, s{sDL}, v{WA+1}\nv_add_u32 v{WA+2}, s{sDL}, v{WA+2}')
                if (j, n) == (1, 1):
                    I(f'v_add_u32 v{XA+1}, s{sDL}, v{XA+1}\ns_cbranch_vccnz L_FSP')
                    k.label('L_FBK')
                if n % 2 == 1 and q: rd(q.pop(0))
                if (j, n) == (0, 20): c_flag_read(); lg.append('flag')
                if (j, n) == (1, FREE_AT):
                    lg_wait([('x', 5, 1)])
                    I(f'v_add_u32_e64 v{VTM}, -1, s{sNEED}\nds_write_b32 v{VFR}, v{VTM} offset:16'); lg.append('free')
                n += 1
    assert not q
assert lg == entry[len(entry)-len(lg):], (lg, entry)
I(f's_cmp_lt_u32 s{sNEED}, 9\ns_cbranch_scc1 L_FLOOP')
k.check_backedge(m0_)
stamp(3)
k.c('---- FFN epilogue')
if OPT['walk']: k.begin_region('F')
ST, CSB, OUTR = 144, 168, 192
VA_ = 204
I(f"""s_waitcnt lgkmcnt(0)
s_lshr_b32 s{t}, s{sWAVE}, 1
s_and_b32 s{t+1}, s{sWAVE}, 1
s_mul_i32 s{t+2}, s{t}, {96*16}
s_add_u32 s{t+2}, s{t+2}, {L_AOS}
v_and_b32 v{VA_}, 15, v{VLANE}
v_lshl_add_u32 v{VA_}, v{VA_}, 4, s{t+2}
s_mul_i32 s{t+2}, s{t+1}, {48*4}
s_add_u32 s{t+2}, s{t+2}, {L_CS}
v_and_b32 v{VA_+1}, 48, v{VLANE}
v_add_u32 v{VA_+1}, s{t+2}, v{VA_+1}""")
def st_rd(tt): I(f'ds_read_b128 v[{ST+4*tt}:{ST+4*tt+3}], v{VA_} offset:{tt*256}')
def cs_rd(b):
    for m in range(2): I(f'ds_read_b128 v[{CSB+8*b+4*m}:{CSB+8*b+4*m+3}], v{VA_+1} offset:{m*512 + b*64}')
st_rd(0); st_rd(1); cs_rd(0)
for tt in range(2, 6): st_rd(tt)
cs_rd(1); cs_rd(2)
flag_prep()
I(f'v_lshlrev_b32 v{VA_+2}, 4, v{VLANE}')
KOFF = [60, 89, 32] if OPT['lvl'] else [32, 33, 34]
I(f"""s_mul_i32 s{t+4}, s{sRB}, 6
s_mul_i32 s{t+2}, s{t}, 3
s_add_u32 s{t+4}, s{t+4}, s{t+2}
s_mul_i32 s{t+4}, s{t+4}, 118
s_lshl_b32 s{t+2}, s{sCOL}, 1
s_add_u32 s{t+2}, s{t+2}, s{t+1}
s_mul_i32 s{t+5}, s{t+2}, 3
s_add_u32 s{t+4}, s{t+4}, s{t+2 if OPT['lvl'] else t+5}
s_lshl_b32 s{t+4}, s{t+4}, 10""")
NEGB = 'op_sel_hi:[1,0,1] neg_lo:[0,1,0] neg_hi:[0,1,0]'
P = lambda r, p: f'v[{r+2*p}:{r+2*p+1}]'
tiles = [(a, b) for b in range(3) for a in range(3)]
EB = [208, 216]
def ph(n):
    a, b = tiles[n]; G = (a*3 + b) * 16; U = G + 8; E = EB[n & 1]; o = OUTR + 4*(n & 1)
    s0 = lambda p: ST + 4*(2*a + (p >> 1)); cg_ = lambda p: P(CSB + 8*b, p & 1); cu_ = lambda p: P(CSB + 8*b + 4, p & 1)
    A = [f'v_pk_fma_f32 {P(G,p)}, {cg_(p)}, v[{s0(p)}:{s0(p)+1}], {P(G,p)} {NEGB}' for p in range(4)] + \
        [f'v_pk_mul_f32 {P(E,p)}, {P(G,p)}, v[{s0(p)+2}:{s0(p)+3}] op_sel:[0,1] op_sel_hi:[1,1]' for p in range(4)]
    B = [f'v_pk_fma_f32 {P(U,p)}, {cu_(p)}, v[{s0(p)}:{s0(p)+1}], {P(U,p)} {NEGB}' for p in range(4)] + \
        [f'v_pk_mul_f32 {P(U,p)}, {P(U,p)}, {P(G,p)}' for p in range(4)]
    X = [f'v_exp_f32 v{E+e}, v{E+e}' for e in range(8)]
    D = [f'v_pk_fma_f32 {P(E,p)}, {P(E,p)}, v[{s0(p)+2}:{s0(p)+3}], v[{s0(p)+2}:{s0(p)+3}] op_sel_hi:[1,0,0]' for p in range(4)]
    R = [f'v_rcp_f32 v{E+e}, v{E+e}' for e in range(8)]
    c_ = lambda p: f'v_cvt_pk_bf16_f32 v{o+p}, v{U+2*p}, v{U+2*p+1}'
    m_ = lambda p: f'v_pk_mul_f32 {P(U,p)}, {P(U,p)}, {P(E,p)}'
    F = [m_(0), m_(2), m_(1), m_(3), c_(0), c_(2), c_(1), c_(3), f'v_permlane16_swap_b32 v{o}, v{o+2}', f'v_permlane16_swap_b32 v{o+1}, v{o+3}']
    S = []
    if a == 0: S.append(f's_add_u32 s{t+6}, s{t+5}, {b}\ns_add_u32 s{t+7}, s{t+4}, {KOFF[b]*1024}\ns_cmp_lt_u32 s{t+6}, 86\ns_cselect_b32 s{t+7}, s{t+7}, {OOB}')
    S.append(f'buffer_store_dwordx4 v[{o}:{o+3}], v{VA_+2}, {srd(SAF)}, s{t+7} offen{OPT_HST}' + (f'\ns_add_u32 s{t+7}, s{t+7}, {118*1024}' if a < 2 else ''))
    return A, B, X, D, R, F, S
def zipI(x, y):
    if OPT['ilv'] == 0:
        for i_ in y + x: I(i_)
        return
    if OPT['ilv'] == 2:
        x = [x[i] + '\n' + x[i+1] for i in range(0, len(x), 2)]; y = [y[i] + '\n' + y[i+1] for i in range(0, len(y), 2)]
    for i in range(max(len(x), len(y))):
        if i < len(x): I(x[i])
        if i < len(y): I(y[i])
I('s_waitcnt lgkmcnt(9)')
for x in ph(0)[0]: I(x)
for n in range(9):
    A, B, X, D, R, F, S = ph(n)
    zipI(X, B)
    for x in D: I(x)
    if n == 0: I('s_waitcnt lgkmcnt(0)')
    zipI(R, ph(n + 1)[0] if n < 8 else [])
    for x in F + S: I(x, 'HS')
    if n == OPT['lva'] and OPT['lvl']: early_flag(n - 5)
publish_flag()

k.label('L_CQ')
k.fresh()
k.c('---- C QKV')
QA, KA, VA = 0, 48, 100
XS, XD, WQ = 152, 192, 216
XA, WA = 240, 244
I(f"""v_and_b32 v160, 15, v{VLANE}
v_bfe_u32 v161, v{VLANE}, 1, 3
v_lshrrev_b32 v162, 4, v{VLANE}
v_xor_b32 v161, v161, v162
v_lshlrev_b32 v163, 7, v160
v_lshl_add_u32 v{XA}, v161, 4, v163
v_xor_b32 v{XA+1}, 64, v{XA}
v_bfe_u32 v163, v{VLANE}, 2, 2
v_lshl_add_u32 v163, v162, 3, v163
v_lshlrev_b32 v163, 7, v163
v_bfe_u32 v164, v{VLANE}, 3, 1
v_and_b32 v165, 1, v162
v_lshl_or_b32 v164, v165, 1, v164
v_xor_b32 v164, s{sWAVE}, v164
v_lshl_add_u32 v163, v164, 5, v163
v_and_b32 v164, 3, v{VLANE}
v_lshl_add_u32 v163, v164, 3, v163
v_add_u32 v{WA}, 26624, v163""")
sPAR, sOA, sOB, sVA_, sVB_ = sM, sM+2, sM+4, sM+6, sM+8
SELR = [242, 243, 252, 253]
I(f"""v_and_b32 v164, 1, v{VLANE}
v_cmp_eq_u32 s[{sPAR}:{sPAR+1}], 1, v164
v_lshl_add_u32 v165, v162, 2, v164
v_cmp_le_u32 s[{sOA}:{sOA+1}], v165, v160
v_add_u32 v165, 2, v165
v_cmp_le_u32 s[{sOB}:{sOB+1}], v165, v160
s_cmp_eq_u32 s{sRB}, 0
s_cselect_b64 s[{sVA_}:{sVA_+1}], s[{sOA}:{sOA+1}], -1
s_cselect_b64 s[{sVB_}:{sVB_+1}], s[{sOB}:{sOB+1}], -1
v_mov_b32 v163, 0x0c0c0100
v_mov_b32 v164, 0x01000c0c
v_cndmask_b32 v163, v163, v164, s[{sPAR}:{sPAR+1}]
v_mov_b32 v164, 0x0c0c0302
v_mov_b32 v165, 0x03020c0c
v_cndmask_b32 v164, v164, v165, s[{sPAR}:{sPAR+1}]
v_mov_b32 v165, 0x0c0c0c0c
v_cndmask_b32 v{SELR[0]}, v163, v165, s[{sOA}:{sOA+1}]
v_cndmask_b32 v{SELR[1]}, v164, v165, s[{sOB}:{sOB+1}]
v_cndmask_b32 v{SELR[2]}, v165, v163, s[{sOA}:{sOA+1}]
v_cndmask_b32 v{SELR[3]}, v165, v164, s[{sOB}:{sOB+1}]
s_mul_i32 s{t+7}, s{sRB}, {6*118}
s_sub_u32 s{t+5}, s{sCOL}, 15
s_lshl_b32 s{t+5}, s{t+5}, 2
s_add_u32 s{t+7}, s{t+7}, s{t+5}
s_add_u32 s{t+7}, s{t+7}, s{sWAVE}
s_lshl_b32 s{t+7}, s{t+7}, 10""")
I(f's_mov_b32 s{sSL}, 0')
def xreg(tau, j): return XS + 4*tau if tau < 10 else XD + 12*(j & 1) + 4*(tau - 10)
def rd_x(tau, j):
    d = xreg(tau, j); I(f'ds_read_b128 v[{d}:{d+3}], v{XA+j} offset:{tau*2048}'); lg.append(('x', tau, j))
def rd_w(m, s_, j):
    d = WQ + 12*j + 4*m + 2*s_; I(f'ds_read_b64_tr_b16 v[{d}:{d+1}], v{WA} offset:{m*8192 + (32*j+4*s_)*128}'); lg.append(('w', m, s_, j))
def sched(tau):
    ex = [('w',1,0),('w',1,1),('w',2,0),('w',2,1),('w',0,0),('w',0,1),('x',10),('x',11),('x',12)]
    r = [[], [], []]
    if 1 <= tau <= 10: r[1].append(('x', tau - 1))
    if 1 <= tau <= 9: r[2].append(ex[tau - 1])
    return r
def do_reads(lst, j):
    for x in lst:
        if x[0] == 'x': rd_x(x[1], j)
        else: rd_w(x[1], x[2], j)
stamp(1)
I(f's_setprio {OPT["cprio"]}\ns_mov_b32 s{sNEED}, 1\ns_branch L_QSP0')
c_spin_block('L_QSP', 'L_QBK')
c_spin_block('L_QSP0', 'L_QGO')
k.label('L_QGO')
stamp(2)
lg.clear()
for tau in range(13):
    for r in sched(tau): do_reads(r, 0)
    if tau == 2: I(f'ds_read_b32 v{VTM}, v{VFU}'); lg.append('free')
entry = list(lg)
k.label('L_QLOOP')
m0_ = k.mark()
for j in range(2):
    for tau in range(13):
        lg_wait([('x', tau, j)] + ([('w',1,0,j),('w',1,1,j),('w',2,0,j),('w',2,1,j)] if tau == 0 else []) + ([('w',0,0,j),('w',0,1,j)] if tau == 1 else [])
                + (['flag'] if (j, tau) == (0, 12) else []))
        if (j, tau) == (0, 12):
            I(f's_add_u32 s{sNEED}, s{sNEED}, 1'); c_check(None); next_slot()
        x = xreg(tau, j); w = WQ + 12*j
        X_ = f'v[{x}:{x+3}]'
        sc = sched(tau)
        I(f'v_mfma_f32_16x16x32_bf16 v[{KA+4*tau}:{KA+4*tau+3}], v[{w+4}:{w+7}], {X_}, v[{KA+4*tau}:{KA+4*tau+3}]')
        if (j, tau) == (1, 0):
            I(f'v_add_u32 v{XA}, s{sDL}, v{XA}\nv_add_u32 v{WA}, s{sDL}, v{WA}')
        I(f'v_mfma_f32_16x16x32_bf16 v[{VA+4*tau}:{VA+4*tau+3}], {X_}, v[{w+8}:{w+11}], v[{VA+4*tau}:{VA+4*tau+3}]')
        if (j, tau) == (1, 0):
            I(f'v_add_u32 v{XA+1}, s{sDL}, v{XA+1}\ns_cbranch_vccnz L_QSP')
            k.label('L_QBK')
        do_reads(sc[1], 1 - j)
        if tau >= 1:
            q = QA + 4*(tau - 1)
            I(f'v_mfma_f32_16x16x32_bf16 v[{q}:{q+3}], v[{w}:{w+3}], {X_}, v[{q}:{q+3}]')
        do_reads(sc[2], 1 - j)
        if (j, tau) == (0, 6): c_flag_read(); lg.append('flag')
        if (j, tau) == (1, 2):
            lg_wait([('x', 9, 1)])
            I(f'v_add_u32_e64 v{VTM}, -1, s{sNEED}\nds_write_b32 v{VFR}, v{VTM} offset:16'); lg.append('free')
assert lg == entry[len(entry)-len(lg):], (lg, entry)
I(f's_cmp_lt_u32 s{sNEED}, 9\ns_cbranch_scc1 L_QLOOP')
k.check_backedge(m0_)
stamp(3)
k.c('---- QKV epilogue (attention)')
if OPT['walk']: k.begin_region('Q')
KB, VB = 152, 178
AS, SMR, CSQ, CSK, CSV = 204, 212, 234, 228, 232
ONES, VAD = 238, 244
I(f"""s_waitcnt lgkmcnt(0)
v_and_b32 v250, 15, v{VLANE}
v_lshlrev_b32 v{VAD}, 4, v250
v_add_u32 v{VAD}, {L_AOS}, v{VAD}
v_and_b32 v{VAD+1}, 48, v{VLANE}
s_lshl_b32 s{t}, s{sWAVE}, 6
s_add_u32 s{t}, s{t}, {L_CS}
v_add_u32 v{VAD+2}, s{t}, v{VAD+1}
v_add_u32 v{VAD+1}, {L_SM}, v{VAD+1}
v_lshl_add_u32 v250, v250, 2, s{t}""")
NEG = 'neg_lo:[0,1,0] neg_hi:[0,1,0]'
def st_reads(tau):
    a = AS + 4*(tau & 1)
    I(f'ds_read_b128 v[{a}:{a+3}], v{VAD} offset:{tau*256}')
def smr_reads(tau):
    m_ = SMR + 8*(tau & 1)
    I(f'ds_read_b128 v[{m_}:{m_+3}], v{VAD+1} offset:{tau*64}\nds_read_b128 v[{m_+4}:{m_+7}], v{VAD+1} offset:{1024+tau*64}')
I(f"""ds_read_b32 v{CSV}, v250 offset:512
ds_read_b128 v[{CSK}:{CSK+3}], v{VAD+2} offset:256
ds_read_b128 v[{CSQ}:{CSQ+3}], v{VAD+2}""")
smr_reads(0); st_reads(0)
flag_prep()
for i in range(4): I(f'v_mov_b32 v{ONES+i}, 0x3f803f80')
I(f'v_lshlrev_b32 v250, 4, v{VLANE}')
for tau in range(13):
    a = AS + 4*(tau & 1)
    if tau < 12: smr_reads(tau + 1); st_reads(tau + 1)
    I(f's_waitcnt lgkmcnt({3 if tau < 12 else 0})')
    m_ = SMR + 8*(tau & 1)
    Kc, Vc = KA + 4*tau, VA + 4*tau
    for p in range(2): I(f'v_pk_fma_f32 v[{Vc+2*p}:{Vc+2*p+1}], v[{m_+2*p}:{m_+2*p+1}], v[{CSV}:{CSV+1}], v[{Vc+2*p}:{Vc+2*p+1}] op_sel_hi:[1,0,1] {NEG}')
    for p in range(2): I(f'v_pk_fma_f32 v[{Kc+2*p}:{Kc+2*p+1}], v[{CSK+2*p}:{CSK+2*p+1}], v[{a}:{a+1}], v[{Kc+2*p}:{Kc+2*p+1}] op_sel_hi:[1,0,1] {NEG}')
    for p in range(2): I(f'v_pk_mul_f32 v[{Vc+2*p}:{Vc+2*p+1}], v[{Vc+2*p}:{Vc+2*p+1}], v[{m_+4+2*p}:{m_+4+2*p+1}]')
    for p in range(2): I(f'v_pk_mul_f32 v[{Kc+2*p}:{Kc+2*p+1}], v[{Kc+2*p}:{Kc+2*p+1}], v[{a}:{a+1}] op_sel:[0,1] op_sel_hi:[1,1]')
    if tau >= 1:
        Qc = QA + 4*(tau - 1)
        for p in range(2): I(f'v_pk_fma_f32 v[{Qc+2*p}:{Qc+2*p+1}], v[{CSQ+2*p}:{CSQ+2*p+1}], v[{a}:{a+1}], v[{Qc+2*p}:{Qc+2*p+1}] op_sel_hi:[1,0,1] {NEG}')
    for p in range(2): I(f'v_cvt_pk_bf16_f32 v{VB+2*tau+p}, v{Vc+2*p}, v{Vc+2*p+1}')
    for p in range(2): I(f'v_cvt_pk_bf16_f32 v{KB+2*tau+p}, v{Kc+2*p}, v{Kc+2*p+1}')
    if tau >= 1:
        for p in range(2): I(f'v_cvt_pk_bf16_f32 v{Qc+p}, v{Qc+2*p}, v{Qc+2*p+1}')
        I(f'v_mov_b32 v{Qc+2}, v{a+3}')
def SO(i): return 48 + 8*i
def SP(i): return SO(i) + 4
def MX(i): return QA + 4*i + 3
def LL(i): return 204 + 4*(i % 6)
par = f's[{sPAR}:{sPAR+1}]'
def attn(ts):
    def each(fmt):
        for i in ts: I(fmt(i))
    grps = [ts[j:j+4] for j in range(0, len(ts), 4)]
    each(lambda i: f'v_mfma_f32_16x16x16_bf16 v[{SO(i)}:{SO(i)+3}], v[{KB+2*i+2}:{KB+2*i+3}], v[{QA+4*i}:{QA+4*i+1}], 0\n'
                   f'v_mfma_f32_16x16x16_bf16 v[{SP(i)}:{SP(i)+3}], v[{KB+2*i}:{KB+2*i+1}], v[{QA+4*i}:{QA+4*i+1}], 0')
    each(lambda i: f'v_cndmask_b32 v{SO(i)}, v{SO(i)}, v{SO(i)+1}, {par}\nv_cndmask_b32 v{SO(i)+2}, v{SO(i)+2}, v{SO(i)+3}, {par}\n'
                   f'v_cndmask_b32 v{SP(i)}, v{SP(i)}, v{SP(i)+1}, {par}\nv_cndmask_b32 v{SP(i)+2}, v{SP(i)+2}, v{SP(i)+3}, {par}')
    each(lambda i: f'v_cndmask_b32 v{SO(i)}, v{SP(i)}, v{SO(i)}, s[{sOA}:{sOA+1}]\nv_cndmask_b32 v{SO(i)+1}, v{SP(i)+2}, v{SO(i)+2}, s[{sOB}:{sOB+1}]')
    if 0 in ts:
        I(f'v_mov_b32 v{MX(0)}, {f32(-1e30)}\nv_cndmask_b32 v{SO(0)}, v{MX(0)}, v{SO(0)}, s[{sVA_}:{sVA_+1}]\nv_cndmask_b32 v{SO(0)+1}, v{MX(0)}, v{SO(0)+1}, s[{sVB_}:{sVB_+1}]')
    each(lambda i: f'v_max_f32 v{MX(i)}, v{SO(i)}, v{SO(i)+1}')
    for q in grps: I(f'v_permlane32_swap_b32 v{MX(q[0])}, v{MX(q[1])}\nv_permlane32_swap_b32 v{MX(q[2])}, v{MX(q[3])}')
    for q in grps: I(f'v_max_f32 v{MX(q[0])}, v{MX(q[0])}, v{MX(q[1])}\nv_max_f32 v{MX(q[2])}, v{MX(q[2])}, v{MX(q[3])}')
    for q in grps: I(f'v_permlane16_swap_b32 v{MX(q[0])}, v{MX(q[2])}')
    for q in grps: I(f'v_max_f32 v{MX(q[1])}, v{MX(q[0])}, v{MX(q[2])}\nv_max_f32 v{MX(q[3])}, v{MX(q[0])}, v{MX(q[2])}')
    for q in grps: I(f'v_permlane16_swap_b32 v{MX(q[1])}, v{MX(q[3])}')
    for q in grps: I(f'v_mov_b32 v{MX(q[0])}, v{MX(q[1])}\nv_mov_b32 v{MX(q[2])}, v{MX(q[3])}')
    for q in grps: I(f'v_permlane32_swap_b32 v{MX(q[0])}, v{MX(q[1])}\nv_permlane32_swap_b32 v{MX(q[2])}, v{MX(q[3])}')
    each(lambda i: f'v_mul_f32 v{MX(i)}, v{MX(i)}, v{QA+4*i+2}')
    each(lambda i: f'v_fma_f32 v{SO(i)}, v{SO(i)}, v{QA+4*i+2}, -v{MX(i)}\nv_fma_f32 v{SO(i)+1}, v{SO(i)+1}, v{QA+4*i+2}, -v{MX(i)}')
    each(lambda i: f'v_exp_f32 v{SO(i)}, v{SO(i)}\nv_exp_f32 v{SO(i)+1}, v{SO(i)+1}')
    each(lambda i: f'v_cvt_pk_bf16_f32 v{MX(i)}, v{SO(i)}, v{SO(i)+1}')
    for h2 in range(0, len(ts), 6 if len(ts) == 12 else 4):
        sub = ts[h2:h2+(6 if len(ts) == 12 else 4)]
        for i in sub: I('\n'.join(f'v_perm_b32 v{SP(i)+e}, v{MX(i)}, v{MX(i)}, v{SELR[e]}' for e in range(4)))
        for i in sub: I(f'v_mfma_f32_16x16x32_bf16 v[{LL(i)}:{LL(i)+3}], v[{ONES}:{ONES+3}], v[{SP(i)}:{SP(i)+3}], 0\n'
                        f'v_mfma_f32_16x16x32_bf16 v[{SO(i)}:{SO(i)+3}], v[{VB+2*i}:{VB+2*i+3}], v[{SP(i)}:{SP(i)+3}], 0')
        for i in sub: I(f'v_rcp_f32 v{QA+4*i+2}, v{LL(i)}')
        for i in sub: I('\n'.join(f'v_pk_mul_f32 v[{SO(i)+2*p}:{SO(i)+2*p+1}], v[{SO(i)+2*p}:{SO(i)+2*p+1}], v[{QA+4*i+2}:{QA+4*i+3}] op_sel_hi:[1,0]' for p in range(2)))
        for i in sub[::2]:
            o = QA + 4*i
            I(f'v_cvt_pk_bf16_f32 v{o}, v{SO(i)}, v{SO(i)+1}\nv_cvt_pk_bf16_f32 v{o+1}, v{SO(i)+2}, v{SO(i)+3}\n'
              f'v_cvt_pk_bf16_f32 v{o+2}, v{SO(i+1)}, v{SO(i+1)+1}\nv_cvt_pk_bf16_f32 v{o+3}, v{SO(i+1)+2}, v{SO(i+1)+3}')
        for i in sub[::2]:
            o = QA + 4*i
            I(f'v_permlane16_swap_b32 v{o}, v{o+2}\nv_permlane16_swap_b32 v{o+1}, v{o+3}')
        for i in sub[::2]:
            o = QA + 4*i
            I(f'buffer_store_dwordx4 v[{o}:{o+3}], v250, {srd(SAF)}, s{t+7} offen{OPT_HST}\ns_add_u32 s{t+7}, s{t+7}, {118*1024}')
for ts_ in {0: [range(12)], 1: [range(4), range(4, 12)], 2: [range(8), range(8, 12)], 3: [range(4), range(4, 8), range(8, 12)]}[OPT['agrp']]: attn(list(ts_))
publish_flag()
k.label('L_CODE_END')
I('s_endpgm')

ent = k.chains({'P': 2, 'F': 2, 'Q': 2}, 'L_WRET')
for r_, l_ in ent.items():
    for i_, e_ in enumerate(l_): k.out = [x.replace(f'@@{r_}{i_}', e_) for x in k.out]
k.padstep
hdr = open('cdna_kernels/' + NAME + '.s.ref').read().split('; Override launch')[0]
txt = hdr + f"""; @launch grid=(256,1,1) block=(512,1,1) lds=163840
.amdgcn_target "amdgcn-amd-amdhsa--gfx950"
.text
.globl {NAME}_kernel
.p2align 8
.type {NAME}_kernel,@function
{NAME}_kernel:
""" + k.text() + f""".section .rodata,"a"
.p2align 6
.amdhsa_kernel {NAME}_kernel
  .amdhsa_next_free_vgpr 256
  .amdhsa_next_free_sgpr 102
  .amdhsa_accum_offset 256
  .amdhsa_group_segment_fixed_size 0
  .amdhsa_kernarg_size 80
  .amdhsa_user_sgpr_count 2
  .amdhsa_user_sgpr_kernarg_segment_ptr 1
  .amdhsa_system_sgpr_workgroup_id_x 1
.end_amdhsa_kernel
"""
open(sys.argv[1], 'w').write(txt)
for p_ in k.problems: print('PROBLEM', p_)
print('written', sys.argv[1], 'lines', txt.count('\n'), 'nops', k.nops)
```

```python
import sys, os
from asmlib import K

NAME = "recurrent_scan__sliding_local_dilated__swiglu_ffn__prompt"
OPT = dict(diag=0, nt_x=0, nt_w=0, nt_b2=0, rot=2, rotb=4, latin=1, naw=5, defer=0, psleep=8, cbshift=0, pmask=1, outst=1, hst=0, tb0=99, tb1=99, tb2=99, pl=1, ps=2, pf=3, sct=0, thr=99, thr_from=3, thrb=99, thrd=99, pace=0, pacen=1, apace=0, athr=0, cfin=7, hold=1, hprio=0, cl=6, xperm=0, mix=1, pre=0, preat=4, cw=1, skip=0, agrp=3, lvl=0, lva=6, ilv=2, fsh=4, fst_=0, fld=0, w0=99, w0w=0, tl=99, walk=1, padstep=250, nr0=2, sig2=4, nr6=0, nr7=8, nr8=12, nr9=12, midbar=2, naws=5, nawc=5, ald=0, pbar=0, hsleep=1, cprio=2, sigat=8)
for a in sys.argv[2:]:
    k_, v_ = a.split('='); OPT[k_] = int(v_)

SLOT = 51200
MISC = 155648
L_AOS, L_SM, L_SR, L_CS, L_SCR = MISC, MISC + 4096, MISC + 5120, MISC + 6144, MISC + 7168
L_FULL = L_AOS + 4048
L_FREE = L_AOS + 4064
L_NONCE = L_AOS + 4080
AF_BYTES = 64 * 118 * 1024
W_RS, W_CSP, W_FL, W_DIAG = 0x800000, 0x810000, 0x880000, 0x900000
W_FL = 0x8c0000
W_PF, W_PK = 0x890000, 0xa00000
WS_REC = 0x1000000
OOB = 0x7f000000
LOG2E = 1.4426950408889634
import struct
def f32(x): return '0x%08x' % struct.unpack('<I', struct.pack('<f', x))[0]

SX, SWA, SWB, SWS, SAF, SW2, SSL, SOUT = 24, 28, 32, 36, 40, 44, 48, 52
sWAVE, sRB, sCOL, sISQ, sH, sRB2, sCB2, sSLOTID = 56, 57, 58, 59, 60, 61, 62, 63
sN = 64
sT = 66
sLW = 80
sKWS, sC, sKW, sX7M, sX7S, sPOS = 86, 87, 88, 89, 90, 91
sNV, sBROW, sABASE, sLB2 = 92, 93, 94, 95
sST = 96
sSTR = 78
sPKI = 73
sT0 = 44
sS0 = 3
sM = 80
VLANE, VDIAG = 254, 255
def srd(i): return f's[{i}:{i+3}]'

k = K()
k.padstep = OPT['padstep']
OPT_OUTST = ['', ' sc1', ' nt', ' sc0 sc1'][OPT['outst']]
OPT_ALD = [' sc1', '', ' sc0 sc1', ' nt', ' sc1 nt'][OPT['ald']]
OPT_FST = [' sc1', ' sc0 sc1', ' sc1 nt'][OPT['fst_']]
OPT_FLD = [' sc1', ' sc0 sc1', ' sc1 nt'][OPT['fld']]
OPT_HST = [' sc1', ' sc0 sc1', ' sc1 nt'][OPT['hst']]
I = k.I
lblc = [0]
def newlbl(p):
    lblc[0] += 1; return f'L_{p}_{lblc[0]}'
def stamp(i):
    if OPT.get('padat') == i:
        L = newlbl('pad')
        k.label(L)
        I(f's_memrealtime s[96:97]\ns_waitcnt lgkmcnt(0)\ns_sub_u32 s96, s96, s44\ns_cmp_lt_u32 s96, {OPT["padx"]}\ns_cbranch_scc1 {L}')
    if not OPT['diag']: return
    I(f's_memrealtime s[{sST}:{sST+1}]\ns_memtime s[{sST+2}:{sST+3}]\ns_waitcnt lgkmcnt(0)\nv_writelane_b32 v{VDIAG}, s{sST}, {i}\nv_writelane_b32 v{VDIAG}, s{sST+2}, {i+32}' if i < 29 else f's_memrealtime s[{sST}:{sST+1}]\ns_waitcnt lgkmcnt(0)\nv_writelane_b32 v{VDIAG}, s{sST}, {i}')

def mk_srd(d, p, rec):
    I(f's_mov_b32 s{d}, s{p}\ns_mov_b32 s{d+1}, s{p+1}\ns_mov_b32 s{d+2}, {rec}\ns_mov_b32 s{d+3}, 0x20000')


def nonce_poll():
    L = newlbl('np'); D = newlbl('npd')
    I(f's_mov_b32 s{sT}, 0')
    k.label(L)
    I(f"""s_load_dwordx2 s[{sN}:{sN+1}], s[20:21], 0 glc
s_add_u32 s{sT}, s{sT}, 1
s_waitcnt lgkmcnt(0)
s_cmp_lg_u64 s[{sN}:{sN+1}], 0
s_cbranch_scc1 {D}
s_sleep 2
s_cmp_lt_u32 s{sT}, 0x40000
s_cbranch_scc1 {L}""")
    k.label(D)

k.label('KSTART')
if OPT['diag']: I('s_memrealtime s[100:101]')
I(f"""s_cmp_ge_u32 s2, 256
s_cbranch_scc1 L_END
s_load_dwordx16 s[4:19], s[0:1], 0
s_load_dwordx4 s[20:23], s[0:1], 64
s_memrealtime s[{sT0}:{sT0+1}]
s_getpc_b64 s[{sT+2}:{sT+3}]""")
k.label('L_PC')
I(f"""s_and_b32 s{sT+4}, s2, 0xf8
v_lshrrev_b32 v1, 6, v0
v_and_b32 v{VLANE}, 63, v0
v_add_u32 v2, s{sT+4}, v1
v_lshlrev_b32 v2, 7, v2
v_min_u32 v2, L_CODE_END-L_PC-4, v2
global_load_dword v253, v2, s[{sT+2}:{sT+3}]
v_readfirstlane_b32 s{sWAVE}, v1
v_xor_b32 v1, 4, v1
v_lshlrev_b32 v1, 2, v1
v_add_u32 v1, {L_FULL}, v1
v_mov_b32 v2, 0
ds_write_b32 v1, v2""", 'CODE')
if OPT['diag']: I(f'v_mov_b32 v{VDIAG}, 0')
T0 = [18,19,20,4,5,10,31,0]; T1 = [21,22,11,16,17,31,31,0]
def pk(b): return '0x%08x' % (b[0] | b[1] << 8 | b[2] << 16 | b[3] << 24)
t = sT
PERM = [[0,1,2,3,4,5,6,7], [0,6,2,3,5,7,4,1], [0,1,2,3,4,7,6,5]][OPT['xperm']]
def enc(p): return '0x%08x' % sum(v << (4*i) for i, v in enumerate(p))
I(f"""s_and_b32 s{t}, s2, 7
s_lshr_b32 s{sSLOTID}, s2, 3
s_lshl_b32 s{sRB2}, s{t}, 2
s_lshr_b32 s{t+2}, {enc(PERM)}, s{sRB2}
s_and_b32 s{t+1}, s{t+2}, 1
s_bfe_u32 s{t+2}, s{t+2}, 0x20001
s_lshr_b32 s{t+3}, s{sSLOTID}, 3
s_add_u32 s{sRB2}, s{sRB2}, s{t+3}
s_add_u32 s{sCB2}, s{sSLOTID}, {OPT['cbshift']}
s_and_b32 s{sCB2}, s{sCB2}, 7
s_mul_i32 s{t+3}, s{sSLOTID}, 52
s_lshr_b32 s{t+3}, s{t+3}, 8
s_mul_i32 s{t+4}, s{t+3}, 5
s_sub_u32 s{t+4}, s{sSLOTID}, s{t+4}
s_mul_i32 s{t+5}, s{t+1}, 6
s_add_u32 s{sRB}, s{t+4}, s{t+5}
s_mul_i32 s{t+5}, s{t+2}, 6
s_add_u32 s{sCOL}, s{t+5}, s{t+3}
s_lshl_b32 s{t+6}, s{t+1}, 1
s_add_u32 s{t+5}, s{t+5}, s{t+6}
s_add_u32 s{t+5}, s{t+5}, s{sSLOTID}
s_sub_u32 s{t+5}, s{t+5}, 30
s_cmp_eq_u32 s{t+1}, 0
s_mov_b32 s{t+6}, {pk(T1[:4])}
s_mov_b32 s{t+7}, {pk(T1[4:])}
s_cmov_b32 s{t+6}, {pk(T0[:4])}
s_cmov_b32 s{t+7}, {pk(T0[4:])}""")
I(f"""s_sub_u32 s{t+8}, s{sSLOTID}, 25
s_lshl_b32 s{t+8}, s{t+8}, 3
s_lshr_b64 s[{t+6}:{t+7}], s[{t+6}:{t+7}], s{t+8}
s_and_b32 s{t+6}, s{t+6}, 0xff
s_cmp_eq_u32 s{t+2}, 3
s_cselect_b32 s{t+5}, s{t+6}, s{t+5}
s_cselect_b32 s{t+7}, 25, 30
s_cmp_ge_u32 s{sSLOTID}, s{t+7}
s_cselect_b32 s{sCOL}, s{t+5}, s{sCOL}
s_cselect_b32 s{sRB}, 5, s{sRB}
s_cmp_eq_u32 s{sCOL}, 31
s_cselect_b32 s{sCOL}, 0, s{sCOL}
s_cselect_b32 s{sRB}, 11, s{sRB}
@@COLMAP
s_cmp_ge_u32 s{sCOL}, 15
s_cselect_b32 s{sISQ}, 1, 0
s_and_b32 s{sH}, s{sWAVE}, 3""")
if OPT['mix']:
    cm = f"""s_mul_i32 s{t+5}, s{sCOL}, 43
  s_lshr_b32 s{t+5}, s{t+5}, 8
  s_mul_i32 s{t+6}, s{t+5}, 6
  s_sub_u32 s{t+6}, s{sCOL}, s{t+6}
  s_cmp_eq_u32 s{t+5}, 3
  s_cselect_b32 s{t+7}, 3, 4
  s_lshl_b32 s{t+8}, s{t+5}, 1
  s_add_u32 s{sCOL}, s{t+8}, s{t+6}
  s_add_u32 s{t+8}, s{t+8}, s{sCOL}
  s_add_u32 s{sCOL}, s{sCOL}, 15
  s_sub_u32 s{sCOL}, s{sCOL}, s{t+7}
  s_cmp_lt_u32 s{t+6}, s{t+7}
  s_cselect_b32 s{sCOL}, s{t+8}, s{sCOL}"""
else:
    cm = f"""s_add_u32 s{t+5}, s{sCOL}, 1
  s_cmp_ge_u32 s{sCOL}, 14
  s_cselect_b32 s{sCOL}, s{t+5}, s{sCOL}
  s_cmp_eq_u32 s{sCOL}, 23
  s_cselect_b32 s{sCOL}, 14, s{sCOL}"""
k.out = [x.replace('@@COLMAP', cm) for x in k.out]
if OPT['latin']:
    I(f"""s_cmp_ge_u32 s{t+3}, 3
s_addc_u32 s{sS0}, s{t+3}, s{t+2}
s_cmp_ge_u32 s{t+4}, 3
s_addc_u32 s{sS0}, s{sS0}, s{t+4}
s_lshl_b32 s{t+1}, s{t+1}, 1
s_add_u32 s{sS0}, s{sS0}, s{t+1}
s_cmp_eq_u32 s{sRB}, 5
s_cselect_b32 s{sS0}, s{sCOL}, s{sS0}
s_and_b32 s{sS0}, s{sS0}, 7""")
else:
    I(f's_mov_b32 s{sS0}, 0')
I(f"""s_cmp_lt_u32 s{sWAVE}, 4
s_cbranch_scc0 L_H
s_or_b32 s{t}, s2, s{sWAVE}
s_cmp_lg_u32 s{t}, 0
s_waitcnt lgkmcnt(0)
s_cbranch_scc1 L_NW
v_mov_b32 v2, s{sT0}
v_mov_b32 v3, s{sT0+1}
v_mov_b32 v4, 0
global_store_dwordx2 v4, v[2:3], s[20:21] sc1""")
k.label('L_NW')
sROW = t + 9
vRD = 200
mk_srd(SX, 4, 2048*1024)
I(f"""s_mul_i32 s{t}, s{sRB}, 192
s_mul_i32 s{t+1}, s{sCOL}, 12
s_add_u32 s{t}, s{t}, s{t+1}
s_mul_i32 s{t+1}, s{sH}, 3
s_add_u32 s{t}, s{t}, s{t+1}
s_cmp_lt_u32 s{sCOL}, 16
s_cselect_b32 s{sROW}, s{t}, 0x100000
s_lshl_b32 s{t}, s{sROW}, 10
v_lshlrev_b32 v7, 4, v{VLANE}""")
for a_ in range(3):
    I(f'buffer_load_dwordx4 v[{vRD+4*a_}:{vRD+4*a_+3}], v7, {srd(SX)}, s{t} offen offset:{a_*1024}')
I("""s_barrier
s_branch L_C""")
k.fresh()
k.label('L_H')

vXo0, vXo1, vW, vL16, vB2 = 2, 3, 4, 7, 247
vT = 8
NTX = ' nt' if OPT['nt_x'] else ''
NTW = ' nt' if OPT['nt_w'] else ''
NTB = ' nt' if OPT['nt_b2'] else ''
k.c('---- H prologue')
I(f"""v_lshrrev_b32 v{vT}, 3, v{VLANE}
v_and_b32 v{vT+1}, 7, v{VLANE}
v_lshrrev_b32 v{vT+2}, 1, v{vT}
s_and_b32 s{t}, s{sH}, 1
s_lshl_b32 s{t+1}, s{t}, 2
v_or_b32 v{vT+3}, s{t+1}, v{vT+2}
v_xor_b32 v{vT+3}, v{vT+3}, v{vT+1}
v_lshlrev_b32 v{vT+3}, 4, v{vT+3}
s_mul_i32 s{t+2}, s{sRB}, 192
s_lshl_b32 s{t+3}, s{sISQ}, 4
s_sub_i32 s{t+2}, s{t+2}, s{t+3}
s_lshl_b32 s{t+3}, s{sH}, 3
s_add_i32 s{t+2}, s{t+2}, s{t+3}
s_add_i32 s{t+4}, s{t+2}, 32
v_add_u32 v{vXo1}, s{t+4}, v{vT}
v_lshlrev_b32 v{vXo1}, 10, v{vXo1}
v_add_u32 v{vXo1}, v{vXo1}, v{vT+3}
s_cmp_lt_i32 s{t+2}, 0
s_mov_b32 s{t+4}, -32768
s_cmov_b32 s{t+4}, 0x40000000
v_add_u32 v{vXo0}, s{t+4}, v{vXo1}
v_lshlrev_b32 v{vL16}, 4, v{VLANE}
s_cmp_eq_u32 s{sISQ}, 1
s_cbranch_scc1 L_HQ""")
I(f"""s_mul_i32 s{t+2}, s{sH}, {16*2752}
s_mul_i32 s{t+3}, s{sCOL}, 192
s_add_u32 s{t+2}, s{t+2}, s{t+3}
s_movk_i32 s{t+4}, 171
s_movk_i32 s{t+5}, 2752
s_sub_u32 s{t+6}, 2752, s{t+3}""")
for b in range(3):
    I(f"""v_add_u32 v{vT+4}, {64*b}, v{VLANE}
v_mul_u32_u24 v{vT+5}, s{t+4}, v{vT+4}
v_lshrrev_b32 v{vT+5}, 11, v{vT+5}
v_mul_u32_u24 v{vT+6}, 12, v{vT+5}
v_sub_u32 v{vT+6}, v{vT+4}, v{vT+6}
v_bfe_u32 v{vT+7}, v{vT+5}, 3, 1
v_lshlrev_b32 v{vT+7}, 1, v{vT+7}
v_xor_b32 v{vT+6}, v{vT+6}, v{vT+7}
v_lshlrev_b32 v{vT+6}, 4, v{vT+6}
v_mad_u32_u24 v{vW+b}, v{vT+5}, s{t+5}, v{vT+6}
v_add_u32 v{vW+b}, s{t+2}, v{vW+b}
v_cmp_gt_u32 vcc, s{t+6}, v{vT+6}
v_mov_b32 v{vT+7}, {OOB}
v_cndmask_b32 v{vW+b}, v{vT+7}, v{vW+b}, vcc""")
I(f"""s_mul_i32 s{sLW}, s{sH}, 3072
s_add_u32 s{sLW}, s{sLW}, 24576
s_add_u32 s{sLW+1}, s{sLW}, 1024
s_add_u32 s{sLW+2}, s{sLW}, 2048
s_add_u32 s{sLW+3}, s{sLW}, 12288
s_add_u32 s{sLW+4}, s{sLW}, {12288+1024}
s_add_u32 s{sLW+5}, s{sLW}, {12288+2048}
s_mov_b32 s{sKWS}, {64*2752}
s_mov_b32 s{sC}, 0
s_mov_b32 s{t+11}, 0
s_waitcnt lgkmcnt(0)""")
mk_srd(SWA, 12, 512*2752); mk_srd(SWB, 14, 512*2752)
I('s_branch L_HJ')
k.label('L_HQ')
I(f"""v_and_b32 v{vT+4}, 1, v{vT+2}
s_lshl_b32 s{t+1}, s{t}, 1
v_or_b32 v{vT+4}, s{t+1}, v{vT+4}
v_lshlrev_b32 v{vT+4}, 1, v{vT+4}
v_xor_b32 v{vT+4}, v{vT+4}, v{vT+1}
v_lshlrev_b32 v{vT+4}, 4, v{vT+4}
s_movk_i32 s{t+5}, 3072
v_mad_u32_u24 v{vW}, v{vT}, s{t+5}, v{vT+4}
s_mul_i32 s{t+2}, s{sH}, {8*3072}
s_sub_u32 s{t+3}, s{sCOL}, 15
s_lshl_b32 s{t+3}, s{t+3}, 7
s_add_u32 s{t+2}, s{t+2}, s{t+3}
v_add_u32 v{vW}, s{t+2}, v{vW}
v_add_u32 v{vW+1}, 1024, v{vW}
v_add_u32 v{vW+2}, 2048, v{vW}
s_lshl_b32 s{sLW}, s{sH}, 10
s_add_u32 s{sLW}, s{sLW}, 26624
s_add_u32 s{sLW+1}, s{sLW}, 8192
s_add_u32 s{sLW+2}, s{sLW}, 16384
s_add_u32 s{sLW+3}, s{sLW}, 4096
s_add_u32 s{sLW+4}, s{sLW}, {4096+8192}
s_add_u32 s{sLW+5}, s{sLW}, {4096+16384}
s_mov_b32 s{sKWS}, {64*3072}
s_mov_b32 s{sC}, {32*3072}
s_cmp_lt_u32 s{sH}, 2
s_cselect_b32 s{t+11}, 1, 0
s_waitcnt lgkmcnt(0)""")
mk_srd(SWA, 6, 512*3072); mk_srd(SWB, 6, 512*3072)
k.label('L_HJ')
mk_srd(SX, 4, 2048*1024)
I(f's_lshl_b32 s{t+10}, s{sH}, 10')
sH1K, sX7R = t + 10, t + 11

sXK, sROT = t + 13, sPOS
VFL = 232
def signal_full(n):
    I(f'v_mov_b32 v237, {n}\nds_write_b32 v238, v237')
def spin(base, n, sleep=None):
    L = newlbl('sp'); D = newlbl('spd')
    I(f's_mov_b32 s{t+4}, 0')
    k.label(L)
    I(f"""ds_read_b128 v[{VFL}:{VFL+3}], v236 offset:{base - L_FULL}
s_add_u32 s{t+4}, s{t+4}, 1
s_waitcnt lgkmcnt(0)
v_min_u32 v{VFL}, v{VFL}, v{VFL+1}
v_min3_u32 v{VFL}, v{VFL}, v{VFL+2}, v{VFL+3}
v_cmp_gt_u32 vcc, {n}, v{VFL}
s_cmp_lt_u32 s{t+4}, 0x400000
s_cbranch_vccz {D}
s_sleep {OPT['hsleep'] if sleep is None else sleep}
s_cbranch_scc1 {L}""")
    k.label(D)

def stage_dma(i, sig=None):
    base = (i % 3) * SLOT
    tag = f'D{i}'
    cnt = [0]
    if OPT.get('nodma') == 1 and i >= 3: return
    if OPT.get('nodma') == 3 and i >= 3:
        n0 = len(k.out); OPT['nodma'] = 0; stage_dma(i, sig); OPT['nodma'] = 3
        import re as _re
        for j_ in range(n0, len(k.out)):
            k.out[j_] = _re.sub(r'buffer_load_dwordx4 (v\d+), (.*) offen lds', lambda m_: f'buffer_load_dwordx4 v[{128 + 4*(j_ % 16)}:{131 + 4*(j_ % 16)}], {m_.group(1)}, {m_.group(2)} offen', k.out[j_])
        return
    def after():
        cnt[0] += 1
        if i >= OPT['thr_from'] and cnt[0] < 13:
            k.throttle(OPT['thr'])
            if OPT['pace'] and cnt[0] % OPT['pacen'] == 0:
                if OPT['apace']:
                    Lp = newlbl('ap'); sv_ = k.snap()
                    I(f's_cbranch_vccz {Lp}\n' + (f's_waitcnt vmcnt({OPT["athr"]})' if OPT['athr'] else f's_sleep {OPT["pace"]}')); k.restore(sv_); k.label(Lp)
                else: I(f's_sleep {OPT["pace"]}')
        if sig is not None and cnt[0] == (OPT['sigat'] if i < 3 else OPT['sig2']):
            stamp(9 + 2*(i-1)); k.wait_vm(f'D{i-1}'); signal_full(sig); stamp(10 + 2*(i-1))
    if OPT.get('fst') and i >= 3: stamp(9 + 2*i)
    if OPT['apace'] and i >= 3: I(f's_cmp_gt_u32 s{t+4}, {OPT["apace"]}\ns_cselect_b64 vcc, 1, 0')
    I(f"""s_add_u32 s{t+2}, s{sS0}, {i}
s_and_b32 s{t+2}, s{t+2}, 7
s_lshl_b32 s{sXK}, s{t+2}, 7
s_mul_i32 s{sKW}, s{t+2}, s{sKWS}""")
    for tt in range(6):
        I(f's_add_u32 m0, s{sH1K}, {base + tt*4096}')
        if tt <= 1: I(f's_nop 0\nbuffer_load_dwordx4 v{vXo0 if tt == 0 else vXo1}, {srd(SX)}, s{sXK} offen{NTX} lds', tag)
        else: I(f's_add_u32 s{t}, s{sXK}, {(tt-1)*32768}\nbuffer_load_dwordx4 v{vXo1}, {srd(SX)}, s{t} offen{NTX} lds', tag)
        after()
    L7 = newlbl('x7')
    I(f"""s_cmp_eq_u32 s{sX7R}, 0
s_cbranch_scc1 {L7}
s_add_u32 m0, s{sH1K}, {base + 6*4096}
s_add_u32 s{t}, s{sXK}, {5*32768}
buffer_load_dwordx4 v{vXo1}, {srd(SX)}, s{t} offen{NTX} lds""", 'MAYBE')
    k.label(L7)
    after()
    I(f's_add_u32 s{t+1}, s{sKW}, s{sC}')
    for j in range(6):
        I(f's_add_u32 m0, s{sLW+j}, {base}')
        I(f'buffer_load_dwordx4 v{vW + j%3}, {srd(SWA if j < 3 else SWB)}, s{sKW if j < 3 else t+1} offen{NTW} lds', tag)
        after()

if OPT['diag']: I(f'v_writelane_b32 v{VDIAG}, s100, 62')
stamp(0)
stage_dma(0)
stamp(61)
I('s_barrier')
I(f"""v_mov_b32 v236, {L_FULL}
s_lshl_b32 s{t}, s{sH}, 2
v_add_u32 v238, s{t}, v236""")
vSD = 32
I(f'v_mov_b32 v18, 0\nglobal_load_dwordx2 v[16:17], v18, s[20:21] sc1', 'NC')
I(f"""s_lshr_b32 s{t}, s{sH}, 1
s_mul_i32 s{t}, s{t}, 12288
s_and_b32 s{t+1}, s{sH}, 1
s_lshl_b32 s{t+1}, s{t+1}, 7
s_add_u32 s{t}, s{t}, s{t+1}
s_add_u32 s{t}, s{t}, 24576
s_lshl_b32 s{t+1}, s{sH}, 13
s_add_u32 s{t+1}, s{t+1}, 26624
s_cmp_eq_u32 s{sISQ}, 1
s_cselect_b32 s{t}, s{t+1}, s{t}
s_movk_i32 s{t+1}, 192
s_cmov_b32 s{t+1}, 128
s_cselect_b32 s{t+2}, 2, 0
s_cselect_b32 s{t+3}, 64, 32
v_and_b32 v64, s{t+2}, v{vT}
v_xor_b32 v64, v64, v{vT+1}
v_lshlrev_b32 v64, 4, v64
v_mad_u32_u24 v64, v{vT}, s{t+1}, v64
v_add_u32 v64, s{t}, v64
v_xor_b32 v65, s{t+3}, v64
s_lshl_b32 s{t+1}, s{t+1}, 3
v_add_u32 v65, s{t+1}, v65
s_lshl_b32 s{t+5}, s{t+1}, 1""")
sSL2 = t + 5
I(f's_mov_b32 s{sSTR}, s{sSL2}')
mk_srd(SWS, 22, WS_REC); mk_srd(SAF, 22, AF_BYTES)

def nonce_get():
    k.wait_vm('NC')
    L = newlbl('np'); D = newlbl('npd'); R = newlbl('npr')
    I(f's_mov_b32 s{t+4}, 0')
    k.label(L)
    I(f"""v_readfirstlane_b32 s{sN}, v16
v_readfirstlane_b32 s{sN+1}, v17
s_add_u32 s{t+4}, s{t+4}, 1
s_add_u32 s{t}, s{sN}, 800
s_addc_u32 s{t+1}, s{sN+1}, 0
s_sub_u32 s{t}, s{t}, s{sT0}
s_subb_u32 s{t+1}, s{t+1}, s{sT0+1}
s_cmp_eq_u32 s{t+1}, 0
s_cbranch_scc1 {D}
s_memrealtime s[{t}:{t+1}]
s_cmp_eq_u64 s[{sN}:{sN+1}], 0
s_waitcnt lgkmcnt(0)
s_cbranch_scc1 {R}
s_sub_u32 s{t}, s{t}, s{sT0}
s_cmp_gt_u32 s{t}, 3000
s_cbranch_scc1 {D}""")
    k.label(R)
    sv = k.snap()
    I(f"""s_sleep 8
global_load_dwordx2 v[16:17], v18, s[20:21] sc1
s_waitcnt vmcnt(0)
s_cmp_lt_u32 s{t+4}, 0x20000
s_cbranch_scc1 {L}""")
    k.restore(sv)
    k.label(D)

def tab8(vals, dst, idx8):
    lo = sum(v << (8*i) for i, v in enumerate(vals[:4])); hi = sum(v << (8*i) for i, v in enumerate(vals[4:]))
    I(f"""s_mov_b32 s{t}, {lo}
s_mov_b32 s{t+1}, {hi}
s_lshr_b64 s[{t}:{t+1}], s[{t}:{t+1}], s{idx8}
s_and_b32 s{dst}, s{t}, 0xff""")
KBASE = [0, 16, 32, 47, 62, 76, 90, 104]
NSTEP = [16, 16, 15, 15, 14, 14, 14, 14]
PC0 = [15, 19, 0, 2, 5, 7, 9, 12]
PCN = [3, 3, 2, 2, 2, 2, 2, 2]
if OPT['lvl']:
    KBASE = [0, 16, 32, 46, 60, 75, 89, 104]
    NSTEP = [16, 16, 14, 14, 15, 14, 15, 14]
    PC0 = [15, 19, 0, 7, 0, 7, 0, 7]
    PCN = [3, 3, 6, 6, 7, 7, 7, 7]
SWC = SSL
sBROWC, sNVC = 100, 101
def p2_params(helper):
    I(f's_lshl_b32 s{t+2}, s{sWAVE}, 3')
    tab8(KBASE, sABASE, t+2); tab8(NSTEP, sNV, t+2)
    I(f"""s_lshl_b32 s{t+3}, s{sCB2}, 7
s_add_u32 s{t+3}, s{t+3}, {W_PK >> 11}
s_add_u32 s{sBROW}, s{sABASE}, s{t+3}""")
    if helper:
        I(f's_lshl_b32 s{t+2}, s{sH}, 3')
        tab8(KBASE, sBROWC, t+2); tab8(NSTEP, sNVC, t+2)
        I(f's_add_u32 s{sBROWC}, s{sBROWC}, s{t+3}')
    I(f"""s_lshl_b32 s{sLB2}, s{sH}, 11
s_mul_i32 s{sROT}, s{sCB2}, {OPT['rot']}
s_mul_i32 s{t}, s{sRB2}, {OPT['rotb']}
s_add_u32 s{sROT}, s{sROT}, s{t}
s_mul_i32 s{t}, s{sRB2}, {2*118}
s_add_u32 s{sABASE}, s{sABASE}, s{t}""")

ACC, PK, VA1, VA2, VL16, VXR = 0, 64, 240, 243, 246, 250
HPK = 148
def p2_addr():
    I(f"""v_lshlrev_b32 v{VL16}, 4, v{VLANE}
v_add_u32 v{VA1}, s{sLB2}, v{VL16}
v_add_u32 v{VA1+1}, 0x10000, v{VA1}
v_add_u32 v{VA1+2}, 0x20000, v{VA1}""")
def b2_setup():
    p2_params(True)
    p2_addr()
    I(f"""v_and_b32 v{vT+4}, 4, v{vT}
v_and_b32 v{vT+5}, 1, v{vT}
v_add_u32 v{vT+4}, v{vT+4}, v{vT+5}
v_bfe_u32 v{vT+5}, v{VLANE}, 2, 1
v_lshl_add_u32 v{vT+4}, v{vT+5}, 1, v{vT+4}
v_lshlrev_b32 v{vT+4}, 10, v{vT+4}
v_bfe_u32 v{vT+5}, v{vT}, 1, 1
v_lshl_add_u32 v{vT+4}, v{vT+5}, 6, v{vT+4}
v_and_b32 v{vT+5}, 3, v{VLANE}
v_lshl_add_u32 v{vB2}, v{vT+5}, 4, v{vT+4}""")

SIG_L = [13,14,15,16,17,18, 6,7,8,9, 3,4,5, 0,1,2]
PKR = [64 + 8*j for j in range(16)]
CBR = {6 + j: 192 + 8*j for j in range(4)}
HAW = [192 + 8*j for j in range(5)]
def b2_off(step, own):
    I(f"""s_add_u32 s{t+2}, s{sROT}, {step}
s_and_b32 s{t+2}, s{t+2}, 15
s_add_u32 s{t}, s{sBROW if own else sBROWC}, s{t+2}
s_lshl_b32 s{t}, s{t}, 11
s_cmp_lt_u32 s{t+2}, s{sNV if own else sNVC}
s_cselect_b32 s{t}, s{t}, {OOB}""")
def b2_dma(step, own, tag):
    sig = SIG_L[step]
    b2_off(step, own)
    k.throttle(OPT['thrd'])
    I(f"""s_add_u32 m0, s{sLB2}, {sig*8192}
buffer_load_dwordx4 v{VL16}, {srd(SWS)}, s{t} offen sc1 lds
buffer_load_dwordx4 v{VL16}, {srd(SWS)}, s{t} offen offset:1024 sc1 lds""", tag)
def b2_raw(step, own, d, tag):
    b2_off(step, own)
    k.throttle(OPT['thrb'])
    I(f"""buffer_load_dwordx4 v[{d}:{d+3}], v{VL16}, {srd(SWS)}, s{t} offen sc1
buffer_load_dwordx4 v[{d+4}:{d+7}], v{VL16}, {srd(SWS)}, s{t} offen offset:1024 sc1""", tag)
L_RST = L_AOS + 208*16
def row_stats():
    vA = 212
    I(f's_mov_b32 s{t}, 0x3f803f80\ns_waitcnt vmcnt(0)')
    for d in range(4):
        for a in range(3):
            D = vRD + 4*a + d
            I(f'v_dot2_f32_bf16 v{vA+2*a}, v{D}, s{t}, ' + ('0' if d == 0 else f'v{vA+2*a}'))
            I(f'v_dot2_f32_bf16 v{vA+2*a+1}, v{D}, v{D}, ' + ('0' if d == 0 else f'v{vA+2*a+1}'))
    I('s_nop 2')
    for step in ('row_shr:1 row_mask:0xf bank_mask:0xf bound_ctrl:0', 'row_shr:2 row_mask:0xf bank_mask:0xf bound_ctrl:0',
                 'row_shr:4 row_mask:0xf bank_mask:0xf bound_ctrl:0', 'row_shr:8 row_mask:0xf bank_mask:0xf bound_ctrl:0',
                 'row_bcast:15 row_mask:0xa bank_mask:0xf', 'row_bcast:31 row_mask:0xc bank_mask:0xf'):
        for i in range(6): I(f'v_add_f32_dpp v{vA+i}, v{vA+i}, v{vA+i} {step}')
    I(f"""s_mul_i32 s{t}, s{sWAVE}, 24
s_add_u32 s{t}, s{t}, {L_RST}
v_mov_b32 v218, s{t}
s_mov_b32 exec_lo, 0
s_mov_b32 exec_hi, 0x80000000
s_mov_b32 s{t+1}, {f32(1/512)}
s_mov_b32 s{t+2}, {f32(1e-5)}""")
    for a in range(3):
        G = vA + 2*a
        I(f"""v_mul_f32 v{G}, s{t+1}, v{G}
v_mul_f32 v{G+1}, s{t+1}, v{G+1}
v_fma_f32 v{G+1}, -v{G}, v{G}, v{G+1}
v_max_f32 v{G+1}, 0, v{G+1}
v_add_f32 v{G+1}, s{t+2}, v{G+1}
ds_write_b64 v218, v[{G}:{G+1}] offset:{8*a}""")
    I('s_mov_b64 exec, -1')
def row_publish():
    I(f"""s_mul_i32 s{t}, s{sH}, 24
s_add_u32 s{t}, s{t}, {L_RST}
v_min_u32 v72, 2, v{VLANE}
v_lshl_add_u32 v73, v72, 3, s{t}
ds_read_b64 v[76:77], v73
s_mul_i32 s{t}, s{sRB}, 192
s_mul_i32 s{t+1}, s{sCOL}, 12
s_add_u32 s{t}, s{t}, s{t+1}
s_mul_i32 s{t+1}, s{sH}, 3
s_add_u32 s{t}, s{t}, s{t+1}
s_lshl_b32 s{t}, s{t}, 4
s_add_u32 s{t}, s{t}, {W_RS}
s_cmp_lt_u32 s{sCOL}, 16
s_cselect_b32 s{t}, s{t}, {OOB}
v_lshlrev_b32 v72, 4, v72
v_mov_b32 v78, s{sN}
v_mov_b32 v79, s{sN+1}
s_waitcnt lgkmcnt(0)
buffer_store_dwordx4 v[76:79], v72, {srd(SWS)}, s{t} offen sc1""", 'PUB')

def slab_reads():
    for a in range(8):
        I(f'ds_read_b128 v[{vSD+4*a}:{vSD+4*a+3}], v{64 + (a & 1)}')
        if a & 1 and a < 7: I(f'v_add_u32 v64, s{sSTR}, v64\nv_add_u32 v65, s{sSTR}, v65')
    I('s_waitcnt lgkmcnt(0)')

def col_stats():
    vA = 90
    for a in range(8):
        for d in range(4):
            D = vSD + 4*a + d
            if a == 0:
                I(f'v_lshlrev_b32 v{vA+2*d}, 16, v{D}\nv_and_b32 v{vA+2*d+1}, 0xffff0000, v{D}')
            else:
                I(f'v_lshlrev_b32 v72, 16, v{D}\nv_and_b32 v73, 0xffff0000, v{D}\nv_add_f32 v{vA+2*d}, v{vA+2*d}, v72\nv_add_f32 v{vA+2*d+1}, v{vA+2*d+1}, v73')
    for e in range(4): I(f'v_permlane32_swap_b32 v{vA+e}, v{vA+e+4}')
    for e in range(4): I(f'v_add_f32 v{vA+e}, v{vA+e}, v{vA+e+4}')
    for e in range(2): I(f'v_permlane16_swap_b32 v{vA+e}, v{vA+e+2}')
    for e in range(2): I(f'v_add_f32 v{vA+e}, v{vA+e}, v{vA+e+2}')
    for e in range(2): I(f'v_add_f32_dpp v{vA+8+e}, v{vA+e}, v{vA+e} row_ror:8 row_mask:0xf bank_mask:0xf')
def col_publish():
    vA = 90
    I(f"""v_mov_b32 v{vA+10}, s{sN}
v_mov_b32 v{vA+11}, s{sN+1}
v_lshrrev_b32 v72, 4, v{VLANE}
v_lshl_add_u32 v72, v{vT+1}, 2, v72
v_lshlrev_b32 v72, 4, v72
v_and_b32 v73, 8, v{VLANE}
v_cmp_eq_u32 vcc, 0, v73
v_mov_b32 v73, {OOB}
v_cndmask_b32 v72, v73, v72, vcc
s_lshl_b32 s{t}, s{sCOL}, 14
s_lshl_b32 s{t+1}, s{sS0}, 11
s_add_u32 s{t}, s{t}, s{t+1}
s_lshl_b32 s{t+1}, s{sH}, 9
s_add_u32 s{t}, s{t}, s{t+1}
s_add_u32 s{t}, s{t}, {W_CSP}
buffer_store_dwordx4 v[{vA+8}:{vA+11}], v72, {srd(SWS)}, s{t} offen sc1""", 'PUB')

vCL = 4*2+2
vCL = 20
sVAL = t + 8
def collect_setup():
    I(f"""s_lshl_b32 s{t}, s{sH}, 9
s_lshl_b32 s{t+1}, s{sCOL}, 14
s_add_u32 s{t}, s{t}, s{t+1}
s_add_u32 s{t}, s{t}, {W_CSP}
v_and_b32 v200, 31, v{VLANE}
v_lshlrev_b32 v200, 4, v200
v_lshrrev_b32 v201, 5, v{VLANE}
v_lshl_add_u32 v200, v201, 13, v200
v_add_u32 v200, s{t}, v200
s_lshl_b32 s{t}, s{sH}, 6
v_add_u32 v202, s{t}, v{VLANE}
s_mul_i32 s{t}, s{sRB}, 192
s_lshl_b32 s{t+1}, s{sISQ}, 4
s_sub_i32 s{t}, s{t}, s{t+1}
v_add_u32 v201, s{t}, v202
s_add_u32 s{t+1}, s{t+1}, 192
v_cmp_gt_u32 vcc, s{t+1}, v202
s_mov_b64 s[{t+2}:{t+3}], vcc
v_mov_b32 v203, 2048
v_cmp_gt_u32 vcc, v203, v201
s_and_b64 s[{sVAL}:{sVAL+1}], vcc, s[{t+2}:{t+3}]
v_lshlrev_b32 v201, 4, v201
v_add_u32 v201, {W_RS}, v201
v_mov_b32 v203, {OOB}
v_cndmask_b32 v201, v203, v201, s[{sVAL}:{sVAL+1}]
v_lshlrev_b32 v204, 4, v202
v_add_u32 v204, {L_AOS}, v204
v_mov_b32 v203, {L_SCR}
v_cndmask_b32 v204, v203, v204, s[{t+2}:{t+3}]
v_lshlrev_b32 v205, 2, v202
v_add_u32 v205, {L_SM}, v205
s_lshl_b32 s{t}, s{sH}, 8
s_add_u32 s{t}, s{t}, {L_CS}
v_and_b32 v203, 31, v{VLANE}
v_lshlrev_b32 v203, 3, v203
v_add_u32 v203, s{t}, v203
v_and_b32 v206, 15, v{VLANE}
v_mov_b32 v207, s{sBROW}
v_mov_b32 v208, s{sBROWC}
v_mov_b32 v209, s{sNV}
v_mov_b32 v210, s{sNVC}
v_cmp_gt_u32 vcc, 32, v{VLANE}
v_cndmask_b32 v207, v208, v207, vcc
v_cndmask_b32 v209, v210, v209, vcc
v_add_u32 v209, -1, v209
v_min_u32 v206, v206, v209
v_add_u32 v206, v206, v207
v_subrev_u32 v206, {W_PK >> 11}, v206
v_lshlrev_b32 v206, 4, v206
v_add_u32 v206, {W_PF}, v206""")
def collect_loads(tag):
    for p in range(4):
        if p < 2: I(f'buffer_load_dwordx4 v[{vCL+4*p}:{vCL+4*p+3}], v200, {srd(SWS)}, 0 offen offset:{p*2048} sc1', tag)
        else: I(f's_movk_i32 s{t}, {p*2048}\nbuffer_load_dwordx4 v[{vCL+4*p}:{vCL+4*p+3}], v200, {srd(SWS)}, s{t} offen sc1', tag)
    I(f'buffer_load_dwordx4 v[{vCL+16}:{vCL+19}], v201, {srd(SWS)}, 0 offen sc1', tag)
    I(f'buffer_load_dwordx2 v[{vCL+20}:{vCL+21}], v206, {srd(SWS)}, 0 offen sc1', tag)
def collect_check(ok):
    I(f"""v_cmp_eq_u64 vcc, s[{sN}:{sN+1}], v[{vCL+18}:{vCL+19}]
s_orn2_b64 s[{t+2}:{t+3}], vcc, s[{sVAL}:{sVAL+1}]
v_cmp_eq_u64 vcc, s[{sN}:{sN+1}], v[{vCL+20}:{vCL+21}]
s_and_b64 s[{t+2}:{t+3}], s[{t+2}:{t+3}], vcc""")
    for p in range(4):
        I(f"""v_cmp_eq_u64 vcc, s[{sN}:{sN+1}], v[{vCL+4*p+2}:{vCL+4*p+3}]
s_and_b64 s[{t+2}:{t+3}], s[{t+2}:{t+3}], vcc""")
    I(f's_cmp_eq_u64 s[{t+2}:{t+3}], -1\ns_cbranch_scc1 {ok}')
def collect_finish():
    k.wait_vm('CL')
    ok = newlbl('clok'); L = newlbl('clre')
    collect_check(ok)
    I(f's_mov_b32 s{t+4}, 0')
    k.label(L)
    sv = k.snap()
    I('s_sleep 4')
    collect_loads(None)
    I(f's_waitcnt vmcnt(0)\ns_add_u32 s{t+4}, s{t+4}, 1')
    collect_check(ok)
    I(f's_cmp_lt_u32 s{t+4}, 0x20000\ns_cbranch_scc1 {L}')
    k.restore(sv)
    k.label(ok)
    R = vCL + 16
    I(f"""v_add_f32 v{vCL}, v{vCL}, v{vCL+4}
v_add_f32 v{vCL+1}, v{vCL+1}, v{vCL+5}
v_add_f32 v{vCL+8}, v{vCL+8}, v{vCL+12}
v_add_f32 v{vCL+9}, v{vCL+9}, v{vCL+13}
v_add_f32 v{vCL}, v{vCL}, v{vCL+8}
v_add_f32 v{vCL+1}, v{vCL+1}, v{vCL+9}
v_cndmask_b32 v{R}, 0, v{R}, s[{sVAL}:{sVAL+1}]
v_cndmask_b32 v{R+2}, 1.0, v{R+1}, s[{sVAL}:{sVAL+1}]
v_mov_b32 v{vCL+2}, v{vCL}
v_mov_b32 v{vCL+3}, v{vCL+1}
v_rsq_f32 v{R+1}, v{R+2}
s_cmp_eq_u32 s{sISQ}, 1
s_mov_b32 s{t}, {f32(-LOG2E)}
s_cmov_b32 s{t}, {f32(0.25*LOG2E)}
v_permlane32_swap_b32 v{vCL}, v{vCL+2}
v_permlane32_swap_b32 v{vCL+1}, v{vCL+3}
v_mul_f32 v{R+3}, s{t}, v{R+1}
v_add_f32 v{vCL}, v{vCL}, v{vCL+2}
v_add_f32 v{vCL+1}, v{vCL+1}, v{vCL+3}
ds_write_b128 v204, v[{R}:{R+3}]
ds_write_b32 v205, v{R}
ds_write_b32 v205, v{R+1} offset:1024
ds_write_b64 v203, v[{vCL}:{vCL+1}]
ds_write_b64 v236, v[16:17] offset:{L_NONCE - L_FULL}
s_waitcnt lgkmcnt(0)""")

def b2_touch(part):
    if part == 0:
        mk_srd(SOUT, 16, 1376*1024)
        I(f"""s_lshl_b32 s{t}, s{sSLOTID}, 2
s_add_u32 s{t}, s{t}, s{sH}
s_mul_i32 s{t}, s{t}, 43*256
v_lshlrev_b32 v48, 7, v{VLANE}
v_add_u32 v48, s{t}, v48
v_cmp_gt_u32 vcc, 43, v{VLANE}
v_mov_b32 v50, {OOB}
v_cndmask_b32 v48, v50, v48, vcc
buffer_load_dword v51, v48, {srd(SOUT)}, 0 offen""", 'TB')
    elif part == 1:
        I(f"""s_movk_i32 s{t}, 43*128
buffer_load_dword v52, v48, {srd(SOUT)}, s{t} offen""", 'TB')
    else:
        I(f"""s_lshl_b32 s{t}, s{sSLOTID}, 2
s_add_u32 s{t}, s{t}, s{sH}
s_lshl_b32 s{t}, s{t}, 12
v_and_b32 v48, 31, v{VLANE}
v_lshlrev_b32 v48, 7, v48
v_add_u32 v48, s{t}, v48""")
        mk_srd(SOUT, 8, 512*1024)
        I(f'buffer_load_dword v53, v48, {srd(SOUT)}, 0 offen', 'TB')
def pack_load():
    I(f"""s_and_b32 s{t}, s2, 7
s_lshr_b32 s{t+1}, s{sSLOTID}, 1
s_lshl_b32 s{t+1}, s{t+1}, 3
s_add_u32 s{t}, s{t}, s{t+1}
s_and_b32 s{t+1}, s{sSLOTID}, 1
s_lshl_b32 s{t+1}, s{t+1}, 2
s_add_u32 s{t+1}, s{t+1}, s{sH}
s_lshl_b32 s{t+2}, s{t+1}, 7
s_add_u32 s{sPKI}, s{t+2}, s{t}
s_cmp_lt_u32 s{t}, 32
s_cselect_b32 s{SOUT}, s8, s16
s_cselect_b32 s{SOUT+1}, s9, s17
s_mov_b32 s{SOUT+2}, {1376*1024}
s_cmov_b32 s{SOUT+2}, {512*1024}
s_mov_b32 s{SOUT+3}, 0x20000
s_cselect_b32 s{t+3}, 0, 32
@@PKMAP
s_lshl_b32 s{t}, s{t}, 14
s_add_u32 s{t}, s{t}, s{t+2}
s_add_u32 s{t+1}, s{t}, 8192
s_mov_b32 s{t+2}, {MISC - 2048}
s_cmp_ge_u32 s{sH}, 1
s_cmov_b32 s{t+2}, {MISC}
s_cmp_ge_u32 s{sH}, 2
s_cmov_b32 s{t+2}, {MISC + 4096}
s_cmp_ge_u32 s{sH}, 3
s_cmov_b32 s{t+2}, {MISC + 6144}
s_mov_b32 m0, s{t+2}
s_cmp_eq_u32 s{t+3}, 0
buffer_load_dwordx4 v{vB2}, {srd(SOUT)}, s{t} offen{NTB} lds
s_add_u32 m0, s{t+2}, 1024
s_cmp_eq_u32 s{t+3}, 0
buffer_load_dwordx4 v{vB2}, {srd(SOUT)}, s{t+1} offen{NTB} lds""", 'PKL')
    I(f"""v_lshrrev_b32 v112, 5, v{VLANE}
v_lshlrev_b32 v112, 10, v112
v_bfe_u32 v113, v{VLANE}, 2, 1
v_lshl_add_u32 v112, v113, 7, v112
v_bfe_u32 v113, v{VLANE}, 3, 1
v_lshl_add_u32 v112, v113, 6, v112
v_bfe_u32 v113, v{VLANE}, 4, 1
v_lshl_add_u32 v112, v113, 5, v112
v_and_b32 v113, 3, v{VLANE}
v_lshl_add_u32 v112, v113, 3, v112
v_add_u32 v112, s{t+2}, v112
v_add_u32 v113, 512, v112""")
    pm = f's_sub_u32 s{t}, s{t}, s{t+3}'
    if OPT['lvl']:
        pm = f"""s_mul_i32 s{t+4}, s{t}, 3
  s_sub_u32 s{t+5}, s{t+4}, {3*32-2}
  s_cmp_ge_u32 s{t}, 60
  s_cselect_b32 s{t+6}, {3*60 - (3*32-2)}, 0
  s_cmp_ge_u32 s{t}, 89
  s_cselect_b32 s{t+6}, {3*89-1 - (3*32-2)}, s{t+6}
  s_sub_u32 s{t+5}, s{t+5}, s{t+6}
  s_cmp_lt_u32 s{t}, 32
  s_cselect_b32 s{t}, s{t}, s{t+5}"""
    k.out = [x.replace('@@PKMAP', pm) for x in k.out]
def pack_store():
    k.wait_vm('PKL')
    for ct in range(2):
        I(f'ds_read_b64_tr_b16 v[{104+4*ct}:{105+4*ct}], v112 offset:{ct*256}\nds_read_b64_tr_b16 v[{106+4*ct}:{107+4*ct}], v113 offset:{ct*256}')
    I(f"""s_lshl_b32 s{t}, s{sPKI}, 11
s_add_u32 s{t}, s{t}, {W_PK}
s_waitcnt lgkmcnt(0)
buffer_store_dwordx4 v[104:107], v{vL16}, {srd(SWS)}, s{t} offen sc1
buffer_store_dwordx4 v[108:111], v{vL16}, {srd(SWS)}, s{t} offen offset:1024 sc1""", 'PKS')
def pack_flag():
    k.wait_vm('PKS')
    I(f"""s_lshl_b32 s{t}, s{sPKI}, 4
s_add_u32 s{t}, s{t}, {W_PF}
v_mov_b32 v104, s{sN}
v_mov_b32 v105, s{sN+1}
v_mov_b32 v106, 0
buffer_store_dwordx2 v[104:105], v106, {srd(SWS)}, s{t} offen sc1""", 'PUB')
def touch_at(i):
    if OPT['ps'] == i: pack_store()
    if OPT['pl'] == i: pack_load()
    if OPT['pf'] == i: pack_flag()
    if OPT['tl'] == i: tlb_touch()
    for p in range(3):
        if OPT[f'tb{p}'] == i: b2_touch(p)

def tlb_touch():
    mk_srd(SOUT, 18, 2048*1024)
    I(f"""s_mul_i32 s{t}, s{sRB2}, {2*118*1024}
s_lshl_b32 s{t+1}, s{sCB2}, 18
s_add_u32 s{t+1}, s{t+1}, {W_PK}
s_cmp_eq_u32 s{sH}, 1
s_cmov_b32 s{t}, s{t+1}
s_cmp_eq_u32 s{sH}, 3
s_cmov_b32 s{t}, {W_FL}
s_cmp_eq_u32 s{sH}, 2
s_cmov_b32 s{t}, {OOB}
s_lshl_b32 s{t+1}, s{sRB2}, 16
s_cselect_b32 s{t+1}, s{t+1}, {OOB}
v_lshlrev_b32 v114, 12, v{VLANE}
v_min_u32 v114, {59*4096}, v114
buffer_load_dword v115, v114, {srd(SWS)}, s{t} offen sc1
v_and_b32 v114, 0xffff, v114
buffer_load_dword v116, v114, {srd(SOUT)}, s{t+1} offen""", 'TL')
def landed(i):
    if not (OPT.get('fst') and i >= 3): stamp(9 + 2*i)
    k.wait_vm(f'D{i}'); signal_full(i + 1); stamp(10 + 2*i); touch_at(i)
SLS = t + 7
b2_setup(); collect_setup()
touch_at(0)
stage_dma(1, 1)
spin(L_FULL, 1); slab_reads()
stamp(1)
touch_at(1)
stage_dma(2, 2)
def advance(i, extra_full=False):
    L1 = newlbl('adv')
    I(f"""ds_read_b128 v[{VFL}:{VFL+3}], v236 offset:{L_FREE - L_FULL}
s_mov_b32 s{t+4}, 0
s_waitcnt lgkmcnt(0)
v_min_u32 v{VFL}, v{VFL}, v{VFL+1}
v_min3_u32 v{VFL}, v{VFL}, v{VFL+2}, v{VFL+3}
v_cmp_gt_u32 vcc, {i-2}, v{VFL}
s_nop 0
s_cbranch_vccz {L1}""")
    sv = k.snap()
    k.wait_vm(f'D{i-1}'); signal_full(i)
    spin(L_FREE, i - 2)
    k.restore(sv)
    k.label(L1)
    if extra_full: spin(L_FULL, 2)
    stage_dma(i, i)
    touch_at(i - 1)
col_stats(); nonce_get(); col_publish()
advance(3, True); row_publish()
advance(4)
advance(5)
if OPT['cl'] == 5: collect_loads('CL')
advance(6)
if OPT['cl'] == 6: collect_loads('CL')
if OPT['cl'] == 5:
    collect_finish()
    for j in range(OPT['nr6']): b2_raw(j, True, PKR[j], 'RP')
advance(7)
if OPT['cl'] == 6: collect_finish()
for j in range(OPT['nr6'] if OPT['cl'] == 5 else 0, OPT['nr0']): b2_raw(j, True, PKR[j], 'RP')
stamp(23); k.wait_vm('D7'); stamp(24)
signal_full(9)
for j in range(max(OPT['nr0'], OPT['nr6'] if OPT['cl'] == 5 else 0), OPT['nr7']): b2_raw(j, True, PKR[j], 'RP')
spin(L_FREE, 6); stamp(2)
for j in range(6): b2_dma(j, False, 'L')
for j in range(OPT['nr7'], OPT['nr8']): b2_raw(j, True, PKR[j], 'RP')
spin(L_FREE, 7)
for j in range(10, 16): b2_dma(j, False, 'L')
for j in range(OPT['nr8'], OPT['nr9']): b2_raw(j, True, PKR[j], 'RP')
stamp(3)
k.wait_vm('L')
signal_full(10)
stamp(4)
if OPT['hold']:
    if OPT['hold'] == 2: I(f's_cmp_eq_u32 s{sISQ}, 1\ns_cbranch_scc1 L_NOHOLD')
    spin(L_FREE, 9)
    k.label('L_NOHOLD')
    if OPT['hold'] == 2: spin(L_FREE, 8)
for j in range(OPT['nr9'], 16): b2_raw(j, True, PKR[j], 'RP')
k.vm_reset()
I(f's_setprio {OPT["hprio"]}')

k.label('L_P2')
if OPT['walk']: k.begin_region('P')
k.c('---- phase 2 setup')
VOO, VP = 248, 228
XA_, XR_ = 232, [243, 244, 245, 247]
I(f's_lshl_b32 s{t+5}, s{sWAVE}, 3')
tab8(PC0, t+6, t+5); tab8(PCN, t+7, t+5)
I(f"""s_mul_i32 s{t}, s{sRB2}, 86
s_lshr_b32 s{t}, s{t}, 8
s_mul_i32 s{t}, s{t}, 23
s_add_u32 s{t}, s{t}, s{t+6}
v_lshrrev_b32 v1, 2, v{VLANE}
v_min_u32 v1, s{t+7}, v1
v_add_u32 v1, s{t}, v1
v_lshlrev_b32 v1, {max(7, OPT['fsh']+2)}, v1
v_and_b32 v2, 3, v{VLANE}
v_lshl_add_u32 v1, v2, {OPT['fsh']}, v1
s_and_b32 s{t}, s{sWAVE}, {4 if OPT['lvl'] else 0}
s_lshl_b32 s{t}, s{t}, 4
s_add_u32 s{t}, s{t}, {W_FL}
v_add_u32 v{VP}, s{t}, v1
s_lshl_b32 s{t}, s{sWAVE}, 3
s_lshl_b32 s{t+1}, s{sRB2}, 6
s_add_u32 s{t}, s{t}, s{t+1}
v_lshrrev_b32 v1, 3, v{VLANE}
v_add_u32 v1, s{t}, v1
v_lshlrev_b32 v1, 10, v1
v_and_b32 v2, 7, v{VLANE}
v_lshl_add_u32 v1, v2, 4, v1
s_lshl_b32 s{t}, s{sCB2}, 7
v_add_u32 v{VOO}, s{t}, v1
v_add_u32 v{VOO+1}, {118*1024}, v{VL16}
s_lshl_b32 s{t}, s{sWAVE}, 14
s_add_u32 s{t}, s{t}, 24576
v_and_b32 v1, 31, v{VLANE}
v_lshlrev_b32 v1, 8, v1
v_add_u32 v1, s{t}, v1
v_lshrrev_b32 v2, 5, v{VLANE}
v_and_b32 v3, 7, v{VLANE}
v_xor_b32 v2, v2, v3""")
for i2 in range(4): I(f'v_xor_b32 v{XA_+i2}, {2*i2}, v2\nv_lshl_add_u32 v{XA_+i2}, v{XA_+i2}, 4, v1')
I(f"""s_lshl_b32 s{t}, s{sWAVE}, 11
s_add_u32 s{t}, s{t}, 24576
v_lshrrev_b32 v1, 3, v{VLANE}
v_and_b32 v2, 3, v{VLANE}
v_lshlrev_b32 v2, 1, v2
v_xor_b32 v2, v2, v1
v_lshlrev_b32 v2, 4, v2
v_lshl_add_u32 v2, v1, 8, v2
v_and_b32 v1, 4, v{VLANE}
v_lshl_add_u32 v2, v1, 5, v2
v_add_u32 v{XR_[0]}, s{t}, v2
v_xor_b32 v{XR_[1]}, 16, v{XR_[0]}
v_add_u32 v{XR_[2]}, 0x10000, v{XR_[0]}
v_add_u32 v{XR_[3]}, 0x10000, v{XR_[1]}
v_mov_b32 v236, {L_FULL}
s_mov_b32 s{t+4}, 0""")
mk_srd(SOUT, 18, 2048*1024)
stamp(5)
if OPT['pmask']: I('s_mov_b32 exec_hi, 0')
k.label('L_POLL')
I(f"""buffer_load_dwordx2 v[{VP+2}:{VP+3}], v{VP}, {srd(SWS)}, 0 offen{OPT_FLD}
s_add_u32 s{t+4}, s{t+4}, 1
s_waitcnt vmcnt(0)
v_cmp_eq_u64 vcc, s[{sN}:{sN+1}], v[{VP+2}:{VP+3}]
s_cmp_eq_u64 vcc, exec
s_cbranch_scc1 L_POLLED
s_sleep {OPT['psleep']}
s_cmp_lt_u32 s{t+4}, 0x20000
s_cbranch_scc1 L_POLL""")
k.label('L_POLLED')
I('s_mov_b64 exec, -1')
if OPT['pbar']: I('s_barrier')
k.vm_reset()
stamp(6)
def a_load(i, AW):
    d = AW[i % len(AW)]
    I(f"""s_add_u32 s{t+2}, s{sROT}, {i}
s_and_b32 s{t+2}, s{t+2}, 15
s_add_u32 s{t}, s{sABASE}, s{t+2}
s_lshl_b32 s{t}, s{t}, 10
s_cmp_lt_u32 s{t+2}, s{sNV}
s_cselect_b32 s{t}, s{t}, {OOB}
buffer_load_dwordx4 v[{d}:{d+3}], v{VL16}, {srd(SAF)}, s{t} offen{OPT_ALD}
buffer_load_dwordx4 v[{d+4}:{d+7}], v{VOO+1}, {srd(SAF)}, s{t} offen{OPT_ALD}""", f'A{i}')
def frag_reads(i, d):
    if i in CBR: return 0
    off = SIG_L[i] * 8192; r = off >> 16; off &= 0xffff
    I(f'ds_read_b128 v[{d}:{d+3}], v{VA1+r} offset:{off}\nds_read_b128 v[{d+4}:{d+7}], v{VA1+r} offset:{off+1024}')
    return 2
def p2_stream(helper, nwin=None):
    AW = HAW[:OPT['naw']] if helper else [96 + 8*j for j in range(nwin)]
    nw = len(AW)
    BD = 64
    pend = []
    for i in range(nw): a_load(i, AW)
    if not helper:
        L = newlbl('pw'); D = newlbl('pwd')
        I(f's_lshl_b32 s{t}, s{sH}, 2\ns_add_u32 s{t}, s{t}, {L_FULL}\nv_mov_b32 v238, s{t}\ns_mov_b32 s{t+4}, 0')
        k.label(L)
        I(f"""ds_read_b32 v239, v238
s_add_u32 s{t+4}, s{t+4}, 1
s_waitcnt lgkmcnt(0)
v_cmp_gt_u32 vcc, 10, v239
s_cmp_lt_u32 s{t+4}, 0x400000
s_cbranch_vccz {D}
s_cbranch_scc1 {L}""")
        k.label(D)
        for i in range(2): pend += [i] * frag_reads(i, BD + 8*i)
    stamp(25)
    for i in range(16):
        lgn = None
        if not helper:
            if i + 2 < 16: pend += [i + 2] * frag_reads(i + 2, BD + 8*((i + 2) % 3))
            if i in pend:
                last = max(n_ for n_, x in enumerate(pend) if x == i); lgn = len(pend) - 1 - last; pend = pend[last + 1:]
        b = PKR[i] if helper else CBR.get(i, BD + 8*(i % 3))
        a = AW[i % nw]
        k.wait_vm(f'A{i}', lgn)
        if i == 12 and OPT['midbar'] == 1: I('s_barrier')
        if i == 12 and OPT['midbar'] == 2 and not helper: I('v_mov_b32 v239, 10\nds_write_b32 v238, v239 offset:16'); pend.append(-1)
        for mt in range(2):
            for ct in range(2):
                r = ACC + 32*mt + 16*ct
                if not (OPT.get('nomf') and i > 0): I(f'v_mfma_f32_32x32x16_bf16 v[{r}:{r+15}], v[{b+4*ct}:{b+4*ct+3}], v[{a+4*mt}:{a+4*mt+3}], ' + ('0' if i == 0 else f'v[{r}:{r+15}]'))
        if i + nw < 16: a_load(i + nw, AW)
        if i + nw == 16 or (nw == 16 and i == 0): I(f'buffer_load_dwordx4 v[{VXR}:{VXR+3}], v{VOO}, {srd(SX)}, 0 offen', 'XR')
        if i in (0, 3, 7, 11): stamp(26 + (i + 1)//4)
I(f's_cmp_lt_u32 s{sWAVE}, 4\ns_cbranch_scc1 L_P2C')
p2_stream(True)
I('s_branch L_P2E')
k.label('L_P2C')
k.vm_reset(); k.pv = []; k.pl = []
if OPT['naws'] != OPT['nawc']:
    I(f's_cmp_lt_u32 s{sWAVE}, 2\ns_cbranch_scc1 L_P2S')
p2_stream(False, OPT['nawc'])
if OPT['naws'] != OPT['nawc']:
    I('s_branch L_P2E')
    k.label('L_P2S')
    k.vm_reset(); k.pv = []; k.pl = []
    p2_stream(False, OPT['naws'])
k.label('L_P2E')
stamp(7)
k.c('---- reduction + final epilogue')
if not OPT['midbar']: I('s_barrier')
if OPT['midbar'] == 2:
    VFL_ = VFL; VFL = 64; spin(L_FREE, 10, sleep=0); VFL = VFL_
for mt in range(2 if OPT.get('tx') != 1 else 0):
    for ct in range(2):
        for i2 in range(4):
            r = 32*mt + 16*ct + 4*i2
            I(f'ds_write_b128 v{XA_+i2}, v[{r}:{r+3}] offset:{mt*8192 + ct*128}')
I(f"""s_mov_b32 s{t}, {f32(-LOG2E)}
s_mov_b32 s{t+1}, {f32(-LOG2E)}
s_mov_b32 s{t+2}, 1.0
s_mov_b32 s{t+3}, 1.0
s_waitcnt vmcnt(0)""")
X = 140
for d in range(4): I(f'v_lshlrev_b32 v{X+2*d}, 16, v{VXR+d}\nv_and_b32 v{X+2*d+1}, 0xffff0000, v{VXR+d}')
I('s_waitcnt lgkmcnt(0)\ns_barrier')
stamp(31)
R = 72
order = [2, 3, 4, 5, 6, 7, 0, 1]
for s_ in (order if OPT.get('tx') != 2 else []):
    for hf in range(2): I(f'ds_read_b128 v[{R+8*s_+4*hf}:{R+8*s_+4*hf+3}], v{XR_[2*(s_ >> 2) + hf]} offset:{(s_ & 3)*16384}')
F, E, S0 = R + 16, 148, R
PR = lambda r, p: f'v[{r+2*p}:{r+2*p+1}]'
for n_, s_ in enumerate(order[1:6]):
    I(f's_waitcnt lgkmcnt({12 - 2*n_})')
    for p in range(4): I(f'v_pk_add_f32 {PR(F,p)}, {PR(F,p)}, {PR(R+8*s_,p)}')
for p in range(4): I(f'v_pk_mul_f32 {PR(E,p)}, {PR(F,p)}, s[{t}:{t+1}]')
I('s_waitcnt lgkmcnt(0)')
for p in range(4): I(f'v_exp_f32 v{E+2*p}, v{E+2*p}\nv_exp_f32 v{E+2*p+1}, v{E+2*p+1}\nv_pk_add_f32 {PR(S0,p)}, {PR(S0,p)}, {PR(R+8,p)}')
for p in range(4): I(f'v_pk_add_f32 {PR(E,p)}, {PR(E,p)}, s[{t+2}:{t+3}]')
for p in range(4): I(f'v_rcp_f32 v{E+2*p}, v{E+2*p}\nv_rcp_f32 v{E+2*p+1}, v{E+2*p+1}\nv_pk_mul_f32 {PR(F,p)}, {PR(F,p)}, {PR(S0,p)}')
for p in range(4): I(f'v_pk_fma_f32 {PR(F,p)}, {PR(F,p)}, {PR(E,p)}, {PR(X,p)}')
for p in range(4): I(f'v_cvt_pk_bf16_f32 v{E+8+p}, v{F+2*p}, v{F+2*p+1}')
if OPT.get('tx') != 3: I(f'buffer_store_dwordx4 v[{E+8}:{E+11}], v{VOO}, {srd(SOUT)}, 0 offen{OPT_OUTST}')
k.end_region()
if OPT['diag']:
    I('s_waitcnt vmcnt(0)')
    stamp(8)
    I(f"""s_lshl_b32 s{t}, s2, 3
s_add_u32 s{t}, s{t}, s{sWAVE}
s_lshl_b32 s{t}, s{t}, 8
s_add_u32 s{t}, s{t}, {W_DIAG}
v_lshlrev_b32 v1, 2, v{VLANE}
buffer_store_dword v{VDIAG}, v1, {srd(SWS)}, s{t} offen""")
    if OPT['diag'] == 2:
        I(f"""s_cmp_lg_u32 s2, {OPT.get('dw', 0)}
s_cbranch_scc1 L_END
s_and_b32 s{t}, s{sWAVE}, 3
s_cmp_lg_u32 s{t}, 0
s_cbranch_scc1 L_END
s_cmp_eq_u32 s{sWAVE}, 0
s_cselect_b32 s{t}, 8, 44
s_cselect_b32 s{t+1}, 9, 5
v_add_u32 v1, s{t}, v1
v_cmp_gt_u32 vcc, s{t+1}, v{VLANE}
s_and_saveexec_b64 s[{t+2}:{t+3}], vcc
global_store_dword v1, v{VDIAG}, s[20:21]""")
if OPT.get('padto'):
    k.label('L_PAD')
    I(f"""s_memrealtime s[{t}:{t+1}]
s_waitcnt lgkmcnt(0)
s_sub_u32 s{t}, s{t}, s44
s_cmp_lt_u32 s{t}, {OPT['padto']}
s_cbranch_scc1 L_PAD""")
k.label('L_END')
I('s_endpgm')

k.label('L_C')
k.fresh()
I('s_waitcnt lgkmcnt(0)')
if OPT['diag']: I(f'v_writelane_b32 v{VDIAG}, s100, 62')
stamp(0)
if OPT['sct']:
    I(f"""s_lshl_b32 s{t}, s2, 2
s_add_u32 s{t}, s{t}, s{sWAVE}
s_mul_i32 s{t+1}, s{t}, 1376
s_and_b32 s{t+1}, s{t+1}, -64
s_add_u32 s{t+2}, s16, s{t+1}
s_addc_u32 s{t+3}, s17, 0
s_lshl_b32 s{t+1}, s{t}, 9
s_add_u32 s{t+4}, s8, s{t+1}
s_addc_u32 s{t+5}, s9, 0""")
    for i in range(22): I(f's_load_dword s{t+6}, s[{t+2}:{t+3}], {64*i}')
    for i in range(8): I(f's_load_dword s{t+6}, s[{t+4}:{t+5}], {64*i}')
mk_srd(SWS, 22, WS_REC); mk_srd(SAF, 22, AF_BYTES); mk_srd(SOUT, 18, 2048*1024)
p2_params(False)
for r in range(152): I(f'v_mov_b32 v{r}, 0')
row_stats()
I(f"""s_mul_i32 s{t+8}, s{sRB}, 23
s_add_u32 s{t+8}, s{t+8}, s{sCOL}
s_lshl_b32 s{t+8}, s{t+8}, 7
s_lshl_b32 s{t+9}, s{sWAVE}, 4
s_add_u32 s{t+8}, s{t+8}, s{t+9}
s_add_u32 s{t+8}, s{t+8}, {W_FL}""")
if OPT['walk']:
    I(f"""s_mov_b64 exec, 0
s_cmp_eq_u32 s{sWAVE}, 2
s_cbranch_scc1 @@P0
s_cmp_eq_u32 s{sWAVE}, 3
s_cbranch_scc1 @@P1
s_lshl_b32 s{t}, s{sISQ}, 1
s_add_u32 s{t}, s{t}, s{sWAVE}
s_cmp_eq_u32 s{t}, 0
s_cbranch_scc1 @@F0
s_cmp_eq_u32 s{t}, 1
s_cbranch_scc1 @@F1
s_cmp_eq_u32 s{t}, 2
s_cbranch_scc1 @@Q0
s_branch @@Q1""")
    k.label('L_WRET')
    I('s_mov_b64 exec, -1')
VCF, VFU, VFR, VTM = 248, 246, 245, 247
I(f"""v_mov_b32 v{VFU}, {L_FULL}
s_lshl_b32 s{t}, s{sWAVE}, 2
v_add_u32 v{VFR}, s{t}, v{VFU}
s_cmp_eq_u32 s{sISQ}, 1
s_cbranch_scc1 L_CQ""")
sNEED = t + 11
def c_flag_read(): I(f'ds_read_b128 v[{VCF}:{VCF+3}], v{VFU}')
def c_check(spinl):
    I(f"""v_min_u32 v{VCF}, v{VCF}, v{VCF+1}
v_min3_u32 v{VCF}, v{VCF}, v{VCF+2}, v{VCF+3}
v_cmp_gt_u32 vcc, s{sNEED}, v{VCF}""")
def c_spin_block(spinl, back):
    k.label(spinl)
    I(f's_mov_b32 s{t+4}, 0')
    k.label(spinl + '_l')
    c_flag_read()
    I(f's_add_u32 s{t+4}, s{t+4}, 1\ns_waitcnt lgkmcnt(0)')
    c_check(None)
    if OPT['diag']: I(f's_add_u32 m0, s{sNEED}, 8\ns_nop 0\nv_writelane_b32 v{VDIAG}, s{t+4}, m0')
    I(f's_cmp_lt_u32 s{t+4}, 0x400000\ns_cbranch_vccz {back}\ns_cbranch_scc1 {spinl}_l\ns_branch {back}')

sFLG = t + 8
def flag_prep():
    I(f'v_mov_b32 v247, {L_NONCE}\nds_read_b64 v[248:249], v247')
def early_flag(younger):
    I(f's_mov_b64 exec, 1\ns_waitcnt vmcnt({younger})\nbuffer_store_dwordx2 v[248:249], v{VLANE}, {srd(SWS)}, s{sFLG} offen offset:64 sc1\ns_mov_b64 exec, -1')
def publish_flag():
    stamp(30)
    I(f"""s_mov_b64 exec, 1
s_waitcnt vmcnt(0)
buffer_store_dwordx2 v[248:249], v{VLANE}, {srd(SWS)}, s{sFLG} offen sc1
s_mov_b64 exec, -1
v_readfirstlane_b32 s{sN}, v248
v_readfirstlane_b32 s{sN+1}, v249""")
    if OPT['hold']:
        I(f"""s_lshl_b32 s{t}, s{sWAVE}, 2
s_add_u32 s{t}, s{t}, {L_FREE}
v_mov_b32 v250, s{t}
v_mov_b32 v251, 9
ds_write_b32 v250, v251""")
    stamp(4)
    I('s_setprio 0')
    p2_addr()
    for j in range(6, 10): b2_raw(j, True, CBR[j], None)
    I('s_branch L_P2'); k.end_region()

sSL, sIT = t + 12, t + 13
sDL = t + 10
sLIM = t + 13
def loop_end(loop, nst, base, strides, check_pu):
    if not OPT['pre']:
        I(f's_cmp_lt_u32 s{sNEED}, 9\ns_cbranch_scc1 {loop}'); return
    E_ = newlbl('le')
    I(f's_cmp_lt_u32 s{sNEED}, s{sLIM}\ns_cbranch_scc1 {loop}\ns_cmp_eq_u32 s{sLIM}, 9\ns_cbranch_scc1 {E_}')
    sv = k.snap()
    I(f's_mov_b32 s{sLIM}, 9\nv_lshlrev_b32 v{VCF}, 4, v{VLANE}')
    for n_, (off, pu) in enumerate(strides):
        I(f's_add_u32 s{t}, s{base}, {off}')
        if check_pu: I(f's_add_u32 s{t+1}, s{t+5}, {pu}\ns_cmp_lt_u32 s{t+1}, 86\ns_cselect_b32 s{t}, s{t}, {OOB}')
        I(f'buffer_store_dwordx4 v[0:3], v{VCF}, {srd(SAF)}, s{t} offen sc1')
    if OPT['pre'] > 1:
        I(f"""v_lshrrev_b32 v{VCF+1}, 3, v{VLANE}
v_lshlrev_b32 v{VCF+1}, 10, v{VCF+1}
v_and_b32 v{VCF}, 0x70, v{VCF}
v_add_u32 v{VCF}, v{VCF}, v{VCF+1}
s_lshl_b32 s{t}, s{sRB2}, 16
s_lshl_b32 s{t+1}, s{sCB2}, 7
s_add_u32 s{t}, s{t}, s{t+1}
s_lshl_b32 s{t+1}, s{sWAVE}, 14
s_add_u32 s{t}, s{t}, s{t+1}
s_add_u32 s{t+1}, s{t}, 8192
buffer_store_dwordx4 v[0:3], v{VCF}, {srd(SOUT)}, s{t} offen sc1
buffer_store_dwordx4 v[0:3], v{VCF}, {srd(SOUT)}, s{t+1} offen sc1""")
    I(f's_branch {loop}')
    k.restore(sv)
    k.label(E_)
    I('s_waitcnt vmcnt(0)')
def next_slot():
    I(f"""s_add_u32 s{sSL}, s{sSL}, 1
s_mov_b32 s{sDL}, {SLOT}
s_cmp_eq_u32 s{sSL}, 3
s_cmov_b32 s{sDL}, {-2*SLOT}
s_cmov_b32 s{sSL}, 0""")
lg = []
def lg_wait(tags):
    idx = max((i for i, x in enumerate(lg) if x in tags), default=None)
    if idx is None: return
    n = min(15, len(lg) - 1 - idx)
    I(f's_waitcnt lgkmcnt({n})')
    del lg[:len(lg) - n]

k.c('---- C FFN')
XF, WF, XA, WA = 144, 192, 240, 242
I(f"""s_lshr_b32 s{t}, s{sWAVE}, 1
s_and_b32 s{t+1}, s{sWAVE}, 1
s_mul_i32 s{t+2}, s{t}, {96*128}
v_and_b32 v150, 15, v{VLANE}
v_bfe_u32 v151, v{VLANE}, 1, 3
v_lshrrev_b32 v152, 4, v{VLANE}
v_xor_b32 v151, v151, v152
v_lshlrev_b32 v150, 7, v150
v_add_u32 v150, s{t+2}, v150
v_lshl_add_u32 v{XA}, v151, 4, v150
v_xor_b32 v{XA+1}, 64, v{XA}
v_bfe_u32 v150, v{VLANE}, 2, 2
v_lshl_add_u32 v150, v152, 3, v150
v_mul_u32_u24 v150, 192, v150
v_and_b32 v151, 3, v{VLANE}
v_lshl_add_u32 v150, v151, 3, v150
v_add_u32 v150, 24576, v150
v_and_b32 v152, 1, v152
s_mul_i32 s{t+2}, s{t+1}, 3""")
for b_ in range(3):
    I(f's_add_u32 s{t+3}, s{t+2}, {b_}\nv_xor_b32 v151, s{t+3}, v152\nv_lshl_add_u32 v{WA+b_}, v151, 5, v150')
I(f's_mov_b32 s{sSL}, 0')
KOFF = [60, 89, 32] if OPT['lvl'] else [32, 33, 34]
I(f"""s_mul_i32 s{t+6}, s{sRB}, 6
s_mul_i32 s{t+2}, s{t}, 3
s_add_u32 s{t+6}, s{t+6}, s{t+2}
s_mul_i32 s{t+6}, s{t+6}, 118
s_lshl_b32 s{t+2}, s{sCOL}, 1
s_add_u32 s{t+2}, s{t+2}, s{t+1}
s_mul_i32 s{t+5}, s{t+2}, 3
s_add_u32 s{t+6}, s{t+6}, s{t+2 if OPT['lvl'] else t+5}
s_lshl_b32 s{t+6}, s{t+6}, 10
s_mov_b32 s{sLIM}, {OPT['preat']}""")
def ffn_reads(j):
    def xr(tt):
        d = XF + 24*j + 4*tt
        return (f'ds_read_b128 v[{d}:{d+3}], v{XA+j} offset:{tt*2048}', ('x', tt, j))
    def wr(b, m, s_):
        d = WF + 24*j + 8*b + 4*m + 2*s_
        return (f'ds_read_b64_tr_b16 v[{d}:{d+1}], v{WA+b} offset:{m*12288 + (32*j+4*s_)*192}', ('w', b, m, s_, j))
    return [xr(0)] + [wr(b, m, s_) for b in range(3) for m in range(2) for s_ in range(2)] + [xr(tt) for tt in range(1, 6)]
def rd(x): I(x[0]); lg.append(x[1])
stamp(1)
I(f's_setprio {OPT["cprio"]}\ns_mov_b32 s{sNEED}, 1\ns_branch L_FSP0')
c_spin_block('L_FSP', 'L_FBK')
c_spin_block('L_FSP0', 'L_FGO')
k.label('L_FGO')
stamp(2)
lg.clear()
FREE_AT = 5
q = ffn_reads(0)
for n in range(36):
    if n >= 1 and n % 2 == 1 and q: rd(q.pop(0))
    if n == FREE_AT: I(f'ds_read_b32 v{VTM}, v{VFU}'); lg.append('free')
assert not q
entry = list(lg)
k.label('L_FLOOP')
m0_ = k.mark()
for j in range(2):
    q = ffn_reads(1 - j)
    n = 0
    for tt in range(6):
        for b in range(3):
            for m in range(2):
                lg_wait({0: [('x', 0, j), ('w', 2, 1, 1, j)], 6: [('x', 2, j)], 18: [('x', 5, j)]}.get(n, []) + (['flag'] if (j, n) == (0, 34) else []) if OPT['cw'] else
                        [('x', tt, j), ('w', b, m, 0, j), ('w', b, m, 1, j)] + (['flag'] if (j, n) == (0, 34) else []))
                if (j, n) == (0, 34):
                    I(f's_add_u32 s{sNEED}, s{sNEED}, 1'); c_check(None); next_slot()
                ac = ((tt >> 1)*3 + b) * 16 + 8*m + 4*(tt & 1); x = XF + 24*j + 4*tt; w = WF + 24*j + 8*b + 4*m
                I(f'v_mfma_f32_16x16x32_bf16 v[{ac}:{ac+3}], v[{w}:{w+3}], v[{x}:{x+3}], v[{ac}:{ac+3}]')
                if (j, n) == (0, 35): I(f'v_add_u32 v{XA}, s{sDL}, v{XA}\nv_add_u32 v{WA}, s{sDL}, v{WA}')
                if (j, n) == (1, 0): I(f'v_add_u32 v{WA+1}, s{sDL}, v{WA+1}\nv_add_u32 v{WA+2}, s{sDL}, v{WA+2}')
                if (j, n) == (1, 1):
                    I(f'v_add_u32 v{XA+1}, s{sDL}, v{XA+1}\ns_cbranch_vccnz L_FSP')
                    k.label('L_FBK')
                if n % 2 == 1 and q: rd(q.pop(0))
                if (j, n) == (0, 20): c_flag_read(); lg.append('flag')
                if (j, n) == (1, FREE_AT):
                    lg_wait([('x', 5, 1)])
                    I(f'v_add_u32_e64 v{VTM}, -1, s{sNEED}\nds_write_b32 v{VFR}, v{VTM} offset:16'); lg.append('free')
                n += 1
    assert not q
assert lg == entry[len(entry)-len(lg):], (lg, entry)
k.check_backedge(m0_)
loop_end('L_FLOOP', 9, t+6, [((KOFF[b] + 118*a)*1024, b) for b in range(3) for a in range(3)], True)
stamp(3)
k.c('---- FFN epilogue')
if OPT['walk']: k.begin_region('F')
ST, CSB, OUTR = 144, 168, 192
VA_ = 204
I(f"""s_waitcnt lgkmcnt(0)
s_lshr_b32 s{t}, s{sWAVE}, 1
s_and_b32 s{t+1}, s{sWAVE}, 1
s_mul_i32 s{t+2}, s{t}, {96*16}
s_add_u32 s{t+2}, s{t+2}, {L_AOS}
v_and_b32 v{VA_}, 15, v{VLANE}
v_lshl_add_u32 v{VA_}, v{VA_}, 4, s{t+2}
s_mul_i32 s{t+2}, s{t+1}, {48*4}
s_add_u32 s{t+2}, s{t+2}, {L_CS}
v_and_b32 v{VA_+1}, 48, v{VLANE}
v_add_u32 v{VA_+1}, s{t+2}, v{VA_+1}""")
def st_rd(tt): I(f'ds_read_b128 v[{ST+4*tt}:{ST+4*tt+3}], v{VA_} offset:{tt*256}')
def cs_rd(b):
    for m in range(2): I(f'ds_read_b128 v[{CSB+8*b+4*m}:{CSB+8*b+4*m+3}], v{VA_+1} offset:{m*512 + b*64}')
st_rd(0); st_rd(1); cs_rd(0)
for tt in range(2, 6): st_rd(tt)
cs_rd(1); cs_rd(2)
flag_prep()
I(f'v_lshlrev_b32 v{VA_+2}, 4, v{VLANE}')
NEGB = 'op_sel_hi:[1,0,1] neg_lo:[0,1,0] neg_hi:[0,1,0]'
P = lambda r, p: f'v[{r+2*p}:{r+2*p+1}]'
tiles = [(a, b) for b in range(3) for a in range(3)]
EB = [208, 216]
def ph(n):
    a, b = tiles[n]; G = (a*3 + b) * 16; U = G + 8; E = EB[n & 1]; o = OUTR + 4*(n & 1)
    s0 = lambda p: ST + 4*(2*a + (p >> 1)); cg_ = lambda p: P(CSB + 8*b, p & 1); cu_ = lambda p: P(CSB + 8*b + 4, p & 1)
    A = [f'v_pk_fma_f32 {P(G,p)}, {cg_(p)}, v[{s0(p)}:{s0(p)+1}], {P(G,p)} {NEGB}' for p in range(4)] + \
        [f'v_pk_mul_f32 {P(E,p)}, {P(G,p)}, v[{s0(p)+2}:{s0(p)+3}] op_sel:[0,1] op_sel_hi:[1,1]' for p in range(4)]
    B = [f'v_pk_fma_f32 {P(U,p)}, {cu_(p)}, v[{s0(p)}:{s0(p)+1}], {P(U,p)} {NEGB}' for p in range(4)] + \
        [f'v_pk_mul_f32 {P(U,p)}, {P(U,p)}, {P(G,p)}' for p in range(4)]
    X = [f'v_exp_f32 v{E+e}, v{E+e}' for e in range(8)]
    D = [f'v_pk_fma_f32 {P(E,p)}, {P(E,p)}, v[{s0(p)+2}:{s0(p)+3}], v[{s0(p)+2}:{s0(p)+3}] op_sel_hi:[1,0,0]' for p in range(4)]
    R = [f'v_rcp_f32 v{E+e}, v{E+e}' for e in range(8)]
    c_ = lambda p: f'v_cvt_pk_bf16_f32 v{o+p}, v{U+2*p}, v{U+2*p+1}'
    m_ = lambda p: f'v_pk_mul_f32 {P(U,p)}, {P(U,p)}, {P(E,p)}'
    F = [m_(0), m_(2), m_(1), m_(3), c_(0), c_(2), c_(1), c_(3), f'v_permlane16_swap_b32 v{o}, v{o+2}', f'v_permlane16_swap_b32 v{o+1}, v{o+3}']
    S = []
    if a == 0: S.append(f's_add_u32 s{t+4}, s{t+5}, {b}\ns_add_u32 s{t+7}, s{t+6}, {KOFF[b]*1024}\ns_cmp_lt_u32 s{t+4}, 86\ns_cselect_b32 s{t+7}, s{t+7}, {OOB}')
    S.append(f'buffer_store_dwordx4 v[{o}:{o+3}], v{VA_+2}, {srd(SAF)}, s{t+7} offen{OPT_HST}' + (f'\ns_add_u32 s{t+7}, s{t+7}, {118*1024}' if a < 2 else ''))
    return A, B, X, D, R, F, S
def zipI(x, y):
    if OPT['ilv'] == 0:
        for i_ in y + x: I(i_)
        return
    if OPT['ilv'] == 2:
        x = [x[i] + '\n' + x[i+1] for i in range(0, len(x), 2)]; y = [y[i] + '\n' + y[i+1] for i in range(0, len(y), 2)]
    for i in range(max(len(x), len(y))):
        if i < len(x): I(x[i])
        if i < len(y): I(y[i])
I('s_waitcnt lgkmcnt(9)')
for x in ph(0)[0]: I(x)
for n in range(9):
    A, B, X, D, R, F, S = ph(n)
    if OPT.get('cutf'): X = []; R = []; D = []
    zipI(X, B)
    for x in D: I(x)
    if n == 0: I('s_waitcnt lgkmcnt(0)')
    zipI(R, ph(n + 1)[0] if n < 8 else [])
    for x in F + S: I(x, 'HS')
    if n == OPT['lva'] and OPT['lvl']: early_flag(n - 5)
publish_flag()

k.label('L_CQ')
k.fresh()
k.c('---- C QKV')
QA, KA, VA = 0, 48, 100
XS, XD, WQ = 152, 192, 216
XA, WA = 240, 244
I(f"""v_and_b32 v160, 15, v{VLANE}
v_bfe_u32 v161, v{VLANE}, 1, 3
v_lshrrev_b32 v162, 4, v{VLANE}
v_xor_b32 v161, v161, v162
v_lshlrev_b32 v163, 7, v160
v_lshl_add_u32 v{XA}, v161, 4, v163
v_xor_b32 v{XA+1}, 64, v{XA}
v_bfe_u32 v163, v{VLANE}, 2, 2
v_lshl_add_u32 v163, v162, 3, v163
v_lshlrev_b32 v163, 7, v163
v_bfe_u32 v164, v{VLANE}, 3, 1
v_and_b32 v165, 1, v162
v_lshl_or_b32 v164, v165, 1, v164
v_xor_b32 v164, s{sWAVE}, v164
v_lshl_add_u32 v163, v164, 5, v163
v_and_b32 v164, 3, v{VLANE}
v_lshl_add_u32 v163, v164, 3, v163
v_add_u32 v{WA}, 26624, v163""")
sPAR, sOA, sOB, sVA_, sVB_ = sM, sM+2, sM+4, sM+6, sM+8
SELR = [242, 243, 252, 253]
I(f"""v_and_b32 v164, 1, v{VLANE}
v_cmp_eq_u32 s[{sPAR}:{sPAR+1}], 1, v164
v_lshl_add_u32 v165, v162, 2, v164
v_cmp_le_u32 s[{sOA}:{sOA+1}], v165, v160
v_add_u32 v165, 2, v165
v_cmp_le_u32 s[{sOB}:{sOB+1}], v165, v160
s_cmp_eq_u32 s{sRB}, 0
s_cselect_b64 s[{sVA_}:{sVA_+1}], s[{sOA}:{sOA+1}], -1
s_cselect_b64 s[{sVB_}:{sVB_+1}], s[{sOB}:{sOB+1}], -1
v_mov_b32 v163, 0x0c0c0100
v_mov_b32 v164, 0x01000c0c
v_cndmask_b32 v163, v163, v164, s[{sPAR}:{sPAR+1}]
v_mov_b32 v164, 0x0c0c0302
v_mov_b32 v165, 0x03020c0c
v_cndmask_b32 v164, v164, v165, s[{sPAR}:{sPAR+1}]
v_mov_b32 v165, 0x0c0c0c0c
v_cndmask_b32 v{SELR[0]}, v163, v165, s[{sOA}:{sOA+1}]
v_cndmask_b32 v{SELR[1]}, v164, v165, s[{sOB}:{sOB+1}]
v_cndmask_b32 v{SELR[2]}, v165, v163, s[{sOA}:{sOA+1}]
v_cndmask_b32 v{SELR[3]}, v165, v164, s[{sOB}:{sOB+1}]
s_mul_i32 s{t+7}, s{sRB}, {6*118}
s_sub_u32 s{t+5}, s{sCOL}, 15
s_lshl_b32 s{t+5}, s{t+5}, 2
s_add_u32 s{t+7}, s{t+7}, s{t+5}
s_add_u32 s{t+7}, s{t+7}, s{sWAVE}
s_lshl_b32 s{t+7}, s{t+7}, 10
s_mov_b32 s{sLIM}, {OPT['preat']}""")
I(f's_mov_b32 s{sSL}, 0')
def xreg(tau, j): return XS + 4*tau if tau < 10 else XD + 12*(j & 1) + 4*(tau - 10)
def rd_x(tau, j):
    d = xreg(tau, j); I(f'ds_read_b128 v[{d}:{d+3}], v{XA+j} offset:{tau*2048}'); lg.append(('x', tau, j))
def rd_w(m, s_, j):
    d = WQ + 12*j + 4*m + 2*s_; I(f'ds_read_b64_tr_b16 v[{d}:{d+1}], v{WA} offset:{m*8192 + (32*j+4*s_)*128}'); lg.append(('w', m, s_, j))
def sched(tau):
    ex = [('w',1,0),('w',1,1),('w',2,0),('w',2,1),('w',0,0),('w',0,1),('x',10),('x',11),('x',12)]
    r = [[], [], []]
    if 1 <= tau <= 10: r[1].append(('x', tau - 1))
    if 1 <= tau <= 9: r[2].append(ex[tau - 1])
    return r
def do_reads(lst, j):
    for x in lst:
        if x[0] == 'x': rd_x(x[1], j)
        else: rd_w(x[1], x[2], j)
stamp(1)
I(f's_setprio {OPT["cprio"]}\ns_mov_b32 s{sNEED}, 1\ns_branch L_QSP0')
c_spin_block('L_QSP', 'L_QBK')
c_spin_block('L_QSP0', 'L_QGO')
k.label('L_QGO')
stamp(2)
lg.clear()
for tau in range(13):
    for r in sched(tau): do_reads(r, 0)
    if tau == 2: I(f'ds_read_b32 v{VTM}, v{VFU}'); lg.append('free')
entry = list(lg)
k.label('L_QLOOP')
m0_ = k.mark()
for j in range(2):
    for tau in range(13):
        lg_wait([('x', tau, j)] + ([('w',1,0,j),('w',1,1,j),('w',2,0,j),('w',2,1,j)] if tau == 0 else []) + ([('w',0,0,j),('w',0,1,j)] if tau == 1 else [])
                + (['flag'] if (j, tau) == (0, 12) else []))
        if (j, tau) == (0, 12):
            I(f's_add_u32 s{sNEED}, s{sNEED}, 1'); c_check(None); next_slot()
        x = xreg(tau, j); w = WQ + 12*j
        X_ = f'v[{x}:{x+3}]'
        sc = sched(tau)
        I(f'v_mfma_f32_16x16x32_bf16 v[{KA+4*tau}:{KA+4*tau+3}], v[{w+4}:{w+7}], {X_}, v[{KA+4*tau}:{KA+4*tau+3}]')
        if (j, tau) == (1, 0):
            I(f'v_add_u32 v{XA}, s{sDL}, v{XA}\nv_add_u32 v{WA}, s{sDL}, v{WA}')
        I(f'v_mfma_f32_16x16x32_bf16 v[{VA+4*tau}:{VA+4*tau+3}], {X_}, v[{w+8}:{w+11}], v[{VA+4*tau}:{VA+4*tau+3}]')
        if (j, tau) == (1, 0):
            I(f'v_add_u32 v{XA+1}, s{sDL}, v{XA+1}\ns_cbranch_vccnz L_QSP')
            k.label('L_QBK')
        do_reads(sc[1], 1 - j)
        if tau >= 1:
            q = QA + 4*(tau - 1)
            I(f'v_mfma_f32_16x16x32_bf16 v[{q}:{q+3}], v[{w}:{w+3}], {X_}, v[{q}:{q+3}]')
        do_reads(sc[2], 1 - j)
        if (j, tau) == (0, 6): c_flag_read(); lg.append('flag')
        if (j, tau) == (1, 2):
            lg_wait([('x', 9, 1)])
            I(f'v_add_u32_e64 v{VTM}, -1, s{sNEED}\nds_write_b32 v{VFR}, v{VTM} offset:16'); lg.append('free')
assert lg == entry[len(entry)-len(lg):], (lg, entry)
k.check_backedge(m0_)
loop_end('L_QLOOP', 6, t+7, [(118*1024*a, 0) for a in range(6)], False)
stamp(3)
k.c('---- QKV epilogue (attention)')
if OPT['walk']: k.begin_region('Q')
KB, VB = 152, 178
AS, SMR, CSQ, CSK, CSV = 204, 212, 234, 228, 232
ONES, VAD = 238, 244
I(f"""s_waitcnt lgkmcnt(0)
v_and_b32 v250, 15, v{VLANE}
v_lshlrev_b32 v{VAD}, 4, v250
v_add_u32 v{VAD}, {L_AOS}, v{VAD}
v_and_b32 v{VAD+1}, 48, v{VLANE}
s_lshl_b32 s{t}, s{sWAVE}, 6
s_add_u32 s{t}, s{t}, {L_CS}
v_add_u32 v{VAD+2}, s{t}, v{VAD+1}
v_add_u32 v{VAD+1}, {L_SM}, v{VAD+1}
v_lshl_add_u32 v250, v250, 2, s{t}""")
NEG = 'neg_lo:[0,1,0] neg_hi:[0,1,0]'
def st_reads(tau):
    a = AS + 4*(tau & 1)
    I(f'ds_read_b128 v[{a}:{a+3}], v{VAD} offset:{tau*256}')
def smr_reads(tau):
    m_ = SMR + 8*(tau & 1)
    I(f'ds_read_b128 v[{m_}:{m_+3}], v{VAD+1} offset:{tau*64}\nds_read_b128 v[{m_+4}:{m_+7}], v{VAD+1} offset:{1024+tau*64}')
I(f"""ds_read_b32 v{CSV}, v250 offset:512
ds_read_b128 v[{CSK}:{CSK+3}], v{VAD+2} offset:256
ds_read_b128 v[{CSQ}:{CSQ+3}], v{VAD+2}""")
smr_reads(0); st_reads(0)
flag_prep()
for i in range(4): I(f'v_mov_b32 v{ONES+i}, 0x3f803f80')
I(f'v_lshlrev_b32 v250, 4, v{VLANE}')
for tau in range(13):
    a = AS + 4*(tau & 1)
    if tau < 12: smr_reads(tau + 1); st_reads(tau + 1)
    I(f's_waitcnt lgkmcnt({3 if tau < 12 else 0})')
    m_ = SMR + 8*(tau & 1)
    Kc, Vc = KA + 4*tau, VA + 4*tau
    for p in range(2): I(f'v_pk_fma_f32 v[{Vc+2*p}:{Vc+2*p+1}], v[{m_+2*p}:{m_+2*p+1}], v[{CSV}:{CSV+1}], v[{Vc+2*p}:{Vc+2*p+1}] op_sel_hi:[1,0,1] {NEG}')
    for p in range(2): I(f'v_pk_fma_f32 v[{Kc+2*p}:{Kc+2*p+1}], v[{CSK+2*p}:{CSK+2*p+1}], v[{a}:{a+1}], v[{Kc+2*p}:{Kc+2*p+1}] op_sel_hi:[1,0,1] {NEG}')
    for p in range(2): I(f'v_pk_mul_f32 v[{Vc+2*p}:{Vc+2*p+1}], v[{Vc+2*p}:{Vc+2*p+1}], v[{m_+4+2*p}:{m_+4+2*p+1}]')
    for p in range(2): I(f'v_pk_mul_f32 v[{Kc+2*p}:{Kc+2*p+1}], v[{Kc+2*p}:{Kc+2*p+1}], v[{a}:{a+1}] op_sel:[0,1] op_sel_hi:[1,1]')
    if tau >= 1:
        Qc = QA + 4*(tau - 1)
        for p in range(2): I(f'v_pk_fma_f32 v[{Qc+2*p}:{Qc+2*p+1}], v[{CSQ+2*p}:{CSQ+2*p+1}], v[{a}:{a+1}], v[{Qc+2*p}:{Qc+2*p+1}] op_sel_hi:[1,0,1] {NEG}')
    for p in range(2): I(f'v_cvt_pk_bf16_f32 v{VB+2*tau+p}, v{Vc+2*p}, v{Vc+2*p+1}')
    for p in range(2): I(f'v_cvt_pk_bf16_f32 v{KB+2*tau+p}, v{Kc+2*p}, v{Kc+2*p+1}')
    if tau >= 1:
        for p in range(2): I(f'v_cvt_pk_bf16_f32 v{Qc+p}, v{Qc+2*p}, v{Qc+2*p+1}')
        I(f'v_mov_b32 v{Qc+2}, v{a+3}')
def SO(i): return 48 + 8*i
def SP(i): return SO(i) + 4
def MX(i): return QA + 4*i + 3
def LL(i): return 204 + 4*(i % 6)
par = f's[{sPAR}:{sPAR+1}]'
def attn(ts):
    def each(fmt):
        for i in ts: I(fmt(i))
    grps = [ts[j:j+4] for j in range(0, len(ts), 4)]
    each(lambda i: f'v_mfma_f32_16x16x16_bf16 v[{SO(i)}:{SO(i)+3}], v[{KB+2*i+2}:{KB+2*i+3}], v[{QA+4*i}:{QA+4*i+1}], 0\n'
                   f'v_mfma_f32_16x16x16_bf16 v[{SP(i)}:{SP(i)+3}], v[{KB+2*i}:{KB+2*i+1}], v[{QA+4*i}:{QA+4*i+1}], 0')
    each(lambda i: f'v_cndmask_b32 v{SO(i)}, v{SO(i)}, v{SO(i)+1}, {par}\nv_cndmask_b32 v{SO(i)+2}, v{SO(i)+2}, v{SO(i)+3}, {par}\n'
                   f'v_cndmask_b32 v{SP(i)}, v{SP(i)}, v{SP(i)+1}, {par}\nv_cndmask_b32 v{SP(i)+2}, v{SP(i)+2}, v{SP(i)+3}, {par}')
    each(lambda i: f'v_cndmask_b32 v{SO(i)}, v{SP(i)}, v{SO(i)}, s[{sOA}:{sOA+1}]\nv_cndmask_b32 v{SO(i)+1}, v{SP(i)+2}, v{SO(i)+2}, s[{sOB}:{sOB+1}]')
    if 0 in ts:
        I(f'v_mov_b32 v{MX(0)}, {f32(-1e30)}\nv_cndmask_b32 v{SO(0)}, v{MX(0)}, v{SO(0)}, s[{sVA_}:{sVA_+1}]\nv_cndmask_b32 v{SO(0)+1}, v{MX(0)}, v{SO(0)+1}, s[{sVB_}:{sVB_+1}]')
    if OPT.get('cutq'): grps = []; each = lambda f: None
    each(lambda i: f'v_max_f32 v{MX(i)}, v{SO(i)}, v{SO(i)+1}')
    for q in grps: I(f'v_permlane32_swap_b32 v{MX(q[0])}, v{MX(q[1])}\nv_permlane32_swap_b32 v{MX(q[2])}, v{MX(q[3])}')
    for q in grps: I(f'v_max_f32 v{MX(q[0])}, v{MX(q[0])}, v{MX(q[1])}\nv_max_f32 v{MX(q[2])}, v{MX(q[2])}, v{MX(q[3])}')
    for q in grps: I(f'v_permlane16_swap_b32 v{MX(q[0])}, v{MX(q[2])}')
    for q in grps: I(f'v_max_f32 v{MX(q[1])}, v{MX(q[0])}, v{MX(q[2])}\nv_max_f32 v{MX(q[3])}, v{MX(q[0])}, v{MX(q[2])}')
    for q in grps: I(f'v_permlane16_swap_b32 v{MX(q[1])}, v{MX(q[3])}')
    for q in grps: I(f'v_mov_b32 v{MX(q[0])}, v{MX(q[1])}\nv_mov_b32 v{MX(q[2])}, v{MX(q[3])}')
    for q in grps: I(f'v_permlane32_swap_b32 v{MX(q[0])}, v{MX(q[1])}\nv_permlane32_swap_b32 v{MX(q[2])}, v{MX(q[3])}')
    each(lambda i: f'v_mul_f32 v{MX(i)}, v{MX(i)}, v{QA+4*i+2}')
    each(lambda i: f'v_fma_f32 v{SO(i)}, v{SO(i)}, v{QA+4*i+2}, -v{MX(i)}\nv_fma_f32 v{SO(i)+1}, v{SO(i)+1}, v{QA+4*i+2}, -v{MX(i)}')
    each(lambda i: f'v_exp_f32 v{SO(i)}, v{SO(i)}\nv_exp_f32 v{SO(i)+1}, v{SO(i)+1}')
    each(lambda i: f'v_cvt_pk_bf16_f32 v{MX(i)}, v{SO(i)}, v{SO(i)+1}')
    for h2 in range(0, len(ts), 6 if len(ts) == 12 else 4):
        sub = ts[h2:h2+(6 if len(ts) == 12 else 4)]
        for i in sub: I('\n'.join(f'v_perm_b32 v{SP(i)+e}, v{MX(i)}, v{MX(i)}, v{SELR[e]}' for e in range(4)))
        for i in sub: I(f'v_mfma_f32_16x16x32_bf16 v[{LL(i)}:{LL(i)+3}], v[{ONES}:{ONES+3}], v[{SP(i)}:{SP(i)+3}], 0\n'
                        f'v_mfma_f32_16x16x32_bf16 v[{SO(i)}:{SO(i)+3}], v[{VB+2*i}:{VB+2*i+3}], v[{SP(i)}:{SP(i)+3}], 0')
        for i in sub: I(f'v_rcp_f32 v{QA+4*i+2}, v{LL(i)}')
        for i in sub: I('\n'.join(f'v_pk_mul_f32 v[{SO(i)+2*p}:{SO(i)+2*p+1}], v[{SO(i)+2*p}:{SO(i)+2*p+1}], v[{QA+4*i+2}:{QA+4*i+3}] op_sel_hi:[1,0]' for p in range(2)))
        for i in sub[::2]:
            o = QA + 4*i
            I(f'v_cvt_pk_bf16_f32 v{o}, v{SO(i)}, v{SO(i)+1}\nv_cvt_pk_bf16_f32 v{o+1}, v{SO(i)+2}, v{SO(i)+3}\n'
              f'v_cvt_pk_bf16_f32 v{o+2}, v{SO(i+1)}, v{SO(i+1)+1}\nv_cvt_pk_bf16_f32 v{o+3}, v{SO(i+1)+2}, v{SO(i+1)+3}')
        for i in sub[::2]:
            o = QA + 4*i
            I(f'v_permlane16_swap_b32 v{o}, v{o+2}\nv_permlane16_swap_b32 v{o+1}, v{o+3}')
        for i in sub[::2]:
            o = QA + 4*i
            I(f'buffer_store_dwordx4 v[{o}:{o+3}], v250, {srd(SAF)}, s{t+7} offen{OPT_HST}\ns_add_u32 s{t+7}, s{t+7}, {118*1024}')
for ts_ in {0: [range(12)], 1: [range(4), range(4, 12)], 2: [range(8), range(8, 12)], 3: [range(4), range(4, 8), range(8, 12)]}[OPT['agrp']]: attn(list(ts_))
publish_flag()
k.label('L_CODE_END')
I('s_endpgm')

ent = k.chains({'P': 2, 'F': 2, 'Q': 2}, 'L_WRET')
for r_, l_ in ent.items():
    for i_, e_ in enumerate(l_): k.out = [x.replace(f'@@{r_}{i_}', e_) for x in k.out]
k.padstep
hdr = open('cdna_kernels/' + NAME + '.s.ref').read().split('; Override launch')[0]
txt = hdr + f"""; @launch grid=(256,1,1) block=(512,1,1) lds=163840
.amdgcn_target "amdgcn-amd-amdhsa--gfx950"
.text
.globl {NAME}_kernel
.p2align 8
.type {NAME}_kernel,@function
{NAME}_kernel:
""" + k.text() + f""".section .rodata,"a"
.p2align 6
.amdhsa_kernel {NAME}_kernel
  .amdhsa_next_free_vgpr 256
  .amdhsa_next_free_sgpr 102
  .amdhsa_accum_offset 256
  .amdhsa_group_segment_fixed_size 0
  .amdhsa_kernarg_size 80
  .amdhsa_user_sgpr_count 2
  .amdhsa_user_sgpr_kernarg_segment_ptr 1
  .amdhsa_system_sgpr_workgroup_id_x 1
.end_amdhsa_kernel
"""
open(sys.argv[1], 'w').write(txt)
for p_ in k.problems: print('PROBLEM', p_)
print('written', sys.argv[1], 'lines', txt.count('\n'), 'nops', k.nops)
```

```python
from mbrun import *
import re
src = open('k_v17.s').read()
def loop(name):
    a = src.index(name + ':'); b = src.index('s_cbranch_scc1 ' + name)
    t = src[a:b].split('\n')[1:]
    out = []
    for l in t:
        if 's_cbranch_vccnz' in l or l.strip().endswith(':') or 's_cmp_lt_u32 s77' in l: continue
        out.append(l)
    if ORDER[0]:
        idx = [i for i, l in enumerate(out) if 'v_mfma' in l]
        half = len(idx) // 2
        for part in (idx[:half], idx[half:]):
            ls = [out[i] for i in part]
            key = lambda l: [x.strip() for x in l.split(',')]
            if ORDER[0] == 1: ls.sort(key=lambda l: max(key(l)[1], key(l)[2]))
            if ORDER[0] == 2: ls = [(lambda p: f'{p[0]}, {p[2]}, {p[1]}, {p[3]}')(l.split(', ')) for l in ls]
            if ORDER[0] == 3:
                ls.sort(key=lambda l: max(key(l)[1], key(l)[2])); ls = [(lambda p: f'{p[0]}, {p[2]}, {p[1]}, {p[3]}')(l.split(', ')) for l in ls]
            if ORDER[0] == 4:
                import random; random.Random(1).shuffle(ls)
            for i, l in zip(part, ls): out[i] = l
    return '\n'.join(out) + '\n'
ORDER = [0]
def body(which, ndma, sleep, upoff=0, iters=64, prio=0, waves=4, dw='dwordx4', thr=None, gate=0, waste=0):
    s = """
  s_load_dwordx2 s[4:5], s[0:1], 0
  s_load_dwordx2 s[6:7], s[0:1], 8
  v_and_b32 v254, 63, v0
  v_lshrrev_b32 v252, 6, v0
  s_nop 0
  v_readfirstlane_b32 s21, v252
  v_lshlrev_b32 v253, 4, v254
  s_and_b32 s22, s2, 7
  s_lshl_b32 s22, s22, 22
  s_lshr_b32 s23, s2, 3
  s_lshl_b32 s23, s23, 16
  s_and_b32 s24, s21, 3
  s_lshl_b32 s25, s24, 14
  s_add_u32 s23, s23, s25
  v_add_u32 v2, s23, v253
  s_waitcnt lgkmcnt(0)
  s_add_u32 s12, s4, s22
  s_addc_u32 s13, s5, 0
  s_mov_b32 s14, 0x400000
  s_mov_b32 s15, 0x20000
  s_mul_i32 s26, s24, 12288
  s_mov_b32 s27, 0
  s_mov_b32 s28, 0
  s_mov_b32 s8, 0
  s_mov_b32 s77, 0
  s_mov_b32 s78, 0
  v_mul_u32_u24 v3, 171, v254
  v_lshrrev_b32 v3, 11, v3
  v_mul_u32_u24 v7, 12, v3
  v_sub_u32 v7, v254, v7
  v_lshlrev_b32 v7, 4, v7
  v_mul_u32_u24 v3, 2752, v3
  v_add_u32 v3, v3, v7
  v_add_u32 v3, s23, v3
  s_cmp_ge_u32 s21, 4
  s_cbranch_scc1 LD
"""
    if which == 'L_FLOOP':
        s += """  v_and_b32 v150, 15, v254
  v_bfe_u32 v151, v254, 1, 3
  v_lshrrev_b32 v152, 4, v254
  v_xor_b32 v151, v151, v152
  v_lshlrev_b32 v150, 7, v150
  v_lshl_add_u32 v240, v151, 4, v150
  v_xor_b32 v241, 64, v240
  v_bfe_u32 v150, v254, 2, 2
  v_lshl_add_u32 v150, v152, 3, v150
  v_mul_u32_u24 v150, 192, v150
  v_and_b32 v151, 3, v254
  v_lshl_add_u32 v150, v151, 3, v150
  v_add_u32 v150, 24576, v150
  v_and_b32 v152, 1, v152
"""
        for b_ in range(3): s += f"  v_xor_b32 v151, {b_}, v152\n  v_lshl_add_u32 v{242+b_}, v151, 5, v150\n"
    else:
        s += """  v_and_b32 v160, 15, v254
  v_bfe_u32 v161, v254, 1, 3
  v_lshrrev_b32 v162, 4, v254
  v_xor_b32 v161, v161, v162
  v_lshlrev_b32 v163, 7, v160
  v_lshl_add_u32 v240, v161, 4, v163
  v_xor_b32 v241, 64, v240
  v_bfe_u32 v163, v254, 2, 2
  v_lshl_add_u32 v163, v162, 3, v163
  v_lshlrev_b32 v163, 7, v163
  v_bfe_u32 v164, v254, 3, 1
  v_and_b32 v165, 1, v162
  v_lshl_or_b32 v164, v165, 1, v164
  v_xor_b32 v164, s21, v164
  v_lshl_add_u32 v163, v164, 5, v163
  v_and_b32 v164, 3, v254
  v_lshl_add_u32 v163, v164, 3, v163
  v_add_u32 v244, 26624, v163
"""
    s += "  v_mov_b32 v246, 159696\n  s_lshl_b32 s31, s21, 2\n  v_add_u32 v245, s31, v246\n  v_mov_b32 v247, 0\n  ds_write_b32 v245, v247 offset:16\n  s_mov_b32 s77, 1\n"
    for r in range(0, 240): s += f"  v_mov_b32 v{r}, 0\n"
    if prio: s += f"  s_setprio {prio}\n"
    s += "  s_waitcnt lgkmcnt(0)\n  s_barrier\n  s_memtime s[10:11]\n  s_memrealtime s[40:41]\n  s_waitcnt lgkmcnt(0)\nL:\n" + loop(which) + f"  s_add_u32 s8, s8, 1\n  s_cmp_lt_u32 s8, {iters}\n  s_cbranch_scc1 L\n  s_waitcnt lgkmcnt(0)\n  v_mov_b32 v3, 1\n  v_mov_b32 v4, 163000\n  ds_write_b32 v4, v3\n  s_branch END\n"
    s += "LD:\n  v_mov_b32 v4, 163000\n  v_mov_b32 v5, 0\n  ds_write_b32 v4, v5\n  s_waitcnt lgkmcnt(0)\n  s_barrier\n  s_memtime s[10:11]\n  s_memrealtime s[40:41]\n  v_mov_b32 v6, 159712\n"
    s += f"  s_cmp_ge_u32 s24, {waves}\n  s_cbranch_scc1 END\nLDL:\n"
    if gate: s += f"""GW:
  ds_read_b128 v[8:11], v6
  s_waitcnt lgkmcnt(0)
  v_min_u32 v8, v8, v9
  v_min3_u32 v8, v8, v10, v11
  v_cmp_gt_u32 vcc, s8, v8
  s_cmp_ge_u32 s8, {iters}
  s_cbranch_scc1 END
  s_cbranch_vccz GD
  s_sleep 1
  s_branch GW
GD:
"""
    s += """  s_add_u32 s27, s27, 0x20000
  s_and_b32 s27, s27, 0x1fffff
  s_add_u32 s28, s28, 51200
  s_cmp_ge_u32 s28, 153600
  s_cselect_b32 s28, 0, s28
  s_add_u32 s29, s28, s26
"""
    for i in range(ndma):
        s += f"  s_add_u32 m0, s29, {(i%12)*1024 + (upoff if i >= 9 else 0)}\n  s_add_u32 s30, s27, {i*1024}\n  buffer_load_{dw} v{3 if (waste and i >= 6) else 2}, s[12:15], s30 offen lds\n"
        if thr is not None: s += f"  s_waitcnt vmcnt({thr})\n"
        if sleep: s += f"  s_sleep {sleep}\n"
    s += f"  s_add_u32 s8, s8, 1\n  ds_read_b32 v5, v4\n  s_waitcnt vmcnt(8) lgkmcnt(0)\n  v_cmp_eq_u32 vcc, 0, v5\n  s_nop 4\n  s_cbranch_vccnz LDL\nEND:\n"
    s += """
  s_waitcnt vmcnt(0) lgkmcnt(0)
  s_memtime s[16:17]
  s_memrealtime s[42:43]
  s_waitcnt lgkmcnt(0)
  s_sub_u32 s16, s16, s10
  s_sub_u32 s42, s42, s40
  v_mov_b32 v250, s16
  v_mov_b32 v251, s42
  v_lshlrev_b32 v249, 3, v252
  s_lshl_b32 s3, s2, 6
  v_add_u32 v249, s3, v249
  global_store_dwordx2 v249, v[250:251], s[6:7]
  s_waitcnt vmcnt(0)
"""
    return s
def go(name, *a, **k):
    r = run(body(*a, **k), b=512, reps=3)
    if r is None: return
    t = r[-1][:256*16].reshape(256, 8, 2); it = k.get('iters', 64)
    print(f"{name:44s} C cyc/stage {np.median(t[:, :4, 0])/it:.0f} (max wave {np.median(t[:, :4, 0].max(1))/it:.0f})  us/stage {np.median(t[:, :4, 1].max(1))/it*0.01:.3f}  clock {np.median(t[:,:4,0]/t[:,:4,1])/10:.2f}", flush=True)
for L, w in (('L_FLOOP', 1), ('L_QLOOP', 0)):
    for o in range(5):
        ORDER[0] = o
        go(L + f" order {o}", L, 12, 0, gate=1, waste=w, iters=16)
        go(L + f" order {o}", L, 12, 0, gate=1, waste=w, iters=16)
```
